```python
import torch

def _softmax(x, axis=-1):
    return torch.softmax(x, dim=axis)
def _gelu(x):
    return torch.nn.functional.gelu(x, approximate="tanh")
def _silu(x):
    return torch.nn.functional.silu(x)
def _sigmoid(x):
    return torch.sigmoid(x)
def _layernorm(x, axis=-1, eps=1e-5):
    m = x.mean(dim=axis, keepdim=True)
    v = x.var(dim=axis, keepdim=True, unbiased=False)
    return (x - m) / torch.sqrt(v + eps)
def _scatter_add(tgt, idx, src, axis=0):
    return tgt.clone().index_add_(axis, idx, src)
def _segment_sum(src, seg, n):
    out = torch.zeros((n,) + src.shape[1:], dtype=src.dtype)
    return out.index_add_(0, seg, src)
def _pad(x, pw):
    flat = tuple(v for pair in reversed(pw) for v in pair)
    return torch.nn.functional.pad(x, flat)

kernel_name = 'sequential_preLN__linear_attn_block__mixer_token_mlp__prompt'

def setup_inputs():

    _w = (lambda a: (lambda t: t.to(torch.bfloat16) if t.is_floating_point() else t)(torch.as_tensor(a)))
    def _A_setup():
        B, S, D = 1, 2048, 576
        return {
            "x": _w((lambda *s: torch.randn(*s, dtype=torch.bfloat16) * 0.05)(B, S, D)),
            "wqkv": _w((lambda *s: torch.randn(*s, dtype=torch.bfloat16) * 0.05)(D, 3 * D)),
            "wo": _w((lambda *s: torch.randn(*s, dtype=torch.bfloat16) * 0.05)(D, D)),
        }
    _A_in = _A_setup()

    def _B_setup():
        B, S, D, F = 1, 2048, 576, 4608
        return {
            "x": _w((lambda *s: torch.randn(*s, dtype=torch.bfloat16) * 0.05)(B, S, D)),
            "w1": _w((lambda *s: torch.randn(*s, dtype=torch.bfloat16) * 0.2)(S, F) * (S ** -0.5)),
            "b1": _w((lambda *s: torch.randn(*s, dtype=torch.bfloat16) * 3.2)(F) * 0.02),
            "w2": _w((lambda *s: torch.randn(*s, dtype=torch.bfloat16) * 0.2)(F, S) * (F ** -0.5)),
            "b2": _w((lambda *s: torch.randn(*s, dtype=torch.bfloat16) * 0.4)(S) * 0.02),
        }
    _B_in = _B_setup()

    return {
        "A_x": _A_in["x"],
        "A_wqkv": _A_in["wqkv"],
        "A_wo": _A_in["wo"],
        "B_x": _B_in["x"],
        "B_w1": _B_in["w1"],
        "B_b1": _B_in["b1"],
        "B_w2": _B_in["w2"],
        "B_b2": _B_in["b2"],
    }

def reference(A_x, A_wqkv, A_wo, B_x, B_w1, B_b1, B_w2, B_b2):
    def _A_ref(x, wqkv, wo):
        B, S, D = x.shape
        H = 32; Dh = D // H
        qkv = (lambda x, *d: x.permute(*d))((x @ wqkv).reshape(B, S, 3, H, Dh), 2, 0, 3, 1, 4)
        q, k, v = qkv[0], qkv[1], qkv[2]
        phi = lambda t: torch.where(t > 0, t + 1, torch.exp(t)) + 1e-6
        pq, pk = phi(q), phi(k)
        kv = torch.einsum("bhsd,bhse->bhde", pk, v)
        z = torch.einsum("bhsd->bhd", pk)
        num = torch.einsum("bhqd,bhde->bhqe", pq, kv)
        den = torch.einsum("bhqd,bhd->bhq", pq, z)[..., None] + 1e-6
        o = num / den
        return (lambda x, *d: x.permute(*d))(o, 0, 2, 1, 3).reshape(B, S, D) @ wo

    def _B_ref(x, w1, b1, w2, b2):
        B, S, D = x.shape
        h = _layernorm(x, axis=-1)
        u = torch.einsum("bsd,sf->bdf", h, w1) + b1
        u = _gelu(u)
        y = torch.einsum("bdf,fs->bds", u, w2) + b2
        return (lambda x, *d: x.permute(*d))(y, 0, 2, 1)

    x = A_x
    h = x + _A_ref(_layernorm(x, axis=-1), A_wqkv, A_wo)
    h2 = h + _B_ref(_layernorm(h, axis=-1), B_w1, B_b1, B_w2, B_b2)
    return h2
```

```python
NAME = "sequential_preLN__linear_attn_block__mixer_token_mlp__prompt"
STAMP = 200 << 20

class K:
    def __init__(self, name, vgpr=256, agpr=0, sgpr=102):
        self.name = name; self.lines = []; self.vgpr = vgpr; self.agpr = agpr; self.sgpr = sgpr
        self.nlab = 0
        self.tag = name.replace("_kernel", "")[-10:]
    def __call__(self, s):
        if isinstance(s, (list, tuple)):
            for x in s: self(x)
            return
        for l in s.strip("\n").split("\n"):
            l = l.strip()
            if not l: continue
            self.lines.append(l if l.endswith(":") else "    " + l)
    def label(self, base="L"):
        self.nlab += 1
        return f"L{self.tag}_{base}{self.nlab}"
    def text(self):
        s = f".text\n.globl {self.name}\n.p2align 8\n.type {self.name},@function\n{self.name}:\n"
        s += "\n".join(self.lines) + "\n"
        return s
    def desc(self):
        acc = (self.vgpr + 3) // 4 * 4
        nfv = acc + self.agpr if self.agpr else self.vgpr
        s = f""".amdhsa_kernel {self.name}
  .amdhsa_next_free_vgpr {nfv}
  .amdhsa_next_free_sgpr {self.sgpr}
  .amdhsa_accum_offset {acc}
  .amdhsa_group_segment_fixed_size 0
  .amdhsa_kernarg_size 88
  .amdhsa_user_sgpr_count 2
  .amdhsa_user_sgpr_kernarg_segment_ptr 1
  .amdhsa_system_sgpr_workgroup_id_x 1
  .amdhsa_float_denorm_mode_32 3
.end_amdhsa_kernel
"""
        return s

def emit_file(path, launches, kernels, header=""):
    s = header
    for (n, g, b, l) in launches:
        s += f"; @launch kernel={n} grid=({g[0]},{g[1]},{g[2]}) block=({b[0]},{b[1]},{b[2]}) lds={l}\n"
    s += '.amdgcn_target "amdgcn-amd-amdhsa--gfx950"\n'
    for k in kernels: s += k.text()
    s += '.section .rodata,"a"\n'
    for k in kernels: s += ".p2align 6\n" + k.desc()
    open(path, "w").write(s)

def v(a, n=1): return f"v{a}" if n == 1 else f"v[{a}:{a+n-1}]"
def a(x, n=1): return f"a{x}" if n == 1 else f"a[{x}:{x+n-1}]"
def s(x, n=1): return f"s{x}" if n == 1 else f"s[{x}:{x+n-1}]"

def weave(main, side, start=0, end=None):
    end = len(main) if end is None else end
    n = end - start
    out = []
    slots = [[] for _ in main]
    m = len(side)
    for i, it in enumerate(side):
        pos = start + (i * n) // m if m else start
        slots[pos].append(it)
    for ins, sl in zip(main, slots):
        out.append(ins)
        for it in sl:
            out.extend(it if isinstance(it, (list, tuple)) else [it])
    return out

def srd(k, r, lo, hi, size, add=0):
    if add:
        k(f"s_add_u32 s{r}, s{lo}, {add}\ns_addc_u32 s{r+1}, s{hi}, 0")
    else:
        k(f"s_mov_b32 s{r}, s{lo}\ns_mov_b32 s{r+1}, s{hi}")
    k(f"s_mov_b32 s{r+2}, {size}\ns_mov_b32 s{r+3}, 0x20000")

def stamp_begin(k):
    k("s_memrealtime s[90:91]\ns_memtime s[92:93]")
def stamp_mid(k, i):
    k(f"s_memtime s[{70+2*i}:{71+2*i}]")
def stamp_end(k, kidx):
    L = k.label("nost")
    k(f"""
    s_waitcnt vmcnt(0)
    s_memrealtime s[94:95]
    s_memtime s[96:97]
    s_load_dwordx2 s[84:85], s[0:1], 80
    s_waitcnt lgkmcnt(0)
    s_add_u32 s84, s84, {STAMP + kidx * 65536}
    s_addc_u32 s85, s85, 0
    s_lshl_b32 s86, s2, 6
    s_mov_b64 exec, -1
    v_mov_b32 v1, s86
    v_mov_b32 v4, s90
    v_mov_b32 v5, s91
    v_mov_b32 v6, s94
    v_mov_b32 v7, s95
    v_mov_b32 v8, s92
    v_mov_b32 v9, s93
    v_mov_b32 v10, s96
    v_mov_b32 v11, s97
    v_mov_b32 v12, s70
    v_mov_b32 v13, s72
    v_mov_b32 v14, s74
    v_mov_b32 v15, s76
    v_mov_b32 v16, s78
    v_mov_b32 v17, s80
    v_mov_b32 v18, s82
    v_mov_b32 v19, s92
    v_cmp_eq_u32 vcc, 0, v0
    s_and_saveexec_b64 s[88:89], vcc
    s_cbranch_execz {L}
    global_store_dwordx4 v1, v[4:7], s[84:85]
    global_store_dwordx4 v1, v[8:11], s[84:85] offset:16
    global_store_dwordx4 v1, v[12:15], s[84:85] offset:32
    global_store_dwordx4 v1, v[16:19], s[84:85] offset:48
    {L}:
    """)

class SB:
    def __init__(self, k):
        self.k = k
        self.q = {"lgkmcnt": [], "vmcnt": []}
        self.done = {"lgkmcnt": 0, "vmcnt": 0}
        self.mx = {"lgkmcnt": 15, "vmcnt": 63}
    def op(self, c, ins, tag=None):
        self.k(ins); self.q[c].append(tag)
    def ds(self, ins, tag=None): self.op("lgkmcnt", ins, tag)
    def vm(self, ins, tag=None): self.op("vmcnt", ins, tag)
    def need(self, c, pred):
        q = self.q[c]
        last = -1
        for i in range(len(q) - 1, -1, -1):
            if pred(q[i]): last = i; break
        if last < self.done[c]: return
        n = min(len(q) - 1 - last, self.mx[c])
        self.k(f"s_waitcnt {c}({n})")
        self.done[c] = len(q) - n
    def needds(self, *tags): self.need("lgkmcnt", lambda t: t in tags)
    def needvm(self, *tags): self.need("vmcnt", lambda t: t in tags)
    def drain(self, c):
        if self.done[c] < len(self.q[c]):
            self.k(f"s_waitcnt {c}(0)"); self.done[c] = len(self.q[c])

import struct
def fbits(x): return struct.unpack("<I", struct.pack("<f", x))[0]
MF = "v_mfma_f32_16x16x32_bf16"
```

```python
import re, sys
def regs(tok):
    tok = tok.strip().lstrip("-").strip("|")
    m = re.fullmatch(r"([vas])(\d+)", tok)
    if m: return {(m.group(1), int(m.group(2)))}
    m = re.fullmatch(r"([vas])\[(\d+):(\d+)\]", tok)
    if m: return {(m.group(1), i) for i in range(int(m.group(2)), int(m.group(3)) + 1)}
    if tok == "vcc": return {("s", "vcc")}
    if tok == "exec": return {("s", "exec")}
    if tok == "m0": return {("s", "m0")}
    return set()
TRANS = ("v_exp_f32", "v_log_f32", "v_rcp_f32", "v_rsq_f32", "v_sqrt_f32", "v_sin_f32", "v_cos_f32")
class I: pass
def parse(line):
    l = line.split(";")[0].strip()
    if not l or l.endswith(":") or l.startswith("."): return None
    p = l.split(None, 1); op = p[0]; rest = p[1] if len(p) > 1 else ""
    ops = [x.strip() for x in re.split(r",\s*(?![^\[]*\])", rest)]
    last = ops[-1].split() if ops and ops[-1] else []
    mods = last[1:];
    if last: ops[-1] = last[0]
    i = I(); i.op = op; i.txt = l; i.mods = mods; i.ws = 1
    i.dst = set(); i.src = set(); i.kind = "other"; i.c = set(); i.ab = set()
    R = [regs(o) for o in ops]
    if op == "s_nop": i.ws = int(ops[0]) + 1; return i
    if op.startswith("v_mfma"):
        i.kind = "mfma"; i.dst = R[0]; i.ab = R[1] | R[2]; i.c = R[3]; i.src = i.ab | i.c
        i.passes = 8 if "32x32" in op else 4
    elif op.startswith("v_"):
        i.kind = "valu"
        nd = 1
        if op.startswith("v_permlane") and "swap" in op: i.dst = R[0] | R[1]; i.src = R[0] | R[1]
        elif op.startswith("v_cmp"): i.dst = R[0]; i.src = set().union(*R[1:])
        elif op.startswith(("v_add_co", "v_sub_co", "v_addc_co", "v_subb_co")): i.dst = R[0] | R[1]; i.src = set().union(*R[2:])
        else:
            i.dst = R[0]; i.src = set().union(*R[1:]) if len(R) > 1 else set()
            if op.startswith(("v_fmac", "v_mac", "v_dot2c")) or "dpp" in op: i.src |= R[0]
        i.trans = op.replace("_e64", "").replace("_e32", "") in TRANS
        i.dpp = "dpp" in op or any(m.startswith(("row_", "quad_perm")) for m in mods)
    elif op.startswith("ds_"):
        i.kind = "ds"
        if "read" in op or "permute" in op or "rtn" in op: i.dst = R[0]; i.src = set().union(*R[1:])
        else: i.src = set().union(*R)
    elif op.startswith(("buffer_", "global_")):
        i.kind = "vmem"; i.lds = "lds" in mods
        if "load" in op and not i.lds: i.dst = R[0]; i.src = set().union(*R[1:])
        else: i.src = set().union(*R)
        i.wide = ("store" in op and ("x4" in op or "x3" in op))
        i.data = (R[0] if op.startswith("buffer_") else R[1]) if i.wide else set()
        if i.lds: i.src |= {("s", "m0")}
    elif op.startswith("s_"):
        i.kind = "salu"
        if op.startswith(("s_cmp", "s_cbranch", "s_branch", "s_waitcnt", "s_barrier", "s_endpgm", "s_setprio", "s_sleep")): i.src = set().union(*R) if R else set()
        else: i.dst = R[0]; i.src = set().union(*R[1:]) if len(R) > 1 else set()
        if "saveexec" in op: i.dst |= {("s", "exec")}
    return i
def need(p, c):
    n = 0
    vg = lambda S: {x for x in S if x[0] in "va"}
    sg = lambda S: {x for x in S if x[0] == "s"}
    if p.kind == "valu":
        if c.kind == "mfma" and vg(p.dst) & c.src: n = max(n, 2)
        if c.kind == "valu":
            if c.dpp and vg(p.dst) & c.src: n = max(n, 2)
            if c.op.startswith("v_permlane") and vg(p.dst) & c.src: n = max(n, 2)
            if c.op.startswith(("v_readfirstlane", "v_readlane")) and vg(p.dst) & c.src: n = max(n, 1)
            if p.trans and not c.trans and vg(p.dst) & c.src: n = max(n, 1)
            s = c.src | ({("s", "vcc")} if c.op.startswith("v_cndmask") else set())
            if sg(p.dst) & s: n = max(n, 2)
        if c.kind == "vmem" and sg(p.dst) & c.src: n = max(n, 5)
    if p.kind == "mfma":
        big = {4: 8, 8: 12}[p.passes]
        if c.kind == "mfma":
            if p.dst & c.ab: n = max(n, big)
            if p.dst & c.c and (p.dst != c.c or p.passes != c.passes): n = max(n, big - 2)
        elif c.kind in ("valu", "ds", "vmem"):
            if p.dst & (c.src | c.dst): n = max(n, big)
            if c.kind == "valu" and p.c & c.dst: n = max(n, {4: 3, 8: 7}[p.passes])
    if p.kind == "vmem" and p.wide:
        if p.data & c.dst: n = max(n, 2 if c.kind == "valu" else 1)
    if p.kind == "salu" and ("s", "m0") in p.dst and c.kind == "vmem" and c.lds: n = max(n, 1)
    return n
def check(path):
    ins = []
    for ln, line in enumerate(open(path), 1):
        i = parse(line)
        if i: i.ln = ln; ins.append(i)
    bad = 0
    for a in range(len(ins)):
        p = ins[a]
        if p.kind not in ("valu", "mfma", "vmem", "salu"): continue
        gap = 0
        for b in range(a + 1, min(a + 14, len(ins))):
            c = ins[b]
            if c.op == "s_endpgm": break
            if c.op != "s_nop":
                n = need(p, c)
                if n > gap:
                    print(f"{path}:{c.ln}: need {n} have {gap}: [{p.txt}] -> [{c.txt}]"); bad += 1
            gap += c.ws
            if gap >= 12: break
    print(path, "hazards:", bad)
    return bad
if __name__ == "__main__":
    for f in sys.argv[1:]: check(f)
```

```python
from asmlib import *
from layout import *

def gen_k1(name="k1_kernel", kidx=0, stamps=False, aux_x="", aux_w="", aux_o="", L=4, dbg=""):
    NS = 9; NB = 4
    k = K(name, vgpr=232)
    sb = SB(k)
    END = k.label("end")
    VX = 2; VW = 6; VA = 10; VB = 12; ONE = 26
    ACC = 32
    def acc(j, rb): return ACC + (j * 2 + rb) * 4
    AQ = 88; AC = 96
    AF = 124
    def af(h, rb): return AF + (h * 2 + rb) * 4
    BF = 140
    def bf(j): return BF + 4 * j
    GA = 168; GO = 171; VP = 174; VF = 177; VCS = 178; VBP = 179; VEPS = 180; VRD = 181; VT = 182
    T = 184
    XB = 65536; TB = 131072; CS = TB + 4096
    k(f"s_cmp_ge_u32 s2, 256\ns_cbranch_scc1 {END}")
    if stamps: stamp_begin(k)
    k(f"""
    s_load_dwordx4 s[4:7], s[0:1], 0           ; x, wqkv
    s_load_dwordx2 s[8:9], s[0:1], 16          ; wo
    s_load_dwordx4 s[28:31], s[0:1], 72
    v_lshrrev_b32 v{T}, 6, v0
    v_and_b32 v1, 63, v0                       ; lane
    s_and_b32 s33, s2, 7
    v_readfirstlane_b32 s3, v{T}               ; wave
    s_lshl_b32 s33, s33, 1
    s_bfe_u32 s34, s2, 0x10003
    s_add_u32 s33, s33, s34                    ; rt
    s_lshr_b32 s34, s2, 4                      ; hp
    v_lshrrev_b32 v{T}, 4, v1                  ; g
    v_and_b32 v{T+1}, 15, v1                   ; i
    v_lshrrev_b32 v{T+2}, 3, v1
    s_movk_i32 s35, 1152
    v_mul_u32_u24 v{T+2}, s35, v{T+2}
    v_and_b32 v{T+3}, 7, v1
    v_xor_b32 v{T+3}, v{T+3}, v{T}
    v_xor_b32 v{T+4}, 4, v{T+3}
    v_lshl_add_u32 v{VX}, v{T+3}, 4, v{T+2}
    v_lshl_add_u32 v{VX+1}, v{T+4}, 4, v{T+2}
    v_add_u32 v{VX+2}, {2*(8*1152-1024)}, v{VX}
    v_add_u32 v{VX+1}, {8*1152-1024}, v{VX+1}
    v_add_u32 v{VX+3}, {2*(8*1152-1024)}, v{VX+1}
    s_movk_i32 s35, 3456
    v_mul_u32_u24 v{T+2}, s35, v{T}            ; (l>>4)*3456
    v_lshlrev_b32 v{T+3}, 1, v{T}
    v_sub_u32 v{T+3}, v{T+1}, v{T+3}
    """)
    for par in range(2):
        k(f"""
        v_add_u32 v{T+4}, {16 - 8*par}, v{T+3}
        v_and_b32 v{T+4}, 15, v{T+4}               ; chunk
        v_mov_b32 v{T+5}, {2304 - 8 - 176}
        v_mov_b32 v{T+6}, -80
        v_cmp_gt_u32 vcc, 10, v{T+4}
        v_mov_b32 v{T+7}, {1152 - 8}
        v_lshl_add_u32 v{T+8}, v{T+4}, 4, v{T+2}
        v_cndmask_b32 v{T+5}, v{T+5}, v{T+6}, vcc
        v_cmp_gt_u32 vcc, 5, v{T+4}
        v_add_u32 v{T+8}, {par * (8*3456 - 1024)}, v{T+8}
        s_nop 0
        v_cndmask_b32 v{T+5}, v{T+5}, v{T+7}, vcc
        v_add_u32 v{VW+par}, v{T+5}, v{T+8}
        v_add_u32 v{VW+2+par}, {4*3456 - 2048}, v{VW+par}
        """)
    def lanes(*ls): return sum(1 << x for x in ls)
    mE = ~lanes(10, 28, 46, 48) & (2**64 - 1); mO = ~lanes(2, 20, 38, 56) & (2**64 - 1)
    k(f"""
    s_mov_b32 s50, {mE & 0xffffffff}
    s_mov_b32 s51, {mE >> 32}
    s_mov_b32 s52, {mO & 0xffffffff}
    s_mov_b32 s53, {mO >> 32}
    s_lshl_b32 s36, s33, 2
    s_add_u32 s36, s36, s3                     ; rt32
    s_mul_i32 s40, s36, {32*1152}              ; s40 = x soffset
    s_mul_i32 s41, s3, {16*3456}
    s_mul_i32 s37, s34, 72
    s_add_u32 s41, s41, s37                    ; s41 = w soffset
    s_lshl_b32 s42, s3, 12
    s_lshl_b32 s43, s3, 14
    s_add_u32 s43, s43, {XB}
    v_mov_b32 v{ONE}, 0x3f803f80
    v_mov_b32 v{ONE+1}, 0x3f803f80
    v_mov_b32 v{ONE+2}, 0x3f803f80
    v_mov_b32 v{ONE+3}, 0x3f803f80
    v_and_b32 v{T+4}, 7, v0
    v_lshl_add_u32 v{T+4}, v{T+4}, 1, 10
    v_and_b32 v{T+4}, 15, v{T+4}
    v_lshlrev_b32 v{T+4}, 4, v{T+4}
    v_lshl_add_u32 v{T+4}, v0, 8, v{T+4}
    """)
    sb.ds(f"ds_write_b128 v{T+4}, {v(ONE,4)}", "ones")
    k("s_waitcnt lgkmcnt(0)"); sb.done["lgkmcnt"] = 1
    srd(k, 12, 4, 5, 2048 * 1152)
    srd(k, 16, 6, 7, 576 * 3456)
    srd(k, 20, 30, 31, KVT_SZ, KVT_OFF)
    LZ = k.label("noz")
    k(f"""
    s_mul_i32 s44, s34, 3040
    s_cmp_lg_u32 s33, 0
    s_cbranch_scc1 {LZ}
    v_mov_b32 v{T+8}, 0
    v_mov_b32 v{T+9}, 0
    v_mov_b32 v{T+10}, 0
    v_mov_b32 v{T+11}, 0
    v_lshlrev_b32 v{T+4}, 4, v0
    v_cmp_gt_u32 vcc, 190, v0
    v_mov_b32 v{T+5}, 0x40000000
    s_nop 0
    v_cndmask_b32 v{T+4}, v{T+5}, v{T+4}, vcc
    buffer_store_dwordx4 {v(T+8,4)}, v{T+4}, s[20:23], s44 offen sc1
    {LZ}:
    """)
    def issue(n):
        out = []
        g = [f"s_add_u32 m0, s42, {(n % NB) * 16384}", "s_mov_b64 exec, s[50:51]"]
        for q in (0, 2):
            g.append(("vm", f"buffer_load_dwordx4 v{VW+q}, s[16:19], s41 offen offset:{q*1024} {aux_w} lds"))
        g.append("s_mov_b64 exec, -1")
        out.append(g)
        g = ["s_mov_b64 exec, s[52:53]"]
        for q in (1, 3):
            g.append(("vm", f"buffer_load_dwordx4 v{VW+q}, s[16:19], s41 offen offset:{q*1024} {aux_w} lds"))
        g += ["s_mov_b64 exec, -1", f"s_add_u32 s41, s41, {64*3456}"]
        out.append(g)
        for q in range(4):
            g = []
            if q == 0: g += [f"s_add_u32 m0, s43, {(n % NB) * 4096}", "s_nop 0"]
            g.append(("vm", f"buffer_load_dwordx4 v{VX+q}, s[12:15], s40 offen offset:{q*1024} {aux_x} lds"))
            if q == 3: g.append("s_add_u32 s40, s40, 128")
            out.append(g)
        return out
    def emit(g, tag):
        for x in g:
            if isinstance(x, tuple): sb.vm(x[1], tag)
            else: k(x)
    for g in issue(0): emit(g, 0)
    LT = k.label("notask"); LC = k.label("noclr")
    srd(k, 24, 8, 9, 576 * 1152)
    k(f"""
    s_cmp_eq_u32 s3, 3
    s_cselect_b32 s45, s2, 255
    s_cmp_ge_u32 s45, 180
    s_cbranch_scc1 {LT}
    s_mul_i32 s46, s45, 57
    s_lshr_b32 s46, s46, 9
    s_mul_i32 s47, s46, 9
    s_sub_u32 s47, s45, s47                    ; cq
    s_mul_i32 s48, s46, 52
    s_lshr_b32 s48, s48, 8                     ; w' = wt / 5
    s_mul_i32 s49, s48, 5
    s_sub_u32 s49, s46, s49                    ; t
    v_lshrrev_b32 v{T+4}, 3, v1                ; b = l>>3
    v_lshrrev_b32 v{T+5}, 1, v{T+4}
    v_mul_u32_u24 v{T+5}, 18, v{T+5}
    v_and_b32 v{T+6}, 1, v{T+4}
    v_add3_u32 v{T+5}, v{T+5}, v{T+6}, 16
    s_mov_b32 s54, {8*1152-1024}
    s_mov_b32 s55, {18*1152-2048}
    s_mov_b32 s56, {26*1152-3072}
    s_cmp_eq_u32 s49, 4
    s_cselect_b64 vcc, -1, 0
    s_cmov_b32 s54, {72*1152-1024}
    s_cselect_b32 s57, 0, s49
    v_cndmask_b32 v{T+4}, v{T+4}, v{T+5}, vcc
    s_movk_i32 s58, 1152
    v_mul_u32_u24 v{T+4}, s58, v{T+4}
    v_and_b32 v{T+5}, 7, v1
    v_lshl_add_u32 v{T+4}, v{T+5}, 4, v{T+4}
    s_mul_i32 s58, s48, 144
    s_mul_i32 s57, s57, 36
    s_add_u32 s58, s58, s57
    s_mul_i32 s58, s58, 1152
    s_lshl_b32 s57, s47, 7
    s_add_u32 s58, s58, s57
    s_add_u32 s54, s54, s58
    s_add_u32 s55, s55, s58
    s_add_u32 s56, s56, s58
    s_mov_b32 m0, {TB}
    s_nop 0
    buffer_load_dwordx4 v{T+4}, s[24:27], s58 offen offset:0 lds
    buffer_load_dwordx4 v{T+4}, s[24:27], s54 offen offset:1024 lds
    buffer_load_dwordx4 v{T+4}, s[24:27], s55 offen offset:2048 lds
    buffer_load_dwordx4 v{T+4}, s[24:27], s56 offen offset:3072 lds
    {LT}:
    """)
    srd(k, 24, 30, 31, XCH_SZ, XCH_OFF)
    k(f"""
    s_cmp_lg_u32 s3, 2
    s_cbranch_scc1 {LC}
    v_mov_b32 v{T+8}, -1
    v_lshlrev_b32 v{T+4}, 2, v1
    s_lshl_b32 s46, s2, 8
    buffer_store_dword v{T+8}, v{T+4}, s[24:27], s46 offen
    {LC}:
    """)
    for g in issue(1): emit(g, 1)
    k(f"""
    s_and_b32 s37, s3, 1                       ; parity
    v_lshrrev_b32 v{T+2}, 1, v{T+1}
    v_xor_b32 v{T+2}, v{T+2}, v{T}
    s_lshl_b32 s38, s37, 2
    v_xor_b32 v{T+2}, s38, v{T+2}
    v_lshlrev_b32 v{T+2}, 4, v{T+2}
    v_lshl_add_u32 v{T+2}, v{T+1}, 7, v{T+2}
    v_add_u32 v{VA}, s43, v{T+2}
    v_xor_b32 v{VA+1}, 64, v{VA}
    v_bfe_u32 v{T+2}, v1, 2, 3                 ; rho = 4(g&1)+r
    v_lshrrev_b32 v{T+3}, 5, v1
    v_lshl_add_u32 v{T+3}, v{T+3}, 4, v{T+2}   ; pi0
    v_lshlrev_b32 v{T+3}, 8, v{T+3}
    s_lshl_b32 s38, s37, 13
    v_add_u32 v{T+3}, s38, v{T+3}
    v_and_b32 v{T+4}, 3, v1                    ; c
    v_lshl_add_u32 v{T+5}, v{T+2}, 2, v{T+4}   ; c + 4 rho
    v_cmp_eq_u32 s[54:55], 0, v{T+4}
    v_cmp_eq_u32 s[56:57], 3, v{T+4}
    """)
    for j in range(7):
        base = [0, 4, 8, 12, 16, 24, 28][j]
        if j == 0: k(f"v_add_u32 v{T+6}, 20, v{T+5}\nv_cndmask_b32 v{T+6}, v{T+5}, v{T+6}, s[54:55]")
        elif j == 4: k(f"v_add_u32 v{T+6}, 16, v{T+5}\nv_add_u32 v{T+7}, 20, v{T+5}\nv_cndmask_b32 v{T+6}, v{T+6}, v{T+7}, s[56:57]")
        else: k(f"v_add_u32 v{T+6}, {base}, v{T+5}")
        k(f"""
        v_and_b32 v{T+6}, 31, v{T+6}
        v_lshl_add_u32 v{VB+j}, v{T+6}, 3, v{T+3}
        v_xor_b32 v{VB+7+j}, 0x2000, v{VB+j}
        """)
    k(f"""
    s_mul_i32 s38, s34, 36
    s_mul_i32 s39, s36, 576
    s_add_u32 s38, s38, s39
    s_lshl_b32 s59, s38, 6
    v_lshlrev_b32 v{T+2}, 6, v{T+1}
    v_lshl_add_u32 v{T+2}, v{T}, 4, v{T+2}     ; i*64 + g*16
    v_mov_b32 v{T+3}, 0x40000000
    v_cmp_lt_u32 vcc, 7, v{T+1}
    v_add_u32 v{T+4}, -512, v{T+2}
    v_add_u32 v{VP+1}, 512, v{T+2}
    v_cndmask_b32 v{VP}, v{T+3}, v{T+4}, vcc
    v_cmp_gt_u32 s[60:61], 12, v{T+1}
    v_add_u32 v{T+4}, {24*64}, v{T+2}
    v_mov_b32 v{T+5}, {fbits(1e-6)}
    v_cndmask_b32 v{VP+2}, v{T+3}, v{T+4}, s[60:61]
    v_cndmask_b32 v{VEPS}, 0, v{T+5}, s[60:61]
    s_lshl_b32 s38, s3, 9
    s_add_u32 s38, s38, {CS}
    v_lshl_add_u32 v{VCS}, v{T+1}, 2, s38
    v_and_b32 v{T+2}, 48, v1
    v_lshl_add_u32 v{T+2}, v{T}, 2, v{T+2}
    v_lshlrev_b32 v{VBP}, 2, v{T+2}
    s_lshl_b32 s38, s3, 13
    v_lshl_add_u32 v{VRD}, v1, 4, s38
    s_lshl_b32 s38, s34, 2
    v_mov_b32 v{VF}, s38
    s_movk_i32 s38, 3277
    s_movk_i32 s39, 380
    """)
    for m in range(3):
        k(f"""
        v_add_u32 v{T+2}, {256*m}, v0              ; idx
        v_cmp_le_u32 vcc, s39, v{T+2}
        v_lshlrev_b32 v{T+8}, 2, v{T+2}
        v_subrev_u32 v{T+4}, s39, v{T+2}
        v_cndmask_b32 v{T+4}, v{T+2}, v{T+4}, vcc  ; rem = e*20+d
        v_cndmask_b32 v{T+5}, 0, 18, vcc           ; 18 hh
        v_mul_u32_u24 v{T+6}, s38, v{T+4}
        v_lshrrev_b32 v{T+6}, 16, v{T+6}           ; e
        v_mul_u32_u24 v{T+7}, 20, v{T+6}
        v_sub_u32 v{T+7}, v{T+4}, v{T+7}           ; d
        v_cmp_gt_u32 s[54:55], 18, v{T+7}
        v_cmp_gt_u32 s[56:57], 19, v{T+6}
        v_cmp_gt_u32 vcc, 18, v{T+6}
        v_add3_u32 v{T+7}, v{T+7}, v{T+5}, 4       ; kappa + 4
        v_add3_u32 v{T+6}, v{T+6}, v{T+5}, 12      ; nu + 12
        s_and_b64 s[54:55], s[54:55], s[56:57]
        v_cndmask_b32 v{T+6}, 0, v{T+6}, vcc
        v_cndmask_b32 v{GO+m}, v{T+3}, v{T+8}, s[54:55]
        v_lshrrev_b32 v{T+8}, 4, v{T+6}            ; vb
        v_lshrrev_b32 v{T+9}, 5, v{T+6}            ; vb==2
        v_mul_u32_u24 v{T+8}, 3, v{T+8}
        v_sub_u32 v{T+8}, v{T+8}, v{T+9}
        v_lshrrev_b32 v{T+9}, 4, v{T+7}
        v_add_u32 v{T+8}, v{T+8}, v{T+9}           ; blk
        v_and_b32 v{T+7}, 15, v{T+7}
        v_lshlrev_b32 v{T+7}, 4, v{T+7}
        v_lshl_add_u32 v{T+8}, v{T+8}, 10, v{T+7}
        v_bfe_u32 v{T+9}, v{T+6}, 2, 2
        v_lshl_add_u32 v{T+8}, v{T+9}, 8, v{T+8}
        v_and_b32 v{T+9}, 3, v{T+6}
        v_lshl_add_u32 v{T+8}, v{T+9}, 2, v{T+8}
        v_cndmask_b32 v{GA+m}, 0, v{T+8}, s[54:55]
        """)
    NI = NS * 14
    def rdB(t):
        n, r = divmod(t, 14); h, j = divmod(r, 7)
        return [(f"ds_read_b64_tr_b16 {v(bf(j)+2*u,2)}, v{VB+7*h+j} offset:{(n%NB)*16384 + u*2048}", ("B", t)) for u in range(2)]
    def rdA(hh):
        n, h = divmod(hh, 2)
        return [(f"ds_read_b128 {v(af(h,rb),4)}, v{VA+h} offset:{(n%NB)*4096 + rb*2048}", ("A", hh)) for rb in range(2)]
    sb.needvm(0)
    k("s_barrier")
    LF = k.label("nof")
    k(f"""
    s_or_b32 s38, s33, s3
    s_cmp_lg_u32 s38, 0
    s_cbranch_scc1 {LF}
    v_mov_b32 v{T+2}, 1
    global_store_dword v{VF}, v{T+2}, s[28:29] sc1
    {LF}:
    """)
    if stamps: stamp_mid(k, 0)
    for x in rdA(0): sb.ds(*x)
    for t in range(L):
        for x in rdB(t): sb.ds(*x)
    pend = [(n, g) for n in (2, 3) for g in issue(n)]
    nxt = 4
    for t in range(NI):
        n, r = divmod(t, 14); h, j = divmod(r, 7); hh = 2 * n + h
        m = []
        for rb in range(2):
            c = "0" if hh == 0 else v(acc(j, rb), 4)
            m.append(f"{MF} {v(acc(j,rb),4)}, {v(af(h,rb),4)}, {v(bf(j),4)}, {c}")
        if h == 0:
            m.append(f"{MF} {v(AC+4*j,4)}, {v(ONE,4)}, {v(bf(j),4)}, {'0' if n == 0 else v(AC+4*j,4)}")
        if j in (1, 3):
            rb = j >> 1
            m.append(f"{MF} {v(AQ+4*rb,4)}, {v(af(h,rb),4)}, {v(af(h,rb),4)}, {'0' if hh == 0 else v(AQ+4*rb,4)}")
        sb.needds(("B", t), ("A", hh))
        k(m[0])
        side = []
        if r == 14 - L and n + 1 < NS:
            assert all(st > n + 1 for st, _ in pend)
            sb.needvm(n + 1)
            k("s_barrier")
            if nxt < NS and nxt - NB <= n - 1:
                pend += [(nxt, g) for g in issue(nxt)]; nxt += 1
        rds = rdB(t + L) if t + L < NI else []
        if j == 7 - L and hh + 1 < 2 * NS: rds = rdA(hh + 1) + rds
        if n == NS - 1 and h == 1 and j >= 3:
            js = {3: (0, 1), 4: (2, 3), 5: (4, 5), 6: (6,)}[j]
            rds += [(f"ds_write_b32 v{VCS}, v{AC+4*x} offset:{64*x}", "cs") for x in js]
        ld = None
        if pend: ld = pend.pop(0)
        per = -(-len(rds) // len(m))
        for x in rds[:per]: sb.ds(*x)
        for i in range(1, len(m)):
            k(m[i])
            for x in rds[per * i: per * (i + 1)]: sb.ds(*x)
            if i == 1 and ld: emit(ld[1], ld[0])
    if stamps: stamp_mid(k, 1)
    sb.drain("lgkmcnt")
    k("s_barrier")
    sb.vm(f"global_load_dword v{T+40}, v{VF}, s[28:29] sc1", "flag")
    C = T
    k(f"v_xor_b32 v{VCS}, 512, v{VCS}")
    for j in range(7): sb.ds(f"ds_read_b32 v{C+j}, v{VCS} offset:{64*j}", "c")
    Q = T + 8; S = T + 16; RR = T + 24; RM = T + 32
    for x in range(8): sb.ds(f"ds_bpermute_b32 v{Q+x}, v{VBP}, v{AQ+x} offset:{4*(x&3)}", "q")
    for x in range(8): k(f"v_mov_b32_dpp v{S+x}, v{ACC+x} row_newbcast:0 row_mask:0xf bank_mask:0xf")
    k(f"""
    s_mov_b32 s38, {fbits(1/576)}
    s_mov_b32 s39, {fbits(1e-5)}
    s_mov_b32 s62, {fbits(1.4426950408889634)}
    s_mov_b32 s63, {fbits(1e-6)}
    v_mov_b32 v{VT}, {fbits(-1e-6 * 1.4426950408889634)}
    """)
    for x in range(8): k(f"v_mul_f32 v{S+x}, s38, v{S+x}")
    for x in range(8): k(f"v_fma_f32 v{RM+x}, -v{S+x}, v{S+x}, s39")
    sb.needds("c")
    for j in range(7): k(f"v_add_f32 v{C+j}, v{C+j}, v{AC+4*j}")
    sb.needds("q")
    for x in range(8): k(f"v_fma_f32 v{Q+x}, v{Q+x}, s38, v{RM+x}")
    for x in range(8): k(f"v_max_f32 v{Q+x}, s39, v{Q+x}")
    for x in range(8): k(f"v_rsq_f32 v{RR+x}, v{Q+x}")
    for x in range(8): k(f"v_mul_f32 v{RM+x}, v{RR+x}, v{S+x}")
    if stamps: stamp_mid(k, 2)
    E = AC
    def fin(j):
        a0 = acc(j, 0)
        for x in range(8):
            if j < 4: k(f"v_fma_f32 v{a0+x}, v{a0+x}, v{RR+x}, s63")
            elif j == 4: k(f"v_fma_f32 v{a0+x}, v{a0+x}, v{RR+x}, v{VEPS}")
            else: k(f"v_mul_f32 v{a0+x}, v{a0+x}, v{RR+x}")
        for x in range(8): k(f"v_fma_f32 v{a0+x}, -v{RM+x}, v{C+j}, v{a0+x}")
        if j <= 4:
            for x in range(8): k(f"v_fma_f32 v{E+x}, v{a0+x}, s62, v{VT}")
            for x in range(8): k(f"v_exp_f32_e64 v{E+x}, v{E+x} clamp")
            if j < 4:
                for x in range(8): k(f"v_max_f32 v{a0+x}, s63, v{a0+x}")
                for x in range(8): k(f"v_add_f32 v{a0+x}, v{a0+x}, v{E+x}")
            else:
                for x in range(8): k(f"v_max_f32 v{E+8+x}, s63, v{a0+x}")
                for x in range(8): k(f"v_add_f32 v{E+x}, v{E+8+x}, v{E+x}")
                for x in range(8): k(f"v_cndmask_b32 v{a0+x}, v{a0+x}, v{E+x}, s[60:61]")
        for x in range(4): k(f"v_cvt_pk_bf16_f32 v{bf(j)+x}, v{a0+2*x}, v{a0+2*x+1}")
    srd(k, 12, 30, 31, PQ_SZ, PQ_OFF)
    for j in (3, 2, 4):
        fin(j)
        sb.vm(f"buffer_store_dwordx4 {v(bf(j),4)}, v{VP+j-2}, s[12:15], s59 offen {aux_o}".rstrip(), "pq")
    for x in range(4): k(f"v_cndmask_b32 v{AF+x}, v{bf(4)+x}, v{ONE}, s[60:61]")
    for j in (0, 1, 5, 6): fin(j)
    KV = ACC
    pairs = [(AF, 0), (AF, 1), (AF, 2), (bf(5), 0), (bf(5), 1), (bf(5), 2), (bf(6), 1), (bf(6), 2)]
    for i, (av, kb) in enumerate(pairs):
        k(f"{MF} {v(KV+4*i,4)}, {v(av,4)}, {v(bf(kb),4)}, 0")
    LS = k.label("spin"); LG = k.label("go")
    k(f"""
    s_mov_b32 s38, 0
    s_waitcnt vmcnt(3)
    {LS}:
    v_readfirstlane_b32 s39, v{T+40}
    s_add_u32 s38, s38, 1
    s_cmp_lg_u32 s39, 0
    s_cbranch_scc1 {LG}
    s_cmp_ge_u32 s38, 0x40000
    s_cbranch_scc1 {LG}
    global_load_dword v{T+40}, v{VF}, s[28:29] sc1
    s_waitcnt vmcnt(0)
    s_branch {LS}
    {LG}:
    """)
    for i in range(8):
        sb.ds(f"ds_write_b128 v{VRD}, {v(KV+4*i,4)} offset:{1024*i}", "kv")
    if stamps: stamp_mid(k, 3)
    LT2 = k.label("notask2"); LT3 = k.label("left");
    k(f"""
    s_cmp_ge_u32 s45, 180
    s_cbranch_scc1 {LT2}
    v_bfe_u32 v{T+2}, v1, 2, 4
    v_and_b32 v{T+3}, 3, v1
    v_lshlrev_b32 v{T+3}, 3, v{T+3}
    v_lshl_add_u32 v{T+2}, v{T+2}, 7, v{T+3}
    v_add_u32 v{T+2}, {TB}, v{T+2}
    """)
    for cc in range(4):
        for u in range(2):
            k(f"ds_read_b64_tr_b16 {v(AC+4*cc+2*u,2)}, v{T+2} offset:{cc*32 + u*2048}")
    srd(k, 16, 30, 31, WOF_SZ, WOF_OFF)
    k(f"v_lshlrev_b32 v{T+3}, 4, v1")
    for cc in range(4):
        k(f"""
        s_lshl_b32 s38, s47, 2
        s_add_u32 s38, s38, {cc}                   ; CB
        s_mul_i32 s39, s38, 57
        s_lshr_b32 s39, s39, 9                     ; ct
        s_mul_i32 s54, s39, 9
        s_sub_u32 s38, s38, s54                    ; cb
        s_lshl_b32 s39, s39, 2
        s_add_u32 s39, s39, s48
        s_mul_i32 s39, s39, 41
        s_mul_i32 s54, s49, 9
        s_add_u32 s39, s39, s54
        s_add_u32 s54, s39, s38
        s_lshl_b32 s{64+cc}, s54, 10
        s_lshr_b32 s54, s38, 1
        s_add_u32 s54, s54, s39
        s_lshl_b32 s54, s54, 10
        s_and_b32 s38, s38, 1
        s_lshl_b32 s38, s38, 3
        s_add_u32 s54, s54, s38
        s_cmp_eq_u32 s49, 4
        s_cselect_b32 s{64+cc}, s54, s{64+cc}
        """)
    k(f"s_waitcnt lgkmcnt(0)\ns_cmp_eq_u32 s49, 4\ns_cbranch_scc1 {LT3}")
    for cc in range(4): k(f"buffer_store_dwordx4 {v(AC+4*cc,4)}, v{T+3}, s[16:19], s{64+cc} offen {aux_o}".rstrip())
    k(f"s_branch {LT2}\n{LT3}:")
    for cc in range(4): k(f"buffer_store_dwordx2 {v(AC+4*cc,2)}, v{T+3}, s[16:19], s{64+cc} offen {aux_o}".rstrip())
    k(f"{LT2}:")
    k("s_waitcnt lgkmcnt(0)\ns_barrier")
    G = AF + 4
    for m in range(3):
        for w in range(4):
            k(f"ds_read_b32 v{G+4*m+w}, v{GA+m} offset:{8192*w}")
    for m in range(3):
        k(f"s_waitcnt lgkmcnt({8 - 4*m})")
        k(f"v_add_f32 v{G+4*m}, v{G+4*m}, v{G+4*m+1}\nv_add_f32 v{G+4*m+2}, v{G+4*m+2}, v{G+4*m+3}\nv_add_f32 v{G+4*m}, v{G+4*m}, v{G+4*m+2}")
        k(f"buffer_atomic_add_f32 v{G+4*m}, v{GO+m}, s[20:23], s44 offen")
    if stamps: stamp_end(k, kidx)
    k(f"{END}:\ns_endpgm")
    return k, (name, (256, 1, 1), (256, 1, 1), CS + 2048)

if __name__ == "__main__":
    k, l = gen_k1(kidx=0, stamps=True)
    emit_file("k1.s", [l], [k])
```

```python
from asmlib import *
from layout import *
MF16 = "v_mfma_f32_16x16x16_bf16"

def gen_k2(name="k2_kernel", kidx=1, stamps=False, aux_o="", dbg=""):
    k = K(name, vgpr=248, agpr=164)
    sb = SB(k)
    END = k.label("end")
    VL = 2
    VWT = 3
    VKW = 7
    VA0 = 8; VA1 = 9; VB0 = 10; VB1 = 11
    VXD = 12
    VRW = 15
    VRR = 16
    VXR = 19; VST = 20; VPL = 21
    T = 22
    ACC = 32
    def acc(cb, rb): return ACC + (cb * 2 + rb) * 4
    FR = 104
    def fr(t, u, x): return FR + ((t & 1) * 2 + u) * 16 + x * 4
    DD = 168
    def dd(u, rb, b): return DD + ((u * 2 + rb) * 2 + b) * 4
    OF = 200
    def of(t, rb): return OF + ((t & 1) * 2 + rb) * 4
    LF = 216
    RAW = 168
    X = 220
    def wf(t, cb): return (t * 9 + cb) * 4
    def wl(cb): return 144 + (cb >> 1) * 4 + (cb & 1) * 2
    KVI = 0; PQI = 6144; XI = 65536; ST = XI + 9216
    k(f"s_cmp_ge_u32 s2, 256\ns_cbranch_scc1 {END}")
    if stamps: stamp_begin(k)
    k(f"""
    s_load_dwordx2 s[4:5], s[0:1], 0           ; x
    s_load_dwordx2 s[10:11], s[0:1], 80        ; ws
    v_lshrrev_b32 v{T}, 6, v0
    v_and_b32 v1, 63, v0                       ; lane
    s_and_b32 s33, s2, 7
    v_readfirstlane_b32 s3, v{T}               ; wave
    s_lshl_b32 s33, s33, 3
    s_lshr_b32 s34, s2, 5
    s_add_u32 s33, s33, s34                    ; rt32
    s_bfe_u32 s34, s2, 0x20003                 ; ct
    v_lshlrev_b32 v{VL}, 4, v1
    s_mul_i32 s35, s3, 12160
    s_mul_i32 s36, s33, 4
    s_add_u32 s36, s36, s3
    s_mul_i32 s36, s36, 9216
    s_lshl_b32 s37, s3, 14
    v_add_u32 v{VWT}, 4096, v{VL}
    v_add_u32 v{VWT+1}, 8192, v{VL}
    s_waitcnt lgkmcnt(0)
    """)
    srd(k, 12, 10, 11, WOF_OFF + WOF_SZ - KVT_OFF, KVT_OFF)
    srd(k, 16, 10, 11, PQ_SZ, PQ_OFF)
    for i in range(12):
        base = VL if i < 4 else VWT + i // 4 - 1
        sb.vm(f"buffer_load_dwordx4 {v(RAW+4*i,4)}, v{base}, s[12:15], s35 offen offset:{(i%4)*1024}", ("kv", i))
    for i in range(9):
        base = VL if i < 4 else VWT + i // 4 - 1
        if i % 4 == 0: k(f"s_add_u32 m0, s37, {PQI + i*1024}\ns_nop 0")
        sb.vm(f"buffer_load_dwordx4 v{base}, s[16:19], s36 offen offset:{(i%4)*1024} lds", "pq")
    srd(k, 20, 4, 5, 2048 * 1152)
    k(f"""
    s_mov_b32 s38, {(1 << 32) // 18 + 1}
    s_movk_i32 s39, {1152 - 288}
    s_mul_i32 s40, s33, {32*1152}
    s_mul_i32 s41, s34, 288
    s_add_u32 s40, s40, s41                    ; x soffset
    """)
    for n in range(3):
        k(f"""
        v_add_u32 v{T}, {256*n}, v0
        v_mul_hi_u32 v{T+1}, v{T}, s38
        v_mul_u32_u24 v{T+1}, s39, v{T+1}
        v_lshl_add_u32 v{VXD+n}, v{T}, 4, v{T+1}
        """)
    LX = k.label("x3")
    k(f"""
    s_cmp_lg_u32 s3, 0
    s_cbranch_scc1 {LX}
    s_mov_b32 m0, {XI + 8192}
    s_nop 0
    buffer_load_dwordx4 v{VXD+2}, s[20:23], s40 offen lds
    {LX}:
    s_lshl_b32 s41, s3, 10
    """)
    for n in range(2):
        k(f"s_add_u32 m0, s41, {XI + 4096*n}\ns_nop 0")
        sb.vm(f"buffer_load_dwordx4 v{VXD+n}, s[20:23], s40 offen lds", "x")
    k(f"""
    s_lshl_b32 s41, s34, 2
    s_add_u32 s41, s41, s3
    s_mul_i32 s41, s41, {41*1024}
    s_add_u32 s41, s41, {WOF_OFF - KVT_OFF}
    """)
    for p in range(4):
        k(f"""
        s_add_u32 s42, s3, {p}
        s_and_b32 s42, s42, 3
        s_lshl_b32 s43, s42, 11
        s_add_u32 s{44+p}, s41, s43
        s_lshl_b32 s43, s42, 10
        s_add_u32 s{50+p}, s41, s43
        """)
    k(f"s_add_u32 s48, s41, 8192\ns_add_u32 s54, s41, 4096")
    for t in range(1, 5): k(f"v_add_u32 v{VWT+t-1}, {9216*t}, v{VL}")
    wq = []
    for t in range(4):
        for cb in range(9):
            wq.append((f"buffer_load_dwordx4 {a(wf(t,cb),4)}, v{VL if t == 0 else VWT+t-1}, s[12:15], s{44 + cb//2} offen offset:{(cb&1)*1024}", ("w", t)))
    for p in range(5):
        wq.append((f"buffer_load_dwordx4 {a(144+4*p,4)}, v{VWT+3}, s[12:15], s{50+p} offen", ("w", 4)))
    def wload(n=1):
        for _ in range(n):
            if wq: sb.vm(*wq.pop(0))
    wload(4)
    k(f"""
    v_lshrrev_b32 v{T}, 4, v1                  ; g
    v_and_b32 v{T+1}, 15, v1                   ; i
    v_lshl_add_u32 v{VKW}, v1, 3, s37
    v_lshl_add_u32 v{T+2}, v{T}, 3, s37
    v_mad_u32_u24 v{VA0}, v{T+1}, 40, v{T+2}
    v_and_b32 v{T+3}, 3, v1                    ; c
    v_min_u32 v{T+4}, 2, v{T+3}
    v_mad_u32_u24 v{T+4}, v{T+4}, 40, v{T+2}
    v_add_u32 v{VA1}, 640, v{T+4}
    v_bfe_u32 v{T+4}, v1, 2, 4                 ; 4g + r
    v_lshl_add_u32 v{T+5}, v{T+3}, 4, s37
    v_add_u32 v{T+5}, {PQI}, v{T+5}
    v_lshl_add_u32 v{VB0}, v{T+4}, 6, v{T+5}
    v_cmp_gt_u32 vcc, 16, v1
    v_and_b32 v{T+6}, 1, v{T+4}
    v_or_b32 v{T+6}, 16, v{T+6}
    v_cndmask_b32 v{T+6}, v{T+4}, v{T+6}, vcc
    v_lshl_add_u32 v{VB1}, v{T+6}, 6, v{T+5}
    v_add_u32 v{VRW}, s37, v{VL}
    s_movk_i32 s42, 288
    v_mul_u32_u24 v{T+4}, s42, v{T+4}
    v_lshl_add_u32 v{T+4}, v{T+3}, 3, v{T+4}
    s_lshl_b32 s42, s3, 6
    s_add_u32 s42, s42, {XI}
    v_add_u32 v{VXR}, s42, v{T+4}
    """)
    for j in range(1, 4):
        k(f"""
        s_sub_u32 s42, s3, {j}
        s_and_b32 s42, s42, 3
        s_lshl_b32 s42, s42, 14
        s_add_u32 s42, s42, {(j-1)*4096}
        v_add_u32 v{VRR+j-1}, s42, v{VL}
        """)
    k(f"""
    v_bfe_u32 v{T+2}, v1, 3, 1                 ; stat
    v_bfe_u32 v{T+4}, v1, 2, 1                 ; rb
    v_lshlrev_b32 v{T+5}, 4, v{T}
    v_lshl_add_u32 v{T+5}, v{T+4}, 6, v{T+5}
    v_lshl_add_u32 v{T+5}, v{T+2}, 7, v{T+5}
    s_lshl_b32 s42, s3, 8
    s_add_u32 s42, s42, {ST}
    v_add_u32 v{VST}, s42, v{T+5}
    v_lshlrev_b32 v{T+5}, 4, v{T}
    v_lshl_add_u32 v{T+5}, v{T+2}, 6, v{T+5}
    v_lshl_add_u32 v{T+5}, v{T+4}, 7, v{T+5}
    v_lshl_add_u32 v{VPL}, v{T+3}, 8, v{T+5}
    """)
    for t in range(2):
        for u in range(2):
            for x in (0, 1):
                k(f"v_mov_b32 v{fr(t,u,x)+2}, 0\nv_mov_b32 v{fr(t,u,x)+3}, 0")
    for i in range(12):
        sb.needvm(("kv", i))
        if i == 0 and stamps: stamp_mid(k, 0)
        k(f"v_cvt_pk_bf16_f32 v{RAW+4*i}, v{RAW+4*i}, v{RAW+4*i+1}\nv_cvt_pk_bf16_f32 v{RAW+4*i+1}, v{RAW+4*i+2}, v{RAW+4*i+3}")
        sb.ds(f"ds_write_b64 v{VKW}, {v(RAW+4*i,2)} offset:{KVI + 512*i}", "kvw")
        wload(1)
    def reads(t):
        out = []
        for u in range(2):
            hl = 2 * t + u
            g = [(f"ds_read_b64 {v(fr(t,u,0),2)}, v{VA0} offset:{KVI + hl*760}", ("f", t, u)),
                 (f"ds_read_b64 {v(fr(t,u,1),2)}, v{VA1} offset:{KVI + hl*760}", ("f", t, u)),
                 "s_mov_b64 exec, 0xffff",
                 (f"ds_read_b64 {v(fr(t,u,0)+2,2)}, v{VA0} offset:{KVI + hl*760 + 32}", ("f", t, u)),
                 (f"ds_read_b64 {v(fr(t,u,1)+2,2)}, v{VA1} offset:{KVI + hl*760 + 32}", ("f", t, u)),
                 "s_mov_b64 exec, -1"]
            out.append(g)
            for rb in range(2):
                out.append([(f"ds_read_b64_tr_b16 {v(fr(t,u,2+rb),2)}, v{VB0} offset:{hl*1152 + 8*rb}", ("f", t, u)),
                            (f"ds_read_b64_tr_b16 {v(fr(t,u,2+rb)+2,2)}, v{VB1} offset:{hl*1152 + 8*rb}", ("f", t, u))])
        return out
    def emit(g):
        for x in g:
            if isinstance(x, tuple): sb.ds(*x)
            else: k(x)
    def omfma(t):
        for u in range(2):
            sb.needds(("f", t, u))
            for rb in range(2):
                for b in (1, 0):
                    k(f"{MF} {v(dd(u,rb,b),4)}, {v(fr(t,u,b),4)}, {v(fr(t,u,2+rb),4)}, 0")
    def ovalu(t):
        out = []
        P = [(u, rb) for u in range(2) for rb in range(2)]
        for (u, rb) in P: out.append(f"v_add_f32 v{dd(u,rb,1)+2}, s55, v{dd(u,rb,1)+2}")
        for (u, rb) in P: out.append(f"v_rcp_f32 v{dd(u,rb,1)+2}, v{dd(u,rb,1)+2}")
        for (u, rb) in P:
            for x in range(4): out.append(f"v_mul_f32 v{dd(u,rb,0)+x}, v{dd(u,rb,0)+x}, v{dd(u,rb,1)+2}")
            for x in range(2): out.append(f"v_mul_f32 v{dd(u,rb,1)+x}, v{dd(u,rb,1)+x}, v{dd(u,rb,1)+2}")
        for (u, rb) in P: out.append(f"v_cvt_pk_bf16_f32 v{dd(u,rb,1)}, v{dd(u,rb,1)}, v{dd(u,rb,1)+1}")
        for (u, rb) in P:
            for x in range(2): out.append(f"v_cvt_pk_bf16_f32 v{of(t,rb)+2*u+x}, v{dd(u,rb,0)+2*x}, v{dd(u,rb,0)+2*x+1}")
        for (u, rb) in P: out.append(f"v_mov_b32_dpp v{LF+2*rb+u}, v{dd(u,rb,1)} quad_perm:[0,1,2,3] row_mask:{1<<t} bank_mask:0xf")
        return out
    def gemm(t):
        out = []
        for cb in range(9):
            for rb in range(2):
                out.append(f"{MF} {v(acc(cb,rb),4)}, {v(of(t,rb),4)}, {a(wf(t,cb),4)}, {'0' if t == 0 else v(acc(cb,rb),4)}")
        return out
    k(f"s_mov_b32 s55, {fbits(1e-6)}")
    sb.needvm("pq")
    if stamps: stamp_mid(k, 1)
    for g in reads(0): emit(g)
    wload(3)
    for t in range(5):
        if t < 4:
            omfma(t)
            if t + 1 < 4:
                for g in reads(t + 1): emit(g); wload(1)
            else:
                wload(99)
            val = ovalu(t)
        else: val = []
        if t > 0:
            sb.needvm(("w", t - 1))
            gm = gemm(t - 1)
            body = weave(gm, val, 2 if val else 0, 18)
            k(body)
        else:
            k("s_nop 4"); k(val)
    if stamps: stamp_mid(k, 2)
    sb.needvm(("w", 4))
    order = [2, 3, 4, 5, 6, 7, 8, 0, 1]
    gm = [f"{MF16} {v(acc(cb,rb),4)}, {v(LF+2*rb,2)}, {a(wl(cb),2)}, {v(acc(cb,rb),4)}" for cb in order for rb in range(2)]
    wr = [f"ds_write_b128 v{VRW}, {v(acc(cb,rb),4)} offset:{((cb-2)*2+rb)*1024}" for cb in range(2, 9) for rb in range(2)]
    for i, m in enumerate(gm):
        k(m)
        if i >= 8: sb.ds(wr[i - 8], "rw")
    for w in wr[10:]: sb.ds(w, "rw")
    sb.drain("lgkmcnt")
    k("s_barrier")
    if stamps: stamp_mid(k, 3)
    G = FR
    for c in range(2):
        for u in range(2): sb.ds(f"ds_read_b64_tr_b16 {v(X+4*c+2*u,2)}, v{VXR} offset:{c*32 + u*4608}", ("x", c))
        for j in range(3):
            for rb in range(2): sb.ds(f"ds_read_b128 {v(G + ((c*3+j)*2+rb)*4,4)}, v{VRR+j} offset:{(c*2+rb)*1024}", ("g", c))
    S = DD; Q = DD + 8
    def finish(cb, gb, xr, first):
        a0 = acc(cb, 0)
        for x in range(0, 8, 2): k(f"v_pk_add_f32 {v(gb+x,2)}, {v(gb+x,2)}, {v(gb+8+x,2)}")
        for x in range(0, 8, 2): k(f"v_pk_add_f32 {v(a0+x,2)}, {v(a0+x,2)}, {v(gb+16+x,2)}")
        for x in range(4): k(f"v_lshlrev_b32 v{gb+8+2*x}, 16, v{xr+x}\nv_and_b32 v{gb+9+2*x}, 0xffff0000, v{xr+x}")
        for x in range(0, 8, 2): k(f"v_pk_add_f32 {v(a0+x,2)}, {v(a0+x,2)}, {v(gb+x,2)}")
        for x in range(0, 8, 2): k(f"v_pk_add_f32 {v(a0+x,2)}, {v(a0+x,2)}, {v(gb+8+x,2)}")
        for x in range(0, 8, 2):
            if first == 0: k(f"v_pk_mul_f32 {v(Q+x,2)}, {v(a0+x,2)}, {v(a0+x,2)}")
            else: k(f"v_pk_fma_f32 {v(Q+x,2)}, {v(a0+x,2)}, {v(a0+x,2)}, {v(Q+x,2)}")
        for x in range(0, 8, 2):
            if first == 1: k(f"v_pk_add_f32 {v(S+x,2)}, {v(a0+x,2)}, {v(acc(0,0)+x,2)}")
            elif first == 2: k(f"v_pk_add_f32 {v(S+x,2)}, {v(a0+x,2)}, {v(S+x,2)}")
    for c in range(2):
        sb.needds(("g", c))
        finish(c, G + c * 24, X + 4 * c, c)
    L8 = k.label("no8")
    k(f"s_cmp_lg_u32 s3, 0\ns_cbranch_scc1 {L8}")
    for u in range(2): k(f"ds_read_b64_tr_b16 {v(X+8+2*u,2)}, v{VXR} offset:{256 + u*4608}")
    for j in range(3):
        for rb in range(2): k(f"ds_read_b128 {v(G + (j*2+rb)*4,4)}, v{VL} offset:{(j+1)*16384 + (12+rb)*1024}")
    k("s_waitcnt lgkmcnt(0)")
    finish(8, G, X + 8, 2)
    k(f"{L8}:\ns_nop 1")
    R = DD + 16; TT = DD + 24
    for x in range(8):
        k(f"v_add_f32_dpp v{R+x}, v{S+x}, v{S+x} row_ror:8 row_mask:0xf bank_mask:0x3")
    for x in range(8):
        k(f"v_add_f32_dpp v{R+x}, v{Q+x}, v{Q+x} row_ror:8 row_mask:0xf bank_mask:0xc")
    for x in range(4):
        k(f"v_add_f32_dpp v{TT+x}, v{R+x}, v{R+x} row_half_mirror row_mask:0xf bank_mask:0x5")
    for x in range(4):
        k(f"v_add_f32_dpp v{TT+x}, v{R+4+x}, v{R+4+x} row_half_mirror row_mask:0xf bank_mask:0xa")
    for pm in ("[1,0,3,2]", "[2,3,0,1]"):
        for x in range(4): k(f"v_add_f32_dpp v{TT+x}, v{TT+x}, v{TT+x} quad_perm:{pm} row_mask:0xf bank_mask:0xf")
    k(f"ds_write_b128 v{VST}, {v(TT,4)}\ns_waitcnt lgkmcnt(0)\ns_barrier")
    LP = k.label("nopub")
    k(f"""
    s_lshl_b32 s42, s33, 10
    s_add_u32 s42, s42, {XCH_OFF - KVT_OFF}
    s_lshl_b32 s43, s34, 8
    s_add_u32 s43, s43, s42
    s_cmp_lg_u32 s3, 1
    s_cbranch_scc1 {LP}
    s_mov_b64 exec, 0xffff
    v_add_u32 v{T}, {ST}, v{VL}
    """)
    for w in range(4): k(f"ds_read_b128 {v(G+4*w,4)}, v{T} offset:{256*w}")
    k("s_waitcnt lgkmcnt(0)")
    for x in (0, 2): k(f"v_pk_add_f32 {v(G+x,2)}, {v(G+x,2)}, {v(G+4+x,2)}\nv_pk_add_f32 {v(G+8+x,2)}, {v(G+8+x,2)}, {v(G+12+x,2)}")
    for x in (0, 2): k(f"v_pk_add_f32 {v(G+x,2)}, {v(G+x,2)}, {v(G+8+x,2)}")
    k(f"""
    buffer_store_dwordx4 {v(G,4)}, v{VL}, s[12:15], s43 offen sc1
    s_mov_b64 exec, -1
    {LP}:
    """)
    if stamps: stamp_mid(k, 4)
    srd(k, 16, 10, 11, HL_SZ + HR_SZ, HL_OFF)
    k(f"""
    s_mul_i32 s44, s33, 36
    s_mul_i32 s45, s34, 9
    s_add_u32 s44, s44, s45
    s_lshl_b32 s44, s44, 10
    s_add_u32 s46, s44, 8192                   ; block 8
    s_lshl_b32 s45, s3, 11
    s_add_u32 s44, s44, s45
    s_add_u32 s45, s44, {HL_SZ}
    s_add_u32 s47, s46, {HL_SZ}
    buffer_load_dwordx4 {v(TT,4)}, v{VPL}, s[12:15], s42 offen sc1
    """)
    def cvst(cb, o, so, off):
        for x in range(4): k(f"v_cvt_pk_bf16_f32 v{o+x}, v{acc(cb,0)+2*x}, v{acc(cb,0)+2*x+1}")
        k(f"buffer_store_dwordx4 {v(o,4)}, v{VL}, s[16:19], s{so} offen offset:{off} {aux_o}".rstrip())
    H = G + 16
    cvst(0, H, 45, 0); cvst(1, H + 4, 45, 1024)
    L9 = k.label("no8b"); LS = k.label("spin"); LG = k.label("go")
    k(f"s_cmp_lg_u32 s3, 0\ns_cbranch_scc1 {L9}")
    cvst(8, H + 8, 47, 0)
    k(f"""
    {L9}:
    s_mov_b32 s48, 0
    s_waitcnt vmcnt(2)
    {LS}:
    v_max3_u32 v{T}, v{TT}, v{TT+1}, v{TT+2}
    v_max_u32 v{T}, v{T}, v{TT+3}
    v_cmp_eq_u32 vcc, -1, v{T}
    s_add_u32 s48, s48, 1
    s_cmp_eq_u64 vcc, 0
    s_cbranch_scc1 {LG}
    s_cmp_ge_u32 s48, 0x40000
    s_cbranch_scc1 {LG}
    buffer_load_dwordx4 {v(TT,4)}, v{VPL}, s[12:15], s42 offen sc1
    s_waitcnt vmcnt(0)
    s_branch {LS}
    {LG}:
    """)
    if stamps: stamp_mid(k, 5)
    for pm in ("[1,0,3,2]", "[2,3,0,1]"):
        for x in range(4): k(f"v_add_f32_dpp v{TT+x}, v{TT+x}, v{TT+x} quad_perm:{pm} row_mask:0xf bank_mask:0xf")
    k(f"s_mov_b32 s48, {fbits(1/576)}\ns_mov_b32 s49, {fbits(1e-5)}")
    for x in range(4): k(f"v_mul_f32 v{TT+x}, s48, v{TT+x}")
    k("s_nop 0")
    for x in range(4): k(f"v_mov_b32_dpp v{R+x}, v{TT+x} row_ror:12 row_mask:0xf bank_mask:0xf")
    for x in range(4): k(f"v_fma_f32 v{R+x}, -v{TT+x}, v{TT+x}, v{R+x}")
    for x in range(4): k(f"v_max_f32 v{R+x}, 0, v{R+x}")
    for x in range(4): k(f"v_add_f32 v{R+4+x}, s49, v{R+x}")
    for x in range(4): k(f"v_rsq_f32 v{R+4+x}, v{R+4+x}")
    for x in range(4): k(f"v_mul_f32 v{R+x}, v{R+x}, v{R+4+x}")
    for x in range(4): k(f"v_fma_f32 v{R+x}, v{R+x}, v{R+4+x}, s49")
    for x in range(4): k(f"v_rsq_f32 v{R+x}, v{R+x}")
    for x in range(4): k(f"v_mul_f32 v{R+x}, v{R+x}, v{R+4+x}")
    for x in range(4): k(f"v_mul_f32 v{R+4+x}, v{TT+x}, v{R+x}")
    for rb in range(2):
        for x in range(4): k(f"v_mov_b32_dpp v{S+4*rb+x}, v{R+x} row_newbcast:{8*rb} row_mask:0xf bank_mask:0xf")
        for x in range(4): k(f"v_mov_b32_dpp v{Q+4*rb+x}, v{R+4+x} row_newbcast:{8*rb} row_mask:0xf bank_mask:0xf")
    def norm(cb):
        for x in range(8): k(f"v_fma_f32 v{acc(cb,0)+x}, v{acc(cb,0)+x}, v{S+x}, -v{Q+x}")
    H2 = G + 32
    norm(0); cvst(0, H2, 44, 0); norm(1); cvst(1, H2 + 4, 44, 1024)
    LE = k.label("no8c")
    k(f"s_cmp_lg_u32 s3, 0\ns_cbranch_scc1 {LE}")
    norm(8); cvst(8, H2 + 8, 46, 0)
    k(f"{LE}:")
    if stamps: stamp_end(k, kidx)
    k(f"{END}:\ns_endpgm")
    return k, (name, (256, 1, 1), (256, 1, 1), ST + 1024)

if __name__ == "__main__":
    k, l = gen_k2(kidx=0, stamps=True)
    emit_file("k2.s", [l], [k])
```

```python
from asmlib import *
from layout import *
from k4 import weave_at, MF
import struct
def fbits(x): return struct.unpack("<I", struct.pack("<f", x))[0]

def gen_k3(name="k3_kernel", kidx=2, stamps=False, aux_w="", aux_h="", aux_o="", npf=0, D=6, D0=3, L=4, dbg=''):
    NS = 32; NB = 8
    k = K(name, vgpr=184, agpr=96)
    END = k.label("end")
    ACC = 56
    def acc(fb, db): return ACC + (fb * 3 + db) * 4
    BF = 152
    def bf(fb): return BF + fb * 4
    VH = 2
    VW = 4
    VT = 8
    BI = 16
    VU = 32
    VX = 38
    T0 = 40
    def abuf(n, db): return (n % NB) * 12 + db * 4
    nwg = 216 + npf
    k(f"s_cmp_ge_u32 s2, 216\ns_cbranch_scc1 {END}")
    if stamps: stamp_begin(k)
    k(f"""
    s_load_dwordx4 s[4:7], s[0:1], 32          ; w1, b1
    s_load_dwordx2 s[10:11], s[0:1], 80        ; ws
    v_lshrrev_b32 v40, 6, v0
    v_and_b32 v1, 63, v0                       ; lane
    s_and_b32 s33, s2, 7
    v_readfirstlane_b32 s3, v40                ; wave
    s_mul_i32 s33, s33, 27
    s_lshr_b32 s34, s2, 3
    s_add_u32 s33, s33, s34                    ; tau
    s_mul_i32 s34, s33, 171
    s_lshr_b32 s34, s34, 10
    s_mul_i32 s35, s34, 6
    s_sub_u32 s35, s33, s35                    ; dt
    s_lshr_b32 s36, s3, 1                      ; kh
    s_and_b32 s37, s3, 1                       ; mh
    v_lshlrev_b32 v{VH}, 4, v1
    v_lshrrev_b32 v40, 4, v1                   ; g = l>>4
    v_and_b32 v41, 15, v1                      ; i
    s_lshl_b32 s38, s37, 4
    v_add_u32 v42, s38, v40
    s_movk_i32 s39, 9216
    v_mul_u32_u24 v42, s39, v42
    v_lshlrev_b32 v43, 1, v40
    v_xor_b32 v43, v43, v41
    v_xor_b32 v44, 8, v43
    v_lshl_add_u32 v{VW}, v43, 4, v42
    v_lshl_add_u32 v{VW+1}, v44, 4, v42
    v_add_u32 v{VW+2}, {2*(4*9216-1024)}, v{VW}
    v_add_u32 v{VW+1}, {4*9216-1024}, v{VW+1}
    v_add_u32 v{VW+3}, {2*(4*9216-1024)}, v{VW+1}
    s_mul_i32 s40, s36, 36
    s_mul_i32 s41, s35, 6
    s_add_u32 s40, s40, s41
    s_mul_i32 s41, s37, 3
    s_add_u32 s40, s40, s41
    s_lshl_b32 s40, s40, 10
    s_mul_i32 s41, s36, {32*9216}
    s_lshl_b32 s42, s34, 8
    s_add_u32 s41, s41, s42                    ; s41 = w1 soffset
    s_lshl_b32 s42, s36, 16
    s_lshl_b32 s43, s37, 12
    s_add_u32 s43, s43, s42
    s_waitcnt lgkmcnt(0)
    """)
    srd(k, 12, 4, 5, 2048 * 9216)
    srd(k, 16, 10, 11, HL_SZ, HL_OFF)
    def dma(n):
        out = []
        for q in range(4):
            g = []
            if q == 0: g += [f"s_add_u32 m0, s43, {(n % NB) * 8192}", "s_nop 0"]
            g.append(f"buffer_load_dwordx4 v{VW+q}, s[12:15], s41 offen offset:{q*1024} {aux_w} lds")
            if q == 3 and 'same' not in dbg: g.append(f"s_add_u32 s41, s41, {64*9216}")
            out.append(g)
        return out
    def hld(n):
        out = []
        for db in range(3):
            g = [f"buffer_load_dwordx4 {a(abuf(n,db),4)}, v{VH}, s[16:19], s40 offen offset:{db*1024} {aux_h}".rstrip()]
            if db == 2 and 'same' not in dbg: g.append(f"s_add_u32 s40, s40, {72*1024}")
            out.append(g)
        return out
    for g in dma(0) + hld(0): k(g)
    srd(k, 20, 6, 7, 9216)
    srd(k, 24, 10, 11, U_SZ, U_OFF)
    k(f"""
    s_lshl_b32 s44, s34, 8
    s_lshl_b32 s45, s36, 7
    s_add_u32 s44, s44, s45
    v_lshlrev_b32 v42, 3, v40
    """)
    for j in range(4):
        k(f"buffer_load_dwordx2 {v(T0+8+2*j,2)}, v42, s[20:23], s44 offen offset:{32*j}")
    for n in range(1, D0):
        for g in dma(n) + hld(n): k(g)
    k(f"""
    v_bfe_u32 v42, v1, 2, 4                    ; row
    v_and_b32 v43, 7, v42
    v_and_b32 v44, 3, v1
    v_lshlrev_b32 v44, 3, v44
    v_lshl_add_u32 v44, v42, 8, v44
    v_add_u32 v44, s42, v44
    s_xor_b32 s45, s36, 1
    s_lshl_b32 s45, s45, 2
    v_xor_b32 v43, s45, v43
    """)
    for fb in range(8):
        k(f"v_xor_b32 v45, {fb}, v43\nv_lshl_add_u32 v{VT+fb}, v45, 5, v44")
    k(f"""
    s_mul_i32 s45, s35, 96
    s_mul_i32 s46, s37, 48
    s_add_u32 s45, s45, s46
    s_movk_i32 s46, 9216
    s_movk_i32 s47, 911
    s_lshl_b32 s48, s34, 1
    s_add_u32 s48, s48, s36
    s_mul_i32 s48, s48, {8*9216}               ; s48 = p*8*9216
    """)
    for db in range(3):
        k(f"""
        s_add_u32 s49, s45, {16*db}
        v_add_u32 v42, s49, v41                    ; d
        v_mul_u32_u24 v43, s47, v42
        v_lshrrev_b32 v43, 16, v43                 ; T = d/72
        v_mul_u32_u24 v44, 72, v43
        v_sub_u32 v44, v42, v44                    ; dl
        v_mul_u32_u24 v43, s46, v43                ; T*9216
        v_lshl_add_u32 v43, v40, 8, v43            ; + g*256
        v_lshrrev_b32 v45, 4, v44
        v_and_b32 v46, 15, v44
        v_lshlrev_b32 v46, 4, v46
        v_lshl_add_u32 v46, v45, 10, v46
        v_cmp_lt_u32 vcc, 63, v44
        v_add_u32 v46, v46, v43
        v_add_u32 v47, 4096, v46
        v_add_u32 v45, {4096+128}, v46
        v_cndmask_b32 v{VU+2*db}, v46, v47, vcc
        v_cndmask_b32 v{VU+2*db+1}, v47, v45, vcc
        """)
    k(f"""
    s_mul_i32 s45, s37, 12288
    s_add_u32 s46, s45, s42
    s_xor_b32 s47, s46, 0x10000
    v_add_u32 v{VX}, s46, v{VH}
    v_add_u32 v{VX+1}, s47, v{VH}
    """)
    def reads(t):
        n, fb = divmod(t, 8)
        return [f"ds_read_b64_tr_b16 {v(bf(fb)+2*u,2)}, v{VT+fb} offset:{(n%NB)*8192 + u*4096}" for u in range(2)]
    def mfmas(t):
        n, fb = divmod(t, 8)
        out = []
        for db in range(3):
            c = v(acc(fb, db), 4)
            if n == 0: c = "0" if fb < 4 else v(BI + 4 * (fb - 4), 4)
            out.append(f"{MF} {v(acc(fb,db),4)}, {v(bf(fb),4)}, {a(abuf(n,db),4)}, {c}")
        return out
    k(f"s_waitcnt vmcnt({7*(D0-1)})")
    for j in range(4):
        for r in range(2):
            k(f"v_lshlrev_b32 v{BI+4*j+2*r}, 16, v{T0+8+2*j+r}\nv_and_b32 v{BI+4*j+2*r+1}, 0xffff0000, v{T0+8+2*j+r}")
    k("s_barrier")
    if stamps: stamp_mid(k, 0)
    for t in range(L): k(reads(t))
    issued = [n for n in range(D0) for _ in range(7)]
    nxt = D0
    pend = []
    for t in range(NS * 8):
        n, fb = divmod(t, 8)
        pre = []
        left = min(L, NS * 8 - t)
        pre.append(f"s_waitcnt lgkmcnt({2*(left-1)})")
        side = []
        if fb == 8 - L and n + 1 < NS:
            cnt = sum(1 for x in issued if x > n + 1)
            assert all(st > n + 1 for st, _ in pend) and cnt < 64
            bar = [f"s_waitcnt vmcnt({cnt})"] + ([] if 'nobar' in dbg else ["s_barrier"])
            todo = 2 if nxt - n < D else 1
            for _ in range(todo):
                if nxt < NS and nxt - NB <= n - 1 and 'noload' not in dbg:
                    pend += [(nxt, g) for g in dma(nxt) + hld(nxt)]
                    nxt += 1
            per = -(-len(pend) // 8)
        else:
            bar = []
        m = mfmas(t)
        r = reads(t + L) if t + L < NS * 8 else []
        ld = []
        if pend:
            ld, pend = pend[:per], pend[per:]
            issued += [st for st, _ in ld]
        ld = [g for _, g in ld]
        if n == NS - 1 and fb >= 4:
            ld = [[f"ds_write_b128 v{VX}, {v(acc(fb-4,db),4)} offset:{((fb-4)*3+db)*1024}"] for db in range(3)]
            pre = [f"s_waitcnt lgkmcnt({2*(left-1) + 3*(fb-4)})"]
        k(pre)
        k(m[0]); k(bar); k(r[:1]);
        for g in ld[:1]: k(g)
        k(m[1]); k(r[1:])
        for g in ld[1:2]: k(g)
        k(m[2])
        for g in ld[2:]: k(g)
    if stamps: stamp_mid(k, 1)
    k("s_waitcnt lgkmcnt(0)\ns_barrier")
    for fb in range(4):
        for db in range(3):
            k(f"ds_read_b128 {v(acc(fb,db),4)}, v{VX+1} offset:{(fb*3+db)*1024}")
    c1 = -2.0 * 0.7978845608028654 * 1.4426950408889634
    k(f"""
    s_mov_b32 s50, {fbits(c1)}
    s_mov_b32 s51, {fbits(c1)}
    s_mov_b32 s52, {fbits(c1 * 0.044715)}
    s_mov_b32 s53, {fbits(c1 * 0.044715)}
    s_mov_b32 s54, 1.0
    s_mov_b32 s55, 1.0
    v_mov_b32 v{T0}, s50
    v_mov_b32 v{T0+1}, s50
    """)
    if stamps: stamp_mid(k, 2)
    order = [(m_, db) for m_ in range(2) for db in range(3)]
    for (m_, db) in order:
        k(f"s_waitcnt lgkmcnt({11 - ((2*m_+1)*3+db)})")
        xs = []
        for fb in (2 * m_, 2 * m_ + 1):
            for h in (0, 2):
                xs.append((acc(fb + 4, db) + h, acc(fb, db) + h))
        for (x, t) in xs: k(f"v_pk_add_f32 {v(x,2)}, {v(x,2)}, {v(t,2)}")
        for (x, t) in xs: k(f"v_pk_mul_f32 {v(t,2)}, {v(x,2)}, {v(x,2)}")
        for (x, t) in xs: k(f"v_pk_fma_f32 {v(t,2)}, {v(t,2)}, s[52:53], {v(T0,2)}")
        for (x, t) in xs: k(f"v_pk_mul_f32 {v(t,2)}, {v(t,2)}, {v(x,2)}")
        for (x, t) in xs: k(f"v_exp_f32 v{t}, v{t}\nv_exp_f32 v{t+1}, v{t+1}")
        for (x, t) in xs: k(f"v_pk_add_f32 {v(t,2)}, {v(t,2)}, s[54:55]")
        for (x, t) in xs: k(f"v_rcp_f32 v{t}, v{t}\nv_rcp_f32 v{t+1}, v{t+1}")
        for (x, t) in xs: k(f"v_pk_mul_f32 {v(x,2)}, {v(x,2)}, {v(t,2)}")
        o = acc(2 * m_, db)
        for i, (x, t) in enumerate(xs): k(f"v_cvt_pk_bf16_f32 v{o+i}, v{x}, v{x+1}")
        k(f"buffer_store_dwordx4 {v(o,4)}, v{VU+2*db+m_}, s[24:27], s48 offen {aux_o}".rstrip())
    if stamps: stamp_end(k, kidx)
    k(f"{END}:\ns_endpgm")
    return k, (name, (nwg, 1, 1), (256, 1, 1), 131072)

if __name__ == "__main__":
    k, l = gen_k3(kidx=0, stamps=True)
    emit_file("k3.s", [l], [k])
```

```python
from asmlib import *
from layout import *

MF = "v_mfma_f32_16x16x32_bf16"

def gen_k4(name="k4_kernel", kidx=3, stamps=False, aux_w="nt", aux_u="", aux_o="", waitpos=8):
    NB = 4
    NSTEP = 18
    k = K(name, vgpr=196, agpr=144)
    END = k.label("end")
    ACC = 40
    def acc(j, sb): return ACC + (j * 4 + sb) * 4
    BF = 136
    def bf(kk, sb): return BF + kk * 16 + sb * 4
    HRF = 168
    SEL = 188
    VB2 = 192
    VU = 2
    VW = 8
    VT = 16
    VE = 20
    VR = 24
    VO = 27
    T0 = 30
    def abuf(n, i): return (n % NB) * 36 + i * 4
    k(f"s_cmp_ge_u32 s2, 256\ns_cbranch_scc1 {END}")
    if stamps: stamp_begin(k)
    k(f"""
    s_load_dwordx4 s[4:7], s[0:1], 48          ; w2, b2
    s_load_dwordx2 s[8:9], s[0:1], 64          ; out
    s_load_dwordx2 s[10:11], s[0:1], 80        ; ws
    v_lshrrev_b32 v30, 6, v0
    v_and_b32 v1, 63, v0                       ; lane
    s_and_b32 s33, s2, 7
    v_readfirstlane_b32 s3, v30                ; wave
    s_lshr_b32 s34, s2, 3
    s_and_b32 s34, s34, 3
    s_lshl_b32 s33, s33, 2
    s_add_u32 s33, s33, s34                    ; st
    s_lshr_b32 s32, s2, 5                      ; T
    v_lshlrev_b32 v{VU}, 4, v1
    v_add_u32 v{VU+1}, 4096, v{VU}
    v_add_u32 v{VU+2}, 8192, v{VU}
    v_lshrrev_b32 v30, 4, v1                   ; g
    v_lshlrev_b32 v31, 1, v30
    v_and_b32 v32, 7, v1
    v_xor_b32 v31, v31, v32
    v_lshrrev_b32 v32, 3, v1
    v_lshlrev_b32 v32, 12, v32
    v_lshl_add_u32 v{VW}, v31, 4, v32
    """)
    for q in range(1, 8):
        k(f"v_add_u32 v{VW+q}, {q*32768 - (q%4)*1024}, v{VW}")
    k(f"""
    s_lshl_b32 s35, s3, 3
    s_add_u32 s35, s35, s32
    s_mul_i32 s35, s35, 9216                   ; s35 = U soffset
    s_lshl_b32 s36, s3, 18
    s_lshl_b32 s37, s33, 7
    s_add_u32 s36, s36, s37                    ; s36 = w2 soffset
    s_lshl_b32 s38, s3, 15
    s_waitcnt lgkmcnt(0)
    """)
    srd(k, 12, 4, 5, 4608 * 4096)
    srd(k, 16, 10, 11, U_SZ, U_OFF)
    def issue(n):
        ua = []
        for i in range(9):
            ua.append(f"buffer_load_dwordx4 {a(abuf(n,i),4)}, v{VU + i//4}, s[16:19], s35 offen offset:{(i%4)*1024} {aux_u}".rstrip())
        wd = []
        for q in range(8):
            g = []
            if q % 4 == 0:
                g.append(f"s_add_u32 m0, s38, {(n % NB) * 8192 + q * 1024}")
                g.append("s_nop 0")
            g.append(f"buffer_load_dwordx4 v{VW+q}, s[12:15], s36 offen offset:{(q%4)*1024} {aux_w} lds")
            wd.append(g)
        out = []
        for i in range(9):
            if i < 8: out.append(wd[i])
            out.append([ua[i]])
        out[-1] = out[-1] + ["s_add_u32 s35, s35, 294912", "s_add_u32 s36, s36, 1048576"]
        return out
    for g in issue(0): k(g)
    srd(k, 20, 10, 11, HR_SZ, HR_OFF)
    srd(k, 24, 6, 7, 4096)
    srd(k, 28, 8, 9, 2048 * 1152)
    k(f"""
    v_and_b32 v31, 15, v1                      ; i
    s_mul_i32 s39, s32, 72
    v_add_u32 v32, s39, v31                    ; d0 = 72T + i
    v_lshrrev_b32 v33, 4, v32
    v_and_b32 v32, 15, v32
    v_lshl_add_u32 v32, v30, 4, v32            ; (d&15) + 16 g
    v_lshlrev_b32 v32, 4, v32
    v_lshl_add_u32 v32, v33, 10, v32           ; + dblk*1024
    s_lshl_b32 s40, s33, 1
    s_lshr_b32 s41, s3, 1
    s_add_u32 s40, s40, s41
    s_mul_i32 s40, s40, 36864                  ; ks*36*1024
    v_add_u32 v33, 4096, v32
    """)
    for j in range(5):
        k(f"buffer_load_dwordx4 {v(HRF+4*j,4)}, v{32 + j//4}, s[20:23], s40 offen offset:{(j%4)*1024}")
    k(f"s_mov_b32 s42, {(1 << 32) // 9 + 1}\ns_lshl_b32 s43, s33, 6\ns_mul_i32 s44, s32, 144\ns_movk_i32 s45, 1152\ns_movk_i32 s46, 336")
    for r in range(3):
        k(f"""
        v_add_u32 v34, {256*r}, v0
        v_mul_hi_u32 v35, v34, s42                 ; row = c/9
        v_mul_u32_u24 v36, 9, v35
        v_sub_u32 v36, v34, v36                    ; q
        v_mul_u32_u24 v37, s46, v35
        v_lshl_add_u32 v{VR+r}, v36, 5, v37
        v_add_u32 v35, s43, v35
        v_mul_u32_u24 v37, s45, v35
        v_lshl_add_u32 v37, v36, 4, v37
        v_add_u32 v{VO+r}, s44, v37
        v_lshlrev_b32 v35, 1, v35
        buffer_load_ushort v{VB2+r}, v35, s[24:27], 0 offen
        """)
    for n in (1, 2):
        for g in issue(n): k(g)
    k(f"""
    v_bfe_u32 v34, v1, 2, 4                    ; 4g + r  (l>>2)&15
    v_bfe_u32 v35, v1, 3, 2                    ; (row>>1)&3
    v_and_b32 v36, 3, v1
    v_lshlrev_b32 v36, 3, v36
    v_lshl_add_u32 v36, v34, 7, v36
    v_add_u32 v36, s38, v36
    v_mul_u32_u24 v38, s46, v31                ; i*336
    v_lshl_add_u32 v38, v30, 4, v38            ; + g*16
    v_add_u32 v38, s38, v38
    """)
    for sb in range(4):
        k(f"""
        s_add_u32 s47, s3, {sb}
        s_and_b32 s47, s47, 3
        v_xor_b32 v37, s47, v35
        v_lshl_add_u32 v{VT+sb}, v37, 5, v36
        s_mul_i32 s47, s47, {16*336}
        v_add_u32 v{VE+sb}, s47, v38
        """)
    k(f"""
    v_lshrrev_b32 v34, 2, v31
    v_cmp_eq_u32 vcc, v34, v30
    v_and_b32 v35, 1, v31
    v_lshlrev_b32 v35, 4, v35
    v_mov_b32 v36, 0x3f80
    v_lshlrev_b32 v36, v35, v36
    v_cndmask_b32 v36, 0, v36, vcc
    v_bfe_u32 v35, v31, 1, 1
    s_and_b32 s47, s3, 1
    s_lshl_b32 s47, s47, 1
    v_add_u32 v35, s47, v35
    """)
    for r in range(4):
        k(f"v_cmp_eq_u32 vcc, {r}, v35\ns_nop 1\nv_cndmask_b32 v{SEL+r}, 0, v36, vcc")
    def reads(n, kk):
        out = []
        for sb in range(4):
            for u in range(2):
                out.append(f"ds_read_b64_tr_b16 {v(bf(kk,sb)+2*u,2)}, v{VT+sb} offset:{(n%NB)*8192 + kk*4096 + u*2048}")
        return out
    def mfmas(n, kk):
        out = []
        for sb in range(4):
            for j in range(5):
                jj = j if j < 4 else 4 + kk
                src = abuf(n, kk * 4 + j) if j < 4 else abuf(n, 8)
                first = (n == 0 and (kk == 0 or j == 4))
                c = "0" if first else v(acc(jj, sb), 4)
                out.append(f"{MF} {v(acc(jj,sb),4)}, {a(src,4)}, {v(bf(kk,sb),4)}, {c}")
        return out
    k("s_waitcnt vmcnt(34)")
    if stamps: stamp_mid(k, 0)
    k(reads(0, 0))
    for n in range(NSTEP):
        iss = issue(n + 3) if n + 3 < NSTEP else []
        k("s_waitcnt lgkmcnt(0)")
        m = mfmas(n, 0)
        r = reads(n, 1)
        body = weave(m, r, 0, 8)
        body = weave_at(body, m, iss[:9], 2, 20)
        k(body)
        if n == 0:
            for j in range(5):
                k(f"{MF} {v(acc(j,0),4)}, {v(HRF+4*j,4)}, {v(SEL,4)}, {v(acc(j,0),4)}")
        k("s_waitcnt lgkmcnt(0)")
        m = mfmas(n, 1)
        if n + 1 < NSTEP:
            pre = iss[9:9 + 3]
            cnt = (17 if n + 2 < NSTEP else 0) + (9 + len(pre) if iss else 0)
            r = reads(n + 1, 0)
            r[0] = [f"s_waitcnt vmcnt({cnt})", r[0]]
            body = weave(m, r, waitpos, waitpos + 6)
            body = weave_at(body, m, pre, 1, waitpos - 1)
            body = weave_at(body, m, iss[9 + 3:], waitpos + 2, 20)
        else:
            body = m
        k(body)
    if stamps: stamp_mid(k, 1)
    k("s_nop 7")
    for sb in range(4):
        for j in range(4):
            k(f"ds_write_b128 v{VE+sb}, {v(acc(j,sb),4)} offset:{64*j}")
        for r in range(4):
            k(f"v_permlane32_swap_b32 v{acc(5,sb)+r}, v{BF+sb*4+r}")
    k("s_nop 1")
    for sb in range(4):
        k(f"v_pk_add_f32 {v(acc(4,sb),2)}, {v(acc(4,sb),2)}, {v(BF+sb*4,2)}")
        k(f"v_pk_add_f32 {v(acc(4,sb)+2,2)}, {v(acc(4,sb)+2,2)}, {v(BF+sb*4+2,2)}")
        k(f"ds_write_b128 v{VE+sb}, {v(acc(4,sb),4)} offset:256")
    k("s_waitcnt lgkmcnt(0)\ns_barrier")
    if stamps: stamp_mid(k, 2)
    R0 = ACC
    def rd(r):
        out = []
        for w in range(4):
            base = f"v{VR+r}" if w < 2 else f"v{T0+r}"
            for h in range(2):
                out.append(f"ds_read_b128 {v(R0 + r*32 + w*8 + h*4, 4)}, {base} offset:{(w%2)*32768 + 16*h}")
        return out
    def fin(r):
        b = R0 + r * 32
        out = [f"v_lshlrev_b32 v{VB2+r}, 16, v{VB2+r}"]
        for x in range(0, 8, 2):
            out.append(f"v_pk_add_f32 {v(b+x,2)}, {v(b+x,2)}, {v(b+8+x,2)}")
            out.append(f"v_pk_add_f32 {v(b+16+x,2)}, {v(b+16+x,2)}, {v(b+24+x,2)}")
        for x in range(0, 8, 2):
            out.append(f"v_pk_add_f32 {v(b+x,2)}, {v(b+x,2)}, {v(b+16+x,2)}")
        for x in range(8):
            out.append(f"v_add_f32 v{b+x}, v{VB2+r}, v{b+x}")
        for x in range(4):
            out.append(f"v_cvt_pk_bf16_f32 v{b+8+x}, v{b+2*x}, v{b+2*x+1}")
        out.append(f"buffer_store_dwordx4 {v(b+8,4)}, v{VO+r}, s[28:31], 0 offen {aux_o}".rstrip())
        return out
    for r in range(3): k(f"v_add_u32 v{T0+r}, 65536, v{VR+r}")
    L2 = k.label("r2"); L3 = k.label("r3")
    k(f"s_cmp_lg_u32 s3, 0\ns_cbranch_scc1 {L2}")
    k(rd(2)); k("s_waitcnt lgkmcnt(0)"); k(fin(2))
    k(f"{L2}:")
    k(rd(0)); k(rd(1))
    k("s_waitcnt lgkmcnt(8)"); k(fin(0))
    k("s_waitcnt lgkmcnt(0)"); k(fin(1))
    if stamps: stamp_end(k, kidx)
    k(f"{END}:\ns_endpgm")
    return k, (name, (256, 1, 1), (256, 1, 1), 131072)

def weave_at(body, main, side, start, end):
    if not side: return body
    n = end - start; m = len(side)
    after = {}
    for i, it in enumerate(side):
        pos = min(start + (i * n) // m, len(main) - 1)
        after.setdefault(pos, []).append(it)
    out = []; mi = 0
    for ins in body:
        out.append(ins)
        if mi < len(main) and ins == main[mi]:
            for it in after.get(mi, []):
                out.extend(it if isinstance(it, (list, tuple)) else [it])
            mi += 1
    return out

if __name__ == "__main__":
    k, l = gen_k4(kidx=0, stamps=True)
    emit_file("k4.s", [l], [k])
```

```python
PQ_OFF  = 0x000000; PQ_SZ  = 2048 * 1152
HL_OFF  = 0x240000; HL_SZ  = 2048 * 1152
HR_OFF  = 0x480000; HR_SZ  = 2048 * 1152
U_OFF   = 0x6C0000; U_SZ   = 576 * 4608 * 2
KVT_OFF = 0xC00000; KVT_SZ = 32 * 19 * 20 * 4
XCH_OFF = 0xC10000; XCH_SZ = 64 * 4 * 256
WOF_OFF = 0xC20000; WOF_SZ = 16 * 41 * 1024
FLG_OFF = 0xD00000; FLG_SZ = 256 * 128
XQ_OFF  = 0x1000000; XQ_SZ = 64 * 4 * 3 * 9216
```

```python
import sys
from asmlib import *
from k1 import gen_k1 as gen_k1o
from k1n import gen_k1 as gen_k1n
def gen_k1(new=False, **kw): return (gen_k1n if new else gen_k1o)(**kw)
from k2 import gen_k2
from k3 import gen_k3
from k4e import gen_k4
from hazchk import check
def header():
    L = open("cdna_kernels/" + NAME + ".s.ref").read().split("\n")
    out = []
    for l in L:
        if l.startswith("; @launch"): break
        out.append(l)
    return "\n".join(out) + "\n"
def build(path, stamps=False, k1={}, k2={}, k3={}, k4={}, extra=()):
    ks = [gen_k1(kidx=0, stamps=stamps, **k1), gen_k2(kidx=1, stamps=stamps, **k2),
          gen_k3(kidx=2, stamps=stamps, **{**dict(D=4), **k3}), gen_k4(kidx=3, stamps=stamps, **k4)]
    ks += list(extra)
    emit_file(path, [l for _, l in ks], [k for k, _ in ks], header())
    check(path)
if __name__ == "__main__":
    build("full.s"); build("full_st.s", stamps=True)
    import shutil; shutil.copy("full.s", "cdna_kernels/" + NAME + ".s")
```

```python
NAME = "sequential_preLN__linear_attn_block__mixer_token_mlp__prompt"
STAMP = 200 << 20

class K:
    def __init__(self, name, vgpr=256, agpr=0, sgpr=102):
        self.name = name; self.lines = []; self.vgpr = vgpr; self.agpr = agpr; self.sgpr = sgpr
        self.nlab = 0
        self.tag = name.replace("_kernel", "")[-10:]
    def __call__(self, s):
        if isinstance(s, (list, tuple)):
            for x in s: self(x)
            return
        for l in s.strip("\n").split("\n"):
            l = l.strip()
            if not l: continue
            self.lines.append(l if l.endswith(":") else "    " + l)
    def label(self, base="L"):
        self.nlab += 1
        return f"L{self.tag}_{base}{self.nlab}"
    def text(self):
        s = f".text\n.globl {self.name}\n.p2align 8\n.type {self.name},@function\n{self.name}:\n"
        s += "\n".join(self.lines) + "\n"
        return s
    def desc(self):
        acc = (self.vgpr + 3) // 4 * 4
        nfv = acc + self.agpr if self.agpr else self.vgpr
        s = f""".amdhsa_kernel {self.name}
  .amdhsa_next_free_vgpr {nfv}
  .amdhsa_next_free_sgpr {self.sgpr}
  .amdhsa_accum_offset {acc}
  .amdhsa_group_segment_fixed_size 0
  .amdhsa_kernarg_size 88
  .amdhsa_user_sgpr_count 2
  .amdhsa_user_sgpr_kernarg_segment_ptr 1
  .amdhsa_system_sgpr_workgroup_id_x 1
  .amdhsa_float_denorm_mode_32 3
.end_amdhsa_kernel
"""
        return s

def emit_file(path, launches, kernels, header=""):
    s = header
    for (n, g, b, l) in launches:
        s += f"; @launch kernel={n} grid=({g[0]},{g[1]},{g[2]}) block=({b[0]},{b[1]},{b[2]}) lds={l}\n"
    s += '.amdgcn_target "amdgcn-amd-amdhsa--gfx950"\n'
    for k in kernels: s += k.text()
    s += '.section .rodata,"a"\n'
    for k in kernels: s += ".p2align 6\n" + k.desc()
    open(path, "w").write(s)

def v(a, n=1): return f"v{a}" if n == 1 else f"v[{a}:{a+n-1}]"
def a(x, n=1): return f"a{x}" if n == 1 else f"a[{x}:{x+n-1}]"
def s(x, n=1): return f"s{x}" if n == 1 else f"s[{x}:{x+n-1}]"

def weave(main, side, start=0, end=None):
    end = len(main) if end is None else end
    n = end - start
    out = []
    slots = [[] for _ in main]
    m = len(side)
    for i, it in enumerate(side):
        pos = start + (i * n) // m if m else start
        slots[pos].append(it)
    for ins, sl in zip(main, slots):
        out.append(ins)
        for it in sl:
            out.extend(it if isinstance(it, (list, tuple)) else [it])
    return out

def srd(k, r, lo, hi, size, add=0):
    if add:
        k(f"s_add_u32 s{r}, s{lo}, {add}\ns_addc_u32 s{r+1}, s{hi}, 0")
    else:
        k(f"s_mov_b32 s{r}, s{lo}\ns_mov_b32 s{r+1}, s{hi}")
    k(f"s_mov_b32 s{r+2}, {size}\ns_mov_b32 s{r+3}, 0x20000")

def stamp_begin(k):
    k("s_memrealtime s[90:91]\ns_memtime s[92:93]")
def stamp_mid(k, i):
    k(f"s_memtime s[{70+2*i}:{71+2*i}]")
def stamp_end(k, kidx):
    L = k.label("nost")
    k(f"""
    s_waitcnt vmcnt(0)
    s_memrealtime s[94:95]
    s_memtime s[96:97]
    s_load_dwordx2 s[84:85], s[0:1], 80
    s_waitcnt lgkmcnt(0)
    s_add_u32 s84, s84, {STAMP + kidx * 65536}
    s_addc_u32 s85, s85, 0
    s_lshl_b32 s86, s2, 6
    s_mov_b64 exec, -1
    v_mov_b32 v1, s86
    v_mov_b32 v4, s90
    v_mov_b32 v5, s91
    v_mov_b32 v6, s94
    v_mov_b32 v7, s95
    v_mov_b32 v8, s92
    v_mov_b32 v9, s93
    v_mov_b32 v10, s96
    v_mov_b32 v11, s97
    v_mov_b32 v12, s70
    v_mov_b32 v13, s72
    v_mov_b32 v14, s74
    v_mov_b32 v15, s76
    v_mov_b32 v16, s78
    v_mov_b32 v17, s80
    v_mov_b32 v18, s82
    v_mov_b32 v19, s92
    v_cmp_eq_u32 vcc, 0, v0
    s_and_saveexec_b64 s[88:89], vcc
    s_cbranch_execz {L}
    global_store_dwordx4 v1, v[4:7], s[84:85]
    global_store_dwordx4 v1, v[8:11], s[84:85] offset:16
    global_store_dwordx4 v1, v[12:15], s[84:85] offset:32
    global_store_dwordx4 v1, v[16:19], s[84:85] offset:48
    {L}:
    """)

class SB:
    def __init__(self, k):
        self.k = k
        self.q = {"lgkmcnt": [], "vmcnt": []}
        self.done = {"lgkmcnt": 0, "vmcnt": 0}
        self.mx = {"lgkmcnt": 15, "vmcnt": 63}
    def op(self, c, ins, tag=None):
        self.k(ins); self.q[c].append(tag)
    def ds(self, ins, tag=None): self.op("lgkmcnt", ins, tag)
    def vm(self, ins, tag=None): self.op("vmcnt", ins, tag)
    def need(self, c, pred):
        q = self.q[c]
        last = -1
        for i in range(len(q) - 1, -1, -1):
            if pred(q[i]): last = i; break
        if last < self.done[c]: return
        n = min(len(q) - 1 - last, self.mx[c])
        self.k(f"s_waitcnt {c}({n})")
        self.done[c] = len(q) - n
    def needds(self, *tags): self.need("lgkmcnt", lambda t: t in tags)
    def needvm(self, *tags): self.need("vmcnt", lambda t: t in tags)
    def drain(self, c):
        if self.done[c] < len(self.q[c]):
            self.k(f"s_waitcnt {c}(0)"); self.done[c] = len(self.q[c])

import struct
def fbits(x): return struct.unpack("<I", struct.pack("<f", x))[0]
MF = "v_mfma_f32_16x16x32_bf16"

def pf_addr_w1(k, vt, vout, slam, sx):
    k(f"""
    v_add_u32 v{vt}, s{slam}, v1
    v_mul_hi_u32 v{vt+1}, v{vt}, s98
    v_mul_u32_u24 v{vt+1}, s99, v{vt+1}
    v_lshl_add_u32 v{vout}, v{vt}, 7, v{vt+1}
    """)
def helper_wave(k, what, plan, aux="", wgx="s_and_b32 s33, s2, 7", wgi="s_lshr_b32 s34, s2, 3", nwg=32, m0=0):
    off = {"w1": 32, "w2": 48}[what]
    k(f"""
    s_load_dwordx2 s[4:5], s[0:1], {off}
    v_and_b32 v1, 63, v0
    {wgx}
    {wgi}
    s_mov_b32 s98, {(1 << 32) // 9 + 1}
    s_movk_i32 s99, {9216 - 9 * 128}
    s_lshl_b32 s34, s34, 6
    s_mul_i32 s33, s33, {1152 if what == "w1" else 512}
    s_add_u32 s34, s34, {m0 * nwg * 64}
    v_lshrrev_b32 v2, 2, v1
    v_and_b32 v3, 3, v1
    v_lshlrev_b32 v3, 7, v3
    v_lshl_add_u32 v3, v2, 12, v3
    s_waitcnt lgkmcnt(0)
    """)
    srd(k, 12, 4, 5, 2048 * 9216)
    if what == "w2": k("s_lshl_b32 s34, s34, 10\ns_add_u32 s33, s33, s34")
    n = 0
    for i, c in enumerate(plan):
        for _ in range(c):
            if what == "w1":
                pf_addr_w1(k, 4, 6 + n % 2, 34, 33)
                k(f"buffer_load_dword v8, v{6 + n % 2}, s[12:15], s33 offen {aux}\ns_add_u32 s34, s34, {nwg*64}")
            else:
                k(f"buffer_load_dword v8, v3, s[12:15], s33 offen {aux}\ns_add_u32 s33, s33, {nwg * 65536}")
            n += 1
        if any(plan[i + 1:]): k("s_barrier")
    k("s_endpgm")
```

```python
from asmlib import *
from layout import *

def gen_k1(name="k1_kernel", kidx=0, stamps=False, aux_x="", aux_w="", aux_o="", L=4, dbg="", pf=None, pfaux=""):
    NS = 9; NB = 4
    k = K(name, vgpr=232)
    sb = SB(k)
    END = k.label("end")
    VX = 2; VW = 6; VA = 10; VB = 12; ONE = 26
    ACC = 32
    def acc(j, rb): return ACC + (j * 2 + rb) * 4
    AQ = 88; AC = 96
    AF = 124
    def af(h, rb): return AF + (h * 2 + rb) * 4
    BF = 140
    def bf(j): return BF + 4 * j
    GA = 168; GO = 171; VP = 174; VF = 177; VCS = 178; VBP = 179; VEPS = 180; VRD = 181; VT = 182
    T = 184
    XB = 65536; TB = 131072; CS = TB + 4096
    k(f"s_cmp_ge_u32 s2, 256\ns_cbranch_scc1 {END}")
    HELP = k.label("help")
    if pf: k(f"v_readfirstlane_b32 s3, v0\ns_cmp_ge_u32 s3, 256\ns_cbranch_scc1 {HELP}")
    if stamps: stamp_begin(k)
    k(f"""
    s_load_dwordx4 s[4:7], s[0:1], 0           ; x, wqkv
    s_load_dwordx2 s[8:9], s[0:1], 16          ; wo
    s_load_dwordx4 s[28:31], s[0:1], 72
    v_lshrrev_b32 v{T}, 6, v0
    v_and_b32 v1, 63, v0                       ; lane
    s_and_b32 s33, s2, 7
    v_readfirstlane_b32 s3, v{T}               ; wave
    s_lshl_b32 s33, s33, 1
    s_bfe_u32 s34, s2, 0x10003
    s_add_u32 s33, s33, s34                    ; rt
    s_lshr_b32 s34, s2, 4                      ; hp
    v_lshrrev_b32 v{T}, 4, v1                  ; g
    v_and_b32 v{T+1}, 15, v1                   ; i
    v_lshrrev_b32 v{T+2}, 3, v1
    s_movk_i32 s35, 1152
    v_mul_u32_u24 v{T+2}, s35, v{T+2}
    v_and_b32 v{T+3}, 7, v1
    v_xor_b32 v{T+3}, v{T+3}, v{T}
    v_xor_b32 v{T+4}, 4, v{T+3}
    v_lshl_add_u32 v{VX}, v{T+3}, 4, v{T+2}
    v_lshl_add_u32 v{VX+1}, v{T+4}, 4, v{T+2}
    v_add_u32 v{VX+2}, {2*(8*1152-1024)}, v{VX}
    v_add_u32 v{VX+1}, {8*1152-1024}, v{VX+1}
    v_add_u32 v{VX+3}, {2*(8*1152-1024)}, v{VX+1}
    s_movk_i32 s35, 3456
    v_mul_u32_u24 v{T+2}, s35, v{T}            ; (l>>4)*3456
    v_lshlrev_b32 v{T+3}, 1, v{T}
    v_sub_u32 v{T+3}, v{T+1}, v{T+3}
    """)
    for par in range(2):
        k(f"""
        v_add_u32 v{T+4}, {16 - 8*par}, v{T+3}
        v_and_b32 v{T+4}, 15, v{T+4}               ; chunk
        v_mov_b32 v{T+5}, {2304 - 8 - 176}
        v_mov_b32 v{T+6}, -80
        v_cmp_gt_u32 vcc, 10, v{T+4}
        v_mov_b32 v{T+7}, {1152 - 8}
        v_lshl_add_u32 v{T+8}, v{T+4}, 4, v{T+2}
        v_cndmask_b32 v{T+5}, v{T+5}, v{T+6}, vcc
        v_cmp_gt_u32 vcc, 5, v{T+4}
        v_add_u32 v{T+8}, {par * (8*3456 - 1024)}, v{T+8}
        s_nop 0
        v_cndmask_b32 v{T+5}, v{T+5}, v{T+7}, vcc
        v_add_u32 v{VW+par}, v{T+5}, v{T+8}
        v_add_u32 v{VW+2+par}, {4*3456 - 2048}, v{VW+par}
        """)
    def lanes(*ls): return sum(1 << x for x in ls)
    mE = ~lanes(10, 28, 46, 48) & (2**64 - 1); mO = ~lanes(2, 20, 38, 56) & (2**64 - 1)
    k(f"""
    s_mov_b32 s50, {mE & 0xffffffff}
    s_mov_b32 s51, {mE >> 32}
    s_mov_b32 s52, {mO & 0xffffffff}
    s_mov_b32 s53, {mO >> 32}
    s_lshl_b32 s36, s33, 2
    s_add_u32 s36, s36, s3                     ; rt32
    s_mul_i32 s40, s36, {32*1152}              ; s40 = x soffset
    s_mul_i32 s41, s3, {16*3456}
    s_mul_i32 s37, s34, 72
    s_add_u32 s41, s41, s37                    ; s41 = w soffset
    s_lshl_b32 s42, s3, 12
    s_lshl_b32 s43, s3, 14
    s_add_u32 s43, s43, {XB}
    v_mov_b32 v{ONE}, 0x3f803f80
    v_mov_b32 v{ONE+1}, 0x3f803f80
    v_mov_b32 v{ONE+2}, 0x3f803f80
    v_mov_b32 v{ONE+3}, 0x3f803f80
    v_and_b32 v{T+4}, 7, v0
    v_lshl_add_u32 v{T+4}, v{T+4}, 1, 10
    v_and_b32 v{T+4}, 15, v{T+4}
    v_lshlrev_b32 v{T+4}, 4, v{T+4}
    v_lshl_add_u32 v{T+4}, v0, 8, v{T+4}
    """)
    sb.ds(f"ds_write_b128 v{T+4}, {v(ONE,4)}", "ones")
    k("s_waitcnt lgkmcnt(0)"); sb.done["lgkmcnt"] = 1
    srd(k, 12, 4, 5, 2048 * 1152)
    srd(k, 16, 6, 7, 576 * 3456)
    srd(k, 20, 30, 31, KVT_SZ, KVT_OFF)
    LZ = k.label("noz")
    k(f"""
    s_mul_i32 s44, s34, 3040
    s_cmp_lg_u32 s33, 0
    s_cbranch_scc1 {LZ}
    v_mov_b32 v{T+8}, 0
    v_mov_b32 v{T+9}, 0
    v_mov_b32 v{T+10}, 0
    v_mov_b32 v{T+11}, 0
    v_lshlrev_b32 v{T+4}, 4, v0
    v_cmp_gt_u32 vcc, 190, v0
    v_mov_b32 v{T+5}, 0x40000000
    s_nop 0
    v_cndmask_b32 v{T+4}, v{T+5}, v{T+4}, vcc
    buffer_store_dwordx4 {v(T+8,4)}, v{T+4}, s[20:23], s44 offen sc1
    {LZ}:
    """)
    def issue(n):
        out = []
        g = [f"s_add_u32 m0, s42, {(n % NB) * 16384}", "s_mov_b64 exec, s[50:51]"]
        for q in (0, 2):
            g.append(("vm", f"buffer_load_dwordx4 v{VW+q}, s[16:19], s41 offen offset:{q*1024} {aux_w} lds"))
        g.append("s_mov_b64 exec, -1")
        out.append(g)
        g = ["s_mov_b64 exec, s[52:53]"]
        for q in (1, 3):
            g.append(("vm", f"buffer_load_dwordx4 v{VW+q}, s[16:19], s41 offen offset:{q*1024} {aux_w} lds"))
        g += ["s_mov_b64 exec, -1", f"s_add_u32 s41, s41, {64*3456}"]
        out.append(g)
        for q in range(4):
            g = []
            if q == 0: g += [f"s_add_u32 m0, s43, {(n % NB) * 4096}", "s_nop 0"]
            g.append(("vm", f"buffer_load_dwordx4 v{VX+q}, s[12:15], s40 offen offset:{q*1024} {aux_x} lds"))
            if q == 3: g.append("s_add_u32 s40, s40, 128")
            out.append(g)
        return out
    def emit(g, tag):
        for x in g:
            if isinstance(x, tuple): sb.vm(x[1], tag)
            else: k(x)
    for g in issue(0): emit(g, 0)
    LT = k.label("notask"); LC = k.label("noclr")
    srd(k, 24, 8, 9, 576 * 1152)
    k(f"""
    s_cmp_eq_u32 s3, 3
    s_cselect_b32 s45, s2, 255
    s_cmp_ge_u32 s45, 180
    s_cbranch_scc1 {LT}
    s_mul_i32 s46, s45, 57
    s_lshr_b32 s46, s46, 9
    s_mul_i32 s47, s46, 9
    s_sub_u32 s47, s45, s47                    ; cq
    s_mul_i32 s48, s46, 52
    s_lshr_b32 s48, s48, 8                     ; w' = wt / 5
    s_mul_i32 s49, s48, 5
    s_sub_u32 s49, s46, s49                    ; t
    v_lshrrev_b32 v{T+4}, 3, v1                ; b = l>>3
    v_lshrrev_b32 v{T+5}, 1, v{T+4}
    v_mul_u32_u24 v{T+5}, 18, v{T+5}
    v_and_b32 v{T+6}, 1, v{T+4}
    v_add3_u32 v{T+5}, v{T+5}, v{T+6}, 16
    s_mov_b32 s54, {8*1152-1024}
    s_mov_b32 s55, {18*1152-2048}
    s_mov_b32 s56, {26*1152-3072}
    s_cmp_eq_u32 s49, 4
    s_cselect_b64 vcc, -1, 0
    s_cmov_b32 s54, {72*1152-1024}
    s_cselect_b32 s57, 0, s49
    v_cndmask_b32 v{T+4}, v{T+4}, v{T+5}, vcc
    s_movk_i32 s58, 1152
    v_mul_u32_u24 v{T+4}, s58, v{T+4}
    v_and_b32 v{T+5}, 7, v1
    v_lshl_add_u32 v{T+4}, v{T+5}, 4, v{T+4}
    s_mul_i32 s58, s48, 144
    s_mul_i32 s57, s57, 36
    s_add_u32 s58, s58, s57
    s_mul_i32 s58, s58, 1152
    s_lshl_b32 s57, s47, 7
    s_add_u32 s58, s58, s57
    s_add_u32 s54, s54, s58
    s_add_u32 s55, s55, s58
    s_add_u32 s56, s56, s58
    s_mov_b32 m0, {TB}
    s_nop 0
    buffer_load_dwordx4 v{T+4}, s[24:27], s58 offen offset:0 lds
    buffer_load_dwordx4 v{T+4}, s[24:27], s54 offen offset:1024 lds
    buffer_load_dwordx4 v{T+4}, s[24:27], s55 offen offset:2048 lds
    buffer_load_dwordx4 v{T+4}, s[24:27], s56 offen offset:3072 lds
    {LT}:
    """)
    srd(k, 24, 30, 31, XCH_SZ, XCH_OFF)
    k(f"""
    s_cmp_lg_u32 s3, 2
    s_cbranch_scc1 {LC}
    v_mov_b32 v{T+8}, -1
    v_lshlrev_b32 v{T+4}, 2, v1
    s_lshl_b32 s46, s2, 8
    buffer_store_dword v{T+8}, v{T+4}, s[24:27], s46 offen
    {LC}:
    """)
    for g in issue(1): emit(g, 1)
    k(f"""
    s_and_b32 s37, s3, 1                       ; parity
    v_lshrrev_b32 v{T+2}, 1, v{T+1}
    v_xor_b32 v{T+2}, v{T+2}, v{T}
    s_lshl_b32 s38, s37, 2
    v_xor_b32 v{T+2}, s38, v{T+2}
    v_lshlrev_b32 v{T+2}, 4, v{T+2}
    v_lshl_add_u32 v{T+2}, v{T+1}, 7, v{T+2}
    v_add_u32 v{VA}, s43, v{T+2}
    v_xor_b32 v{VA+1}, 64, v{VA}
    v_bfe_u32 v{T+2}, v1, 2, 3                 ; rho = 4(g&1)+r
    v_lshrrev_b32 v{T+3}, 5, v1
    v_lshl_add_u32 v{T+3}, v{T+3}, 4, v{T+2}   ; pi0
    v_lshlrev_b32 v{T+3}, 8, v{T+3}
    s_lshl_b32 s38, s37, 13
    v_add_u32 v{T+3}, s38, v{T+3}
    v_and_b32 v{T+4}, 3, v1                    ; c
    v_lshl_add_u32 v{T+5}, v{T+2}, 2, v{T+4}   ; c + 4 rho
    v_cmp_eq_u32 s[54:55], 0, v{T+4}
    v_cmp_eq_u32 s[56:57], 3, v{T+4}
    """)
    for j in range(7):
        base = [0, 4, 8, 12, 16, 24, 28][j]
        if j == 0: k(f"v_add_u32 v{T+6}, 20, v{T+5}\nv_cndmask_b32 v{T+6}, v{T+5}, v{T+6}, s[54:55]")
        elif j == 4: k(f"v_add_u32 v{T+6}, 16, v{T+5}\nv_add_u32 v{T+7}, 20, v{T+5}\nv_cndmask_b32 v{T+6}, v{T+6}, v{T+7}, s[56:57]")
        else: k(f"v_add_u32 v{T+6}, {base}, v{T+5}")
        k(f"""
        v_and_b32 v{T+6}, 31, v{T+6}
        v_lshl_add_u32 v{VB+j}, v{T+6}, 3, v{T+3}
        v_xor_b32 v{VB+7+j}, 0x2000, v{VB+j}
        """)
    k(f"""
    s_mul_i32 s38, s34, 36
    s_mul_i32 s39, s36, 576
    s_add_u32 s38, s38, s39
    s_lshl_b32 s59, s38, 6
    v_lshlrev_b32 v{T+2}, 6, v{T+1}
    v_lshl_add_u32 v{T+2}, v{T}, 4, v{T+2}     ; i*64 + g*16
    v_mov_b32 v{T+3}, 0x40000000
    v_cmp_lt_u32 vcc, 7, v{T+1}
    v_add_u32 v{T+4}, -512, v{T+2}
    v_add_u32 v{VP+1}, 512, v{T+2}
    v_cndmask_b32 v{VP}, v{T+3}, v{T+4}, vcc
    v_cmp_gt_u32 s[60:61], 12, v{T+1}
    v_add_u32 v{T+4}, {24*64}, v{T+2}
    v_mov_b32 v{T+5}, {fbits(1e-6)}
    v_cndmask_b32 v{VP+2}, v{T+3}, v{T+4}, s[60:61]
    v_cndmask_b32 v{VEPS}, 0, v{T+5}, s[60:61]
    s_lshl_b32 s38, s3, 9
    s_add_u32 s38, s38, {CS}
    v_lshl_add_u32 v{VCS}, v{T+1}, 2, s38
    v_and_b32 v{T+2}, 48, v1
    v_lshl_add_u32 v{T+2}, v{T}, 2, v{T+2}
    v_lshlrev_b32 v{VBP}, 2, v{T+2}
    s_lshl_b32 s38, s3, 13
    v_lshl_add_u32 v{VRD}, v1, 4, s38
    s_lshl_b32 s38, s34, 2
    v_mov_b32 v{VF}, s38
    s_movk_i32 s38, 3277
    s_movk_i32 s39, 380
    """)
    for m in range(3):
        k(f"""
        v_add_u32 v{T+2}, {256*m}, v0              ; idx
        v_cmp_le_u32 vcc, s39, v{T+2}
        v_lshlrev_b32 v{T+8}, 2, v{T+2}
        v_subrev_u32 v{T+4}, s39, v{T+2}
        v_cndmask_b32 v{T+4}, v{T+2}, v{T+4}, vcc  ; rem = e*20+d
        v_cndmask_b32 v{T+5}, 0, 18, vcc           ; 18 hh
        v_mul_u32_u24 v{T+6}, s38, v{T+4}
        v_lshrrev_b32 v{T+6}, 16, v{T+6}           ; e
        v_mul_u32_u24 v{T+7}, 20, v{T+6}
        v_sub_u32 v{T+7}, v{T+4}, v{T+7}           ; d
        v_cmp_gt_u32 s[54:55], 18, v{T+7}
        v_cmp_gt_u32 s[56:57], 19, v{T+6}
        v_cmp_gt_u32 vcc, 18, v{T+6}
        v_add3_u32 v{T+7}, v{T+7}, v{T+5}, 4       ; kappa + 4
        v_add3_u32 v{T+6}, v{T+6}, v{T+5}, 12      ; nu + 12
        s_and_b64 s[54:55], s[54:55], s[56:57]
        v_cndmask_b32 v{T+6}, 0, v{T+6}, vcc
        v_cndmask_b32 v{GO+m}, v{T+3}, v{T+8}, s[54:55]
        v_lshrrev_b32 v{T+8}, 4, v{T+6}            ; vb
        v_lshrrev_b32 v{T+9}, 5, v{T+6}            ; vb==2
        v_mul_u32_u24 v{T+8}, 3, v{T+8}
        v_sub_u32 v{T+8}, v{T+8}, v{T+9}
        v_lshrrev_b32 v{T+9}, 4, v{T+7}
        v_add_u32 v{T+8}, v{T+8}, v{T+9}           ; blk
        v_and_b32 v{T+7}, 15, v{T+7}
        v_lshlrev_b32 v{T+7}, 4, v{T+7}
        v_lshl_add_u32 v{T+8}, v{T+8}, 10, v{T+7}
        v_bfe_u32 v{T+9}, v{T+6}, 2, 2
        v_lshl_add_u32 v{T+8}, v{T+9}, 8, v{T+8}
        v_and_b32 v{T+9}, 3, v{T+6}
        v_lshl_add_u32 v{T+8}, v{T+9}, 2, v{T+8}
        v_cndmask_b32 v{GA+m}, 0, v{T+8}, s[54:55]
        """)
    NI = NS * 14
    def rdB(t):
        n, r = divmod(t, 14); h, j = divmod(r, 7)
        return [(f"ds_read_b64_tr_b16 {v(bf(j)+2*u,2)}, v{VB+7*h+j} offset:{(n%NB)*16384 + u*2048}", ("B", t)) for u in range(2)]
    def rdA(hh):
        n, h = divmod(hh, 2)
        return [(f"ds_read_b128 {v(af(h,rb),4)}, v{VA+h} offset:{(n%NB)*4096 + rb*2048}", ("A", hh)) for rb in range(2)]
    sb.needvm(0)
    k("s_barrier")
    LF = k.label("nof")
    k(f"""
    s_or_b32 s38, s33, s3
    s_cmp_lg_u32 s38, 0
    s_cbranch_scc1 {LF}
    v_mov_b32 v{T+2}, 1
    global_store_dword v{VF}, v{T+2}, s[28:29] sc1
    {LF}:
    """)
    if stamps: stamp_mid(k, 0)
    for x in rdA(0): sb.ds(*x)
    for t in range(L):
        for x in rdB(t): sb.ds(*x)
    pend = [(n, g) for n in (2, 3) for g in issue(n)]
    nxt = 4
    for t in range(NI):
        n, r = divmod(t, 14); h, j = divmod(r, 7); hh = 2 * n + h
        m = []
        for rb in range(2):
            c = "0" if hh == 0 else v(acc(j, rb), 4)
            m.append(f"{MF} {v(acc(j,rb),4)}, {v(af(h,rb),4)}, {v(bf(j),4)}, {c}")
        if h == 0:
            m.append(f"{MF} {v(AC+4*j,4)}, {v(ONE,4)}, {v(bf(j),4)}, {'0' if n == 0 else v(AC+4*j,4)}")
        if j in (1, 3):
            rb = j >> 1
            m.append(f"{MF} {v(AQ+4*rb,4)}, {v(af(h,rb),4)}, {v(af(h,rb),4)}, {'0' if hh == 0 else v(AQ+4*rb,4)}")
        sb.needds(("B", t), ("A", hh))
        k(m[0])
        side = []
        if r == 14 - L and n + 1 < NS:
            assert all(st > n + 1 for st, _ in pend)
            sb.needvm(n + 1)
            k("s_barrier")
            if nxt < NS and nxt - NB <= n - 1:
                pend += [(nxt, g) for g in issue(nxt)]; nxt += 1
        rds = rdB(t + L) if t + L < NI else []
        if j == 7 - L and hh + 1 < 2 * NS: rds = rdA(hh + 1) + rds
        if n == NS - 1 and h == 1 and j >= 3:
            js = {3: (0, 1), 4: (2, 3), 5: (4, 5), 6: (6,)}[j]
            rds += [(f"ds_write_b32 v{VCS}, v{AC+4*x} offset:{64*x}", "cs") for x in js]
        ld = None
        if pend: ld = pend.pop(0)
        per = -(-len(rds) // len(m))
        for x in rds[:per]: sb.ds(*x)
        for i in range(1, len(m)):
            k(m[i])
            for x in rds[per * i: per * (i + 1)]: sb.ds(*x)
            if i == 1 and ld: emit(ld[1], ld[0])
    if stamps: stamp_mid(k, 1)
    sb.drain("lgkmcnt")
    k("s_barrier")
    sb.vm(f"global_load_dword v{T+40}, v{VF}, s[28:29] sc1", "flag")
    C = T
    k(f"v_xor_b32 v{VCS}, 512, v{VCS}")
    for j in range(7): sb.ds(f"ds_read_b32 v{C+j}, v{VCS} offset:{64*j}", "c")
    Q = T + 8; S = T + 16; RR = T + 24; RM = T + 32
    for x in range(8): sb.ds(f"ds_bpermute_b32 v{Q+x}, v{VBP}, v{AQ+x} offset:{4*(x&3)}", "q")
    for x in range(8): k(f"v_mov_b32_dpp v{S+x}, v{ACC+x} row_newbcast:0 row_mask:0xf bank_mask:0xf")
    k(f"""
    s_mov_b32 s38, {fbits(1/576)}
    s_mov_b32 s39, {fbits(1e-5)}
    s_mov_b32 s62, {fbits(1.4426950408889634)}
    s_mov_b32 s63, {fbits(1e-6)}
    v_mov_b32 v{VT}, {fbits(-1e-6 * 1.4426950408889634)}
    """)
    for x in range(8): k(f"v_mul_f32 v{S+x}, s38, v{S+x}")
    for x in range(8): k(f"v_fma_f32 v{RM+x}, -v{S+x}, v{S+x}, s39")
    sb.needds("c")
    for j in range(7): k(f"v_add_f32 v{C+j}, v{C+j}, v{AC+4*j}")
    sb.needds("q")
    for x in range(8): k(f"v_fma_f32 v{Q+x}, v{Q+x}, s38, v{RM+x}")
    for x in range(8): k(f"v_max_f32 v{Q+x}, s39, v{Q+x}")
    for x in range(8): k(f"v_rsq_f32 v{RR+x}, v{Q+x}")
    for x in range(8): k(f"v_mul_f32 v{RM+x}, v{RR+x}, v{S+x}")
    if stamps: stamp_mid(k, 2)
    E = AC
    def fin(j):
        a0 = acc(j, 0)
        for x in range(8):
            if j < 4: k(f"v_fma_f32 v{a0+x}, v{a0+x}, v{RR+x}, s63")
            elif j == 4: k(f"v_fma_f32 v{a0+x}, v{a0+x}, v{RR+x}, v{VEPS}")
            else: k(f"v_mul_f32 v{a0+x}, v{a0+x}, v{RR+x}")
        for x in range(8): k(f"v_fma_f32 v{a0+x}, -v{RM+x}, v{C+j}, v{a0+x}")
        if j <= 4:
            for x in range(8): k(f"v_fma_f32 v{E+x}, v{a0+x}, s62, v{VT}")
            for x in range(8): k(f"v_exp_f32_e64 v{E+x}, v{E+x} clamp")
            if j < 4:
                for x in range(8): k(f"v_max_f32 v{a0+x}, s63, v{a0+x}")
                for x in range(8): k(f"v_add_f32 v{a0+x}, v{a0+x}, v{E+x}")
            else:
                for x in range(8): k(f"v_max_f32 v{E+8+x}, s63, v{a0+x}")
                for x in range(8): k(f"v_add_f32 v{E+x}, v{E+8+x}, v{E+x}")
                for x in range(8): k(f"v_cndmask_b32 v{a0+x}, v{a0+x}, v{E+x}, s[60:61]")
        for x in range(4): k(f"v_cvt_pk_bf16_f32 v{bf(j)+x}, v{a0+2*x}, v{a0+2*x+1}")
    srd(k, 12, 30, 31, PQ_SZ, PQ_OFF)
    for j in (3, 2, 4):
        fin(j)
        sb.vm(f"buffer_store_dwordx4 {v(bf(j),4)}, v{VP+j-2}, s[12:15], s59 offen {aux_o}".rstrip(), "pq")
    for x in range(4): k(f"v_cndmask_b32 v{AF+x}, v{bf(4)+x}, v{ONE}, s[60:61]")
    for j in (0, 1, 5, 6): fin(j)
    KV = ACC
    pairs = [(AF, 0), (AF, 1), (AF, 2), (bf(5), 0), (bf(5), 1), (bf(5), 2), (bf(6), 1), (bf(6), 2)]
    for i, (av, kb) in enumerate(pairs):
        k(f"{MF} {v(KV+4*i,4)}, {v(av,4)}, {v(bf(kb),4)}, 0")
    LS = k.label("spin"); LG = k.label("go")
    k(f"""
    s_mov_b32 s38, 0
    s_waitcnt vmcnt(3)
    {LS}:
    v_readfirstlane_b32 s39, v{T+40}
    s_add_u32 s38, s38, 1
    s_cmp_lg_u32 s39, 0
    s_cbranch_scc1 {LG}
    s_cmp_ge_u32 s38, 0x40000
    s_cbranch_scc1 {LG}
    global_load_dword v{T+40}, v{VF}, s[28:29] sc1
    s_waitcnt vmcnt(0)
    s_branch {LS}
    {LG}:
    """)
    for i in range(8):
        sb.ds(f"ds_write_b128 v{VRD}, {v(KV+4*i,4)} offset:{1024*i}", "kv")
    if stamps: stamp_mid(k, 3)
    LT2 = k.label("notask2"); LT3 = k.label("left");
    k(f"""
    s_cmp_ge_u32 s45, 180
    s_cbranch_scc1 {LT2}
    v_bfe_u32 v{T+2}, v1, 2, 4
    v_and_b32 v{T+3}, 3, v1
    v_lshlrev_b32 v{T+3}, 3, v{T+3}
    v_lshl_add_u32 v{T+2}, v{T+2}, 7, v{T+3}
    v_add_u32 v{T+2}, {TB}, v{T+2}
    """)
    for cc in range(4):
        for u in range(2):
            k(f"ds_read_b64_tr_b16 {v(AC+4*cc+2*u,2)}, v{T+2} offset:{cc*32 + u*2048}")
    srd(k, 16, 30, 31, WOF_SZ, WOF_OFF)
    k(f"v_lshlrev_b32 v{T+3}, 4, v1")
    for cc in range(4):
        k(f"""
        s_lshl_b32 s38, s47, 2
        s_add_u32 s38, s38, {cc}                   ; CB
        s_mul_i32 s39, s38, 57
        s_lshr_b32 s39, s39, 9                     ; ct
        s_mul_i32 s54, s39, 9
        s_sub_u32 s38, s38, s54                    ; cb
        s_lshl_b32 s39, s39, 2
        s_add_u32 s39, s39, s48
        s_mul_i32 s39, s39, 41
        s_mul_i32 s54, s49, 9
        s_add_u32 s39, s39, s54
        s_add_u32 s54, s39, s38
        s_lshl_b32 s{64+cc}, s54, 10
        s_lshr_b32 s54, s38, 1
        s_add_u32 s54, s54, s39
        s_lshl_b32 s54, s54, 10
        s_and_b32 s38, s38, 1
        s_lshl_b32 s38, s38, 3
        s_add_u32 s54, s54, s38
        s_cmp_eq_u32 s49, 4
        s_cselect_b32 s{64+cc}, s54, s{64+cc}
        """)
    k(f"s_waitcnt lgkmcnt(0)\ns_cmp_eq_u32 s49, 4\ns_cbranch_scc1 {LT3}")
    for cc in range(4): k(f"buffer_store_dwordx4 {v(AC+4*cc,4)}, v{T+3}, s[16:19], s{64+cc} offen {aux_o}".rstrip())
    k(f"s_branch {LT2}\n{LT3}:")
    for cc in range(4): k(f"buffer_store_dwordx2 {v(AC+4*cc,2)}, v{T+3}, s[16:19], s{64+cc} offen {aux_o}".rstrip())
    k(f"{LT2}:")
    k("s_waitcnt lgkmcnt(0)\ns_barrier")
    G = AF + 4
    for m in range(3):
        for w in range(4):
            k(f"ds_read_b32 v{G+4*m+w}, v{GA+m} offset:{8192*w}")
    for m in range(3):
        k(f"s_waitcnt lgkmcnt({8 - 4*m})")
        k(f"v_add_f32 v{G+4*m}, v{G+4*m}, v{G+4*m+1}\nv_add_f32 v{G+4*m+2}, v{G+4*m+2}, v{G+4*m+3}\nv_add_f32 v{G+4*m}, v{G+4*m}, v{G+4*m+2}")
        k(f"buffer_atomic_add_f32 v{G+4*m}, v{GO+m}, s[20:23], s44 offen")
    if stamps: stamp_end(k, kidx)
    k(f"{END}:\ns_endpgm")
    if pf:
        k(f"{HELP}:")
        helper_wave(k, "w1", pf, pfaux)
    return k, (name, (256, 1, 1), (320 if pf else 256, 1, 1), CS + 2048)

if __name__ == "__main__":
    k, l = gen_k1(kidx=0, stamps=True)
    emit_file("k1.s", [l], [k])
```

```python
from asmlib import *
from layout import *
from k4 import weave_at, MF
import struct
def fbits(x): return struct.unpack("<I", struct.pack("<f", x))[0]

def gen_k3(name="k3_kernel", kidx=2, stamps=False, aux_w="", aux_h="", aux_o="", npf=0, pfaux='', pfd=2, D=6, D0=3, L=4, dbg=''):
    NS = 32; NB = 8
    k = K(name, vgpr=184, agpr=96)
    END = k.label("end")
    ACC = 56
    def acc(fb, db): return ACC + (fb * 3 + db) * 4
    BF = 152
    def bf(fb): return BF + fb * 4
    VH = 2
    VW = 4
    VT = 8
    BI = 16
    VU = 32
    VX = 38
    T0 = 40
    def abuf(n, db): return (n % NB) * 12 + db * 4
    nwg = 216 + npf
    HELP = k.label("help")
    k(f"s_cmp_ge_u32 s2, 216\ns_cbranch_scc1 {HELP if npf else END}")
    if stamps: stamp_begin(k)
    k(f"""
    s_load_dwordx4 s[4:7], s[0:1], 32          ; w1, b1
    s_load_dwordx2 s[10:11], s[0:1], 80        ; ws
    v_lshrrev_b32 v40, 6, v0
    v_and_b32 v1, 63, v0                       ; lane
    s_and_b32 s33, s2, 7
    v_readfirstlane_b32 s3, v40                ; wave
    s_mul_i32 s33, s33, 27
    s_lshr_b32 s34, s2, 3
    s_add_u32 s33, s33, s34                    ; tau
    s_mul_i32 s34, s33, 171
    s_lshr_b32 s34, s34, 10
    s_mul_i32 s35, s34, 6
    s_sub_u32 s35, s33, s35                    ; dt
    s_lshr_b32 s36, s3, 1                      ; kh
    s_and_b32 s37, s3, 1                       ; mh
    v_lshlrev_b32 v{VH}, 4, v1
    v_lshrrev_b32 v40, 4, v1                   ; g = l>>4
    v_and_b32 v41, 15, v1                      ; i
    s_lshl_b32 s38, s37, 4
    v_add_u32 v42, s38, v40
    s_movk_i32 s39, 9216
    v_mul_u32_u24 v42, s39, v42
    v_lshlrev_b32 v43, 1, v40
    v_xor_b32 v43, v43, v41
    v_xor_b32 v44, 8, v43
    v_lshl_add_u32 v{VW}, v43, 4, v42
    v_lshl_add_u32 v{VW+1}, v44, 4, v42
    v_add_u32 v{VW+2}, {2*(4*9216-1024)}, v{VW}
    v_add_u32 v{VW+1}, {4*9216-1024}, v{VW+1}
    v_add_u32 v{VW+3}, {2*(4*9216-1024)}, v{VW+1}
    s_mul_i32 s40, s36, 36
    s_mul_i32 s41, s35, 6
    s_add_u32 s40, s40, s41
    s_mul_i32 s41, s37, 3
    s_add_u32 s40, s40, s41
    s_lshl_b32 s40, s40, 10
    s_mul_i32 s41, s36, {32*9216}
    s_lshl_b32 s42, s34, 8
    s_add_u32 s41, s41, s42                    ; s41 = w1 soffset
    s_lshl_b32 s42, s36, 16
    s_lshl_b32 s43, s37, 12
    s_add_u32 s43, s43, s42
    s_waitcnt lgkmcnt(0)
    """)
    srd(k, 12, 4, 5, 2048 * 9216)
    srd(k, 16, 10, 11, HL_SZ, HL_OFF)
    def dma(n):
        out = []
        for q in range(4):
            g = []
            if q == 0: g += [f"s_add_u32 m0, s43, {(n % NB) * 8192}", "s_nop 0"]
            g.append(f"buffer_load_dwordx4 v{VW+q}, s[12:15], s41 offen offset:{q*1024} {aux_w} lds")
            if q == 3 and 'same' not in dbg: g.append(f"s_add_u32 s41, s41, {64*9216}")
            out.append(g)
        return out
    def hld(n):
        out = []
        for db in range(3):
            g = [f"buffer_load_dwordx4 {a(abuf(n,db),4)}, v{VH}, s[16:19], s40 offen offset:{db*1024} {aux_h}".rstrip()]
            if db == 2 and 'same' not in dbg: g.append(f"s_add_u32 s40, s40, {72*1024}")
            out.append(g)
        return out
    for g in dma(0) + hld(0): k(g)
    srd(k, 20, 6, 7, 9216)
    srd(k, 24, 10, 11, U_SZ, U_OFF)
    k(f"""
    s_lshl_b32 s44, s34, 8
    s_lshl_b32 s45, s36, 7
    s_add_u32 s44, s44, s45
    v_lshlrev_b32 v42, 3, v40
    """)
    for j in range(4):
        k(f"buffer_load_dwordx2 {v(T0+8+2*j,2)}, v42, s[20:23], s44 offen offset:{32*j}")
    for n in range(1, D0):
        for g in dma(n) + hld(n): k(g)
    k(f"""
    v_bfe_u32 v42, v1, 2, 4                    ; row
    v_and_b32 v43, 7, v42
    v_and_b32 v44, 3, v1
    v_lshlrev_b32 v44, 3, v44
    v_lshl_add_u32 v44, v42, 8, v44
    v_add_u32 v44, s42, v44
    s_xor_b32 s45, s36, 1
    s_lshl_b32 s45, s45, 2
    v_xor_b32 v43, s45, v43
    """)
    for fb in range(8):
        k(f"v_xor_b32 v45, {fb}, v43\nv_lshl_add_u32 v{VT+fb}, v45, 5, v44")
    k(f"""
    s_mul_i32 s45, s35, 96
    s_mul_i32 s46, s37, 48
    s_add_u32 s45, s45, s46
    s_movk_i32 s46, 9216
    s_movk_i32 s47, 911
    s_lshl_b32 s48, s34, 1
    s_add_u32 s48, s48, s36
    s_mul_i32 s48, s48, {8*9216}               ; s48 = p*8*9216
    """)
    for db in range(3):
        k(f"""
        s_add_u32 s49, s45, {16*db}
        v_add_u32 v42, s49, v41                    ; d
        v_mul_u32_u24 v43, s47, v42
        v_lshrrev_b32 v43, 16, v43                 ; T = d/72
        v_mul_u32_u24 v44, 72, v43
        v_sub_u32 v44, v42, v44                    ; dl
        v_mul_u32_u24 v43, s46, v43                ; T*9216
        v_lshl_add_u32 v43, v40, 8, v43            ; + g*256
        v_lshrrev_b32 v45, 4, v44
        v_and_b32 v46, 15, v44
        v_lshlrev_b32 v46, 4, v46
        v_lshl_add_u32 v46, v45, 10, v46
        v_cmp_lt_u32 vcc, 63, v44
        v_add_u32 v46, v46, v43
        v_add_u32 v47, 4096, v46
        v_add_u32 v45, {4096+128}, v46
        v_cndmask_b32 v{VU+2*db}, v46, v47, vcc
        v_cndmask_b32 v{VU+2*db+1}, v47, v45, vcc
        """)
    k(f"""
    s_mul_i32 s45, s37, 12288
    s_add_u32 s46, s45, s42
    s_xor_b32 s47, s46, 0x10000
    v_add_u32 v{VX}, s46, v{VH}
    v_add_u32 v{VX+1}, s47, v{VH}
    """)
    def reads(t):
        n, fb = divmod(t, 8)
        return [f"ds_read_b64_tr_b16 {v(bf(fb)+2*u,2)}, v{VT+fb} offset:{(n%NB)*8192 + u*4096}" for u in range(2)]
    def mfmas(t):
        n, fb = divmod(t, 8)
        out = []
        for db in range(3):
            c = v(acc(fb, db), 4)
            if n == 0: c = "0" if fb < 4 else v(BI + 4 * (fb - 4), 4)
            out.append(f"{MF} {v(acc(fb,db),4)}, {v(bf(fb),4)}, {a(abuf(n,db),4)}, {c}")
        return out
    k(f"s_waitcnt vmcnt({7*(D0-1)})")
    for j in range(4):
        for r in range(2):
            k(f"v_lshlrev_b32 v{BI+4*j+2*r}, 16, v{T0+8+2*j+r}\nv_and_b32 v{BI+4*j+2*r+1}, 0xffff0000, v{T0+8+2*j+r}")
    k("s_barrier")
    if stamps: stamp_mid(k, 0)
    for t in range(L): k(reads(t))
    issued = [n for n in range(D0) for _ in range(7)]
    nxt = D0
    pend = []
    for t in range(NS * 8):
        n, fb = divmod(t, 8)
        pre = []
        left = min(L, NS * 8 - t)
        pre.append(f"s_waitcnt lgkmcnt({2*(left-1)})")
        side = []
        if fb == 8 - L and n + 1 < NS:
            cnt = sum(1 for x in issued if x > n + 1)
            assert all(st > n + 1 for st, _ in pend) and cnt < 64
            bar = [f"s_waitcnt vmcnt({cnt})"] + ([] if 'nobar' in dbg else ["s_barrier"])
            todo = 2 if nxt - n < D else 1
            for _ in range(todo):
                if nxt < NS and nxt - NB <= n - 1 and 'noload' not in dbg:
                    pend += [(nxt, g) for g in dma(nxt) + hld(nxt)]
                    nxt += 1
            per = -(-len(pend) // 8)
        else:
            bar = []
        m = mfmas(t)
        r = reads(t + L) if t + L < NS * 8 else []
        ld = []
        if pend:
            ld, pend = pend[:per], pend[per:]
            issued += [st for st, _ in ld]
        ld = [g for _, g in ld]
        if n == NS - 1 and fb >= 4:
            ld = [[f"ds_write_b128 v{VX}, {v(acc(fb-4,db),4)} offset:{((fb-4)*3+db)*1024}"] for db in range(3)]
            pre = [f"s_waitcnt lgkmcnt({2*(left-1) + 3*(fb-4)})"]
        k(pre)
        k(m[0]); k(bar); k(r[:1]);
        for g in ld[:1]: k(g)
        k(m[1]); k(r[1:])
        for g in ld[1:2]: k(g)
        k(m[2])
        for g in ld[2:]: k(g)
    if stamps: stamp_mid(k, 1)
    k("s_waitcnt lgkmcnt(0)\ns_barrier")
    for fb in range(4):
        for db in range(3):
            k(f"ds_read_b128 {v(acc(fb,db),4)}, v{VX+1} offset:{(fb*3+db)*1024}")
    c1 = -2.0 * 0.7978845608028654 * 1.4426950408889634
    k(f"""
    s_mov_b32 s50, {fbits(c1)}
    s_mov_b32 s51, {fbits(c1)}
    s_mov_b32 s52, {fbits(c1 * 0.044715)}
    s_mov_b32 s53, {fbits(c1 * 0.044715)}
    s_mov_b32 s54, 1.0
    s_mov_b32 s55, 1.0
    v_mov_b32 v{T0}, s50
    v_mov_b32 v{T0+1}, s50
    """)
    if stamps: stamp_mid(k, 2)
    order = [(m_, db) for m_ in range(2) for db in range(3)]
    for (m_, db) in order:
        k(f"s_waitcnt lgkmcnt({11 - ((2*m_+1)*3+db)})")
        xs = []
        for fb in (2 * m_, 2 * m_ + 1):
            for h in (0, 2):
                xs.append((acc(fb + 4, db) + h, acc(fb, db) + h))
        for (x, t) in xs: k(f"v_pk_add_f32 {v(x,2)}, {v(x,2)}, {v(t,2)}")
        for (x, t) in xs: k(f"v_pk_mul_f32 {v(t,2)}, {v(x,2)}, {v(x,2)}")
        for (x, t) in xs: k(f"v_pk_fma_f32 {v(t,2)}, {v(t,2)}, s[52:53], {v(T0,2)}")
        for (x, t) in xs: k(f"v_pk_mul_f32 {v(t,2)}, {v(t,2)}, {v(x,2)}")
        for (x, t) in xs: k(f"v_exp_f32 v{t}, v{t}\nv_exp_f32 v{t+1}, v{t+1}")
        for (x, t) in xs: k(f"v_pk_add_f32 {v(t,2)}, {v(t,2)}, s[54:55]")
        for (x, t) in xs: k(f"v_rcp_f32 v{t}, v{t}\nv_rcp_f32 v{t+1}, v{t+1}")
        for (x, t) in xs: k(f"v_pk_mul_f32 {v(x,2)}, {v(x,2)}, {v(t,2)}")
        o = acc(2 * m_, db)
        for i, (x, t) in enumerate(xs): k(f"v_cvt_pk_bf16_f32 v{o+i}, v{x}, v{x+1}")
        k(f"buffer_store_dwordx4 {v(o,4)}, v{VU+2*db+m_}, s[24:27], s48 offen {aux_o}".rstrip())
    if stamps: stamp_end(k, kidx)
    k(f"{END}:\ns_endpgm")
    if npf:
        LP = k.label("pf")
        k(f"""
        {HELP}:
        s_cmp_ge_u32 s2, 256
        s_cbranch_scc1 {END}
        """)
        if stamps: stamp_begin(k)
        k(f"""
        s_load_dwordx2 s[4:5], s[0:1], 48
        v_lshrrev_b32 v2, 6, v0
        v_and_b32 v1, 63, v0
        s_and_b32 s33, s2, 7
        v_readfirstlane_b32 s3, v2
        s_sub_u32 s34, s2, 216
        s_lshr_b32 s34, s34, 3
        s_lshl_b32 s34, s34, 2
        s_add_u32 s34, s34, s3                     ; 0..19
        v_lshrrev_b32 v2, 2, v1
        v_and_b32 v3, 3, v1
        v_lshlrev_b32 v3, 7, v3
        v_lshl_add_u32 v3, v2, 12, v3
        s_lshl_b32 s33, s33, 9
        s_lshl_b32 s35, s34, 16
        s_add_u32 s33, s33, s35
        s_waitcnt lgkmcnt(0)
        """)
        srd(k, 12, 4, 5, 4608 * 4096)
        k(f"""
        {LP}:
        buffer_load_dword v8, v3, s[12:15], s33 offen {pfaux}
        s_add_u32 s33, s33, {20 * 65536}
        s_add_u32 s34, s34, 20
        s_waitcnt vmcnt({pfd - 1})
        s_cmp_lt_u32 s34, 288
        s_cbranch_scc1 {LP}
        """)
        if stamps: stamp_end(k, kidx)
        k("s_endpgm")
    return k, (name, (nwg, 1, 1), (256, 1, 1), 131072)

if __name__ == "__main__":
    k, l = gen_k3(kidx=0, stamps=True)
    emit_file("k3.s", [l], [k])
```

```python
from mkfinal import *
import shutil
S3 = ["sscss","ss","ss","s"]
BEST = dict(k1=dict(new=True, lw=(3,3), nw1=192), k2=dict(pf=(6,3), pfpos=3, aux_o="sc1", cpf=True),
            k3=dict(npf=40, aux_o="sc1", cpf=True), k4=dict(D=4, D0=2, ldw=1))
if __name__ == "__main__":
    build("full.s", **BEST); build("full_st.s", stamps=True, **BEST)
    shutil.copy("full.s", "cdna_kernels/" + NAME + ".s")
```

```python
from asmlib import *
from layout import *

def gen_k1(name="k1_kernel", kidx=0, stamps=False, aux_x="", aux_w="", aux_o="", L=4, dbg="", pf=None, pfaux=""):
    NS = 9; NB = 4
    k = K(name, vgpr=232)
    sb = SB(k)
    END = k.label("end")
    VX = 2; VW = 6; VA = 10; VB = 12; ONE = 26
    ACC = 32
    def acc(j, rb): return ACC + (j * 2 + rb) * 4
    AQ = 88; AC = 96
    AF = 124
    def af(h, rb): return AF + (h * 2 + rb) * 4
    BF = 140
    def bf(j): return BF + 4 * j
    GA = 168; GO = 171; VP = 174; VF = 177; VCS = 178; VBP = 179; VEPS = 180; VRD = 181; VT = 182
    T = 184
    XB = 65536; TB = 131072; CS = TB + 4096
    k(f"s_cmp_ge_u32 s2, 256\ns_cbranch_scc1 {END}")
    HELP = k.label("help")
    if pf: k(f"v_readfirstlane_b32 s3, v0\ns_cmp_ge_u32 s3, 256\ns_cbranch_scc1 {HELP}")
    if stamps: stamp_begin(k)
    k(f"""
    s_load_dwordx4 s[4:7], s[0:1], 0           ; x, wqkv
    s_load_dwordx2 s[8:9], s[0:1], 16          ; wo
    s_load_dwordx4 s[28:31], s[0:1], 72
    v_lshrrev_b32 v{T}, 6, v0
    v_and_b32 v1, 63, v0                       ; lane
    s_and_b32 s33, s2, 7
    v_readfirstlane_b32 s3, v{T}               ; wave
    s_lshl_b32 s33, s33, 1
    s_bfe_u32 s34, s2, 0x10003
    s_add_u32 s33, s33, s34                    ; rt
    s_lshr_b32 s34, s2, 4                      ; hp
    v_lshrrev_b32 v{T}, 4, v1                  ; g
    v_and_b32 v{T+1}, 15, v1                   ; i
    v_lshrrev_b32 v{T+2}, 3, v1
    s_movk_i32 s35, 1152
    v_mul_u32_u24 v{T+2}, s35, v{T+2}
    v_and_b32 v{T+3}, 7, v1
    v_xor_b32 v{T+3}, v{T+3}, v{T}
    v_xor_b32 v{T+4}, 4, v{T+3}
    v_lshl_add_u32 v{VX}, v{T+3}, 4, v{T+2}
    v_lshl_add_u32 v{VX+1}, v{T+4}, 4, v{T+2}
    v_add_u32 v{VX+2}, {2*(8*1152-1024)}, v{VX}
    v_add_u32 v{VX+1}, {8*1152-1024}, v{VX+1}
    v_add_u32 v{VX+3}, {2*(8*1152-1024)}, v{VX+1}
    s_movk_i32 s35, 3456
    v_mul_u32_u24 v{T+2}, s35, v{T}            ; (l>>4)*3456
    v_lshlrev_b32 v{T+3}, 1, v{T}
    v_sub_u32 v{T+3}, v{T+1}, v{T+3}
    """)
    for par in range(2):
        k(f"""
        v_add_u32 v{T+4}, {16 - 8*par}, v{T+3}
        v_and_b32 v{T+4}, 15, v{T+4}               ; chunk
        v_mov_b32 v{T+5}, {2304 - 8 - 176}
        v_mov_b32 v{T+6}, -80
        v_cmp_gt_u32 vcc, 10, v{T+4}
        v_mov_b32 v{T+7}, {1152 - 8}
        v_lshl_add_u32 v{T+8}, v{T+4}, 4, v{T+2}
        v_cndmask_b32 v{T+5}, v{T+5}, v{T+6}, vcc
        v_cmp_gt_u32 vcc, 5, v{T+4}
        v_add_u32 v{T+8}, {par * (8*3456 - 1024)}, v{T+8}
        s_nop 0
        v_cndmask_b32 v{T+5}, v{T+5}, v{T+7}, vcc
        v_add_u32 v{VW+par}, v{T+5}, v{T+8}
        v_add_u32 v{VW+2+par}, {4*3456 - 2048}, v{VW+par}
        """)
    def lanes(*ls): return sum(1 << x for x in ls)
    mE = ~lanes(10, 28, 46, 48) & (2**64 - 1); mO = ~lanes(2, 20, 38, 56) & (2**64 - 1)
    k(f"""
    s_mov_b32 s50, {mE & 0xffffffff}
    s_mov_b32 s51, {mE >> 32}
    s_mov_b32 s52, {mO & 0xffffffff}
    s_mov_b32 s53, {mO >> 32}
    s_lshl_b32 s36, s33, 2
    s_add_u32 s36, s36, s3                     ; rt32
    s_mul_i32 s40, s36, {32*1152}              ; s40 = x soffset
    s_mul_i32 s41, s3, {16*3456}
    s_mul_i32 s37, s34, 72
    s_add_u32 s41, s41, s37                    ; s41 = w soffset
    s_lshl_b32 s42, s3, 12
    s_lshl_b32 s43, s3, 14
    s_add_u32 s43, s43, {XB}
    v_mov_b32 v{ONE}, 0x3f803f80
    v_mov_b32 v{ONE+1}, 0x3f803f80
    v_mov_b32 v{ONE+2}, 0x3f803f80
    v_mov_b32 v{ONE+3}, 0x3f803f80
    v_and_b32 v{T+4}, 7, v0
    v_lshl_add_u32 v{T+4}, v{T+4}, 1, 10
    v_and_b32 v{T+4}, 15, v{T+4}
    v_lshlrev_b32 v{T+4}, 4, v{T+4}
    v_lshl_add_u32 v{T+4}, v0, 8, v{T+4}
    """)
    sb.ds(f"ds_write_b128 v{T+4}, {v(ONE,4)}", "ones")
    k("s_waitcnt lgkmcnt(0)"); sb.done["lgkmcnt"] = 1
    srd(k, 12, 4, 5, 2048 * 1152)
    srd(k, 16, 6, 7, 576 * 3456)
    srd(k, 20, 30, 31, KVT_SZ, KVT_OFF)
    LZ = k.label("noz")
    k(f"""
    s_mul_i32 s44, s34, 3040
    s_cmp_lg_u32 s33, 0
    s_cbranch_scc1 {LZ}
    v_mov_b32 v{T+8}, 0
    v_mov_b32 v{T+9}, 0
    v_mov_b32 v{T+10}, 0
    v_mov_b32 v{T+11}, 0
    v_lshlrev_b32 v{T+4}, 4, v0
    v_cmp_gt_u32 vcc, 190, v0
    v_mov_b32 v{T+5}, 0x40000000
    s_nop 0
    v_cndmask_b32 v{T+4}, v{T+5}, v{T+4}, vcc
    buffer_store_dwordx4 {v(T+8,4)}, v{T+4}, s[20:23], s44 offen sc1
    {LZ}:
    """)
    def issue(n):
        out = []
        g = [f"s_add_u32 m0, s42, {(n % NB) * 16384}", "s_mov_b64 exec, s[50:51]"]
        for q in (0, 2):
            g.append(("vm", f"buffer_load_dwordx4 v{VW+q}, s[16:19], s41 offen offset:{q*1024} {aux_w} lds"))
        g.append("s_mov_b64 exec, -1")
        out.append(g)
        g = ["s_mov_b64 exec, s[52:53]"]
        for q in (1, 3):
            g.append(("vm", f"buffer_load_dwordx4 v{VW+q}, s[16:19], s41 offen offset:{q*1024} {aux_w} lds"))
        g += ["s_mov_b64 exec, -1", f"s_add_u32 s41, s41, {64*3456}"]
        out.append(g)
        for q in range(4):
            g = []
            if q == 0: g += [f"s_add_u32 m0, s43, {(n % NB) * 4096}", "s_nop 0"]
            g.append(("vm", f"buffer_load_dwordx4 v{VX+q}, s[12:15], s40 offen offset:{q*1024} {aux_x} lds"))
            if q == 3: g.append("s_add_u32 s40, s40, 128")
            out.append(g)
        return out
    def emit(g, tag):
        for x in g:
            if isinstance(x, tuple): sb.vm(x[1], tag)
            else: k(x)
    for g in issue(0): emit(g, 0)
    LT = k.label("notask"); LC = k.label("noclr")
    srd(k, 24, 8, 9, 576 * 1152)
    k(f"""
    s_cmp_eq_u32 s3, 3
    s_cselect_b32 s45, s2, 255
    s_cmp_ge_u32 s45, 180
    s_cbranch_scc1 {LT}
    s_mul_i32 s46, s45, 57
    s_lshr_b32 s46, s46, 9
    s_mul_i32 s47, s46, 9
    s_sub_u32 s47, s45, s47                    ; cq
    s_mul_i32 s48, s46, 52
    s_lshr_b32 s48, s48, 8                     ; w' = wt / 5
    s_mul_i32 s49, s48, 5
    s_sub_u32 s49, s46, s49                    ; t
    v_lshrrev_b32 v{T+4}, 3, v1                ; b = l>>3
    v_lshrrev_b32 v{T+5}, 1, v{T+4}
    v_mul_u32_u24 v{T+5}, 18, v{T+5}
    v_and_b32 v{T+6}, 1, v{T+4}
    v_add3_u32 v{T+5}, v{T+5}, v{T+6}, 16
    s_mov_b32 s54, {8*1152-1024}
    s_mov_b32 s55, {18*1152-2048}
    s_mov_b32 s56, {26*1152-3072}
    s_cmp_eq_u32 s49, 4
    s_cselect_b64 vcc, -1, 0
    s_cmov_b32 s54, {72*1152-1024}
    s_cselect_b32 s57, 0, s49
    v_cndmask_b32 v{T+4}, v{T+4}, v{T+5}, vcc
    s_movk_i32 s58, 1152
    v_mul_u32_u24 v{T+4}, s58, v{T+4}
    v_and_b32 v{T+5}, 7, v1
    v_lshl_add_u32 v{T+4}, v{T+5}, 4, v{T+4}
    s_mul_i32 s58, s48, 144
    s_mul_i32 s57, s57, 36
    s_add_u32 s58, s58, s57
    s_mul_i32 s58, s58, 1152
    s_lshl_b32 s57, s47, 7
    s_add_u32 s58, s58, s57
    s_add_u32 s54, s54, s58
    s_add_u32 s55, s55, s58
    s_add_u32 s56, s56, s58
    s_mov_b32 m0, {TB}
    s_nop 0
    buffer_load_dwordx4 v{T+4}, s[24:27], s58 offen offset:0 lds
    buffer_load_dwordx4 v{T+4}, s[24:27], s54 offen offset:1024 lds
    buffer_load_dwordx4 v{T+4}, s[24:27], s55 offen offset:2048 lds
    buffer_load_dwordx4 v{T+4}, s[24:27], s56 offen offset:3072 lds
    {LT}:
    """)
    srd(k, 24, 30, 31, FLG_OFF + FLG_SZ - XCH_OFF, XCH_OFF)
    k(f"""
    s_cmp_lg_u32 s3, 2
    s_cbranch_scc1 {LC}
    v_mov_b32 v{T+8}, -1
    v_lshlrev_b32 v{T+4}, 2, v1
    s_lshl_b32 s46, s2, 8
    buffer_store_dword v{T+8}, v{T+4}, s[24:27], s46 offen
    s_lshr_b32 s46, s46, 1
    s_add_u32 s46, s46, {FLG_OFF - XCH_OFF}
    s_mov_b64 exec, 0xffff
    buffer_store_dword v{T+8}, v{T+4}, s[24:27], s46 offen
    s_mov_b64 exec, -1
    {LC}:
    """)
    for g in issue(1): emit(g, 1)
    k(f"""
    s_and_b32 s37, s3, 1                       ; parity
    v_lshrrev_b32 v{T+2}, 1, v{T+1}
    v_xor_b32 v{T+2}, v{T+2}, v{T}
    s_lshl_b32 s38, s37, 2
    v_xor_b32 v{T+2}, s38, v{T+2}
    v_lshlrev_b32 v{T+2}, 4, v{T+2}
    v_lshl_add_u32 v{T+2}, v{T+1}, 7, v{T+2}
    v_add_u32 v{VA}, s43, v{T+2}
    v_xor_b32 v{VA+1}, 64, v{VA}
    v_bfe_u32 v{T+2}, v1, 2, 3                 ; rho = 4(g&1)+r
    v_lshrrev_b32 v{T+3}, 5, v1
    v_lshl_add_u32 v{T+3}, v{T+3}, 4, v{T+2}   ; pi0
    v_lshlrev_b32 v{T+3}, 8, v{T+3}
    s_lshl_b32 s38, s37, 13
    v_add_u32 v{T+3}, s38, v{T+3}
    v_and_b32 v{T+4}, 3, v1                    ; c
    v_lshl_add_u32 v{T+5}, v{T+2}, 2, v{T+4}   ; c + 4 rho
    v_cmp_eq_u32 s[54:55], 0, v{T+4}
    v_cmp_eq_u32 s[56:57], 3, v{T+4}
    """)
    for j in range(7):
        base = [0, 4, 8, 12, 16, 24, 28][j]
        if j == 0: k(f"v_add_u32 v{T+6}, 20, v{T+5}\nv_cndmask_b32 v{T+6}, v{T+5}, v{T+6}, s[54:55]")
        elif j == 4: k(f"v_add_u32 v{T+6}, 16, v{T+5}\nv_add_u32 v{T+7}, 20, v{T+5}\nv_cndmask_b32 v{T+6}, v{T+6}, v{T+7}, s[56:57]")
        else: k(f"v_add_u32 v{T+6}, {base}, v{T+5}")
        k(f"""
        v_and_b32 v{T+6}, 31, v{T+6}
        v_lshl_add_u32 v{VB+j}, v{T+6}, 3, v{T+3}
        v_xor_b32 v{VB+7+j}, 0x2000, v{VB+j}
        """)
    k(f"""
    s_mul_i32 s38, s34, 36
    s_mul_i32 s39, s36, 576
    s_add_u32 s38, s38, s39
    s_lshl_b32 s59, s38, 6
    v_lshlrev_b32 v{T+2}, 6, v{T+1}
    v_lshl_add_u32 v{T+2}, v{T}, 4, v{T+2}     ; i*64 + g*16
    v_mov_b32 v{T+3}, 0x40000000
    v_cmp_lt_u32 vcc, 7, v{T+1}
    v_add_u32 v{T+4}, -512, v{T+2}
    v_add_u32 v{VP+1}, 512, v{T+2}
    v_cndmask_b32 v{VP}, v{T+3}, v{T+4}, vcc
    v_cmp_gt_u32 s[60:61], 12, v{T+1}
    v_add_u32 v{T+4}, {24*64}, v{T+2}
    v_mov_b32 v{T+5}, {fbits(1e-6)}
    v_cndmask_b32 v{VP+2}, v{T+3}, v{T+4}, s[60:61]
    v_cndmask_b32 v{VEPS}, 0, v{T+5}, s[60:61]
    s_lshl_b32 s38, s3, 9
    s_add_u32 s38, s38, {CS}
    v_lshl_add_u32 v{VCS}, v{T+1}, 2, s38
    v_and_b32 v{T+2}, 48, v1
    v_lshl_add_u32 v{T+2}, v{T}, 2, v{T+2}
    v_lshlrev_b32 v{VBP}, 2, v{T+2}
    s_lshl_b32 s38, s3, 13
    v_lshl_add_u32 v{VRD}, v1, 4, s38
    s_lshl_b32 s38, s34, 2
    v_mov_b32 v{VF}, s38
    s_movk_i32 s38, 3277
    s_movk_i32 s39, 380
    """)
    for m in range(3):
        k(f"""
        v_add_u32 v{T+2}, {256*m}, v0              ; idx
        v_cmp_le_u32 vcc, s39, v{T+2}
        v_lshlrev_b32 v{T+8}, 2, v{T+2}
        v_subrev_u32 v{T+4}, s39, v{T+2}
        v_cndmask_b32 v{T+4}, v{T+2}, v{T+4}, vcc  ; rem = e*20+d
        v_cndmask_b32 v{T+5}, 0, 18, vcc           ; 18 hh
        v_mul_u32_u24 v{T+6}, s38, v{T+4}
        v_lshrrev_b32 v{T+6}, 16, v{T+6}           ; e
        v_mul_u32_u24 v{T+7}, 20, v{T+6}
        v_sub_u32 v{T+7}, v{T+4}, v{T+7}           ; d
        v_cmp_gt_u32 s[54:55], 18, v{T+7}
        v_cmp_gt_u32 s[56:57], 19, v{T+6}
        v_cmp_gt_u32 vcc, 18, v{T+6}
        v_add3_u32 v{T+7}, v{T+7}, v{T+5}, 4       ; kappa + 4
        v_add3_u32 v{T+6}, v{T+6}, v{T+5}, 12      ; nu + 12
        s_and_b64 s[54:55], s[54:55], s[56:57]
        v_cndmask_b32 v{T+6}, 0, v{T+6}, vcc
        v_cndmask_b32 v{GO+m}, v{T+3}, v{T+8}, s[54:55]
        v_lshrrev_b32 v{T+8}, 4, v{T+6}            ; vb
        v_lshrrev_b32 v{T+9}, 5, v{T+6}            ; vb==2
        v_mul_u32_u24 v{T+8}, 3, v{T+8}
        v_sub_u32 v{T+8}, v{T+8}, v{T+9}
        v_lshrrev_b32 v{T+9}, 4, v{T+7}
        v_add_u32 v{T+8}, v{T+8}, v{T+9}           ; blk
        v_and_b32 v{T+7}, 15, v{T+7}
        v_lshlrev_b32 v{T+7}, 4, v{T+7}
        v_lshl_add_u32 v{T+8}, v{T+8}, 10, v{T+7}
        v_bfe_u32 v{T+9}, v{T+6}, 2, 2
        v_lshl_add_u32 v{T+8}, v{T+9}, 8, v{T+8}
        v_and_b32 v{T+9}, 3, v{T+6}
        v_lshl_add_u32 v{T+8}, v{T+9}, 2, v{T+8}
        v_cndmask_b32 v{GA+m}, 0, v{T+8}, s[54:55]
        """)
    NI = NS * 14
    def rdB(t):
        n, r = divmod(t, 14); h, j = divmod(r, 7)
        return [(f"ds_read_b64_tr_b16 {v(bf(j)+2*u,2)}, v{VB+7*h+j} offset:{(n%NB)*16384 + u*2048}", ("B", t)) for u in range(2)]
    def rdA(hh):
        n, h = divmod(hh, 2)
        return [(f"ds_read_b128 {v(af(h,rb),4)}, v{VA+h} offset:{(n%NB)*4096 + rb*2048}", ("A", hh)) for rb in range(2)]
    sb.needvm(0)
    k("s_barrier")
    LF = k.label("nof")
    k(f"""
    s_or_b32 s38, s33, s3
    s_cmp_lg_u32 s38, 0
    s_cbranch_scc1 {LF}
    v_mov_b32 v{T+2}, 1
    global_store_dword v{VF}, v{T+2}, s[28:29] sc1
    {LF}:
    """)
    if stamps: stamp_mid(k, 0)
    for x in rdA(0): sb.ds(*x)
    for t in range(L):
        for x in rdB(t): sb.ds(*x)
    pend = [(n, g) for n in (2, 3) for g in issue(n)]
    nxt = 4
    for t in range(NI):
        n, r = divmod(t, 14); h, j = divmod(r, 7); hh = 2 * n + h
        m = []
        for rb in range(2):
            c = "0" if hh == 0 else v(acc(j, rb), 4)
            m.append(f"{MF} {v(acc(j,rb),4)}, {v(af(h,rb),4)}, {v(bf(j),4)}, {c}")
        if h == 0:
            m.append(f"{MF} {v(AC+4*j,4)}, {v(ONE,4)}, {v(bf(j),4)}, {'0' if n == 0 else v(AC+4*j,4)}")
        if j in (1, 3):
            rb = j >> 1
            m.append(f"{MF} {v(AQ+4*rb,4)}, {v(af(h,rb),4)}, {v(af(h,rb),4)}, {'0' if hh == 0 else v(AQ+4*rb,4)}")
        sb.needds(("B", t), ("A", hh))
        k(m[0])
        side = []
        if r == 14 - L and n + 1 < NS:
            assert all(st > n + 1 for st, _ in pend)
            sb.needvm(n + 1)
            k("s_barrier")
            if nxt < NS and nxt - NB <= n - 1:
                pend += [(nxt, g) for g in issue(nxt)]; nxt += 1
        rds = rdB(t + L) if t + L < NI else []
        if j == 7 - L and hh + 1 < 2 * NS: rds = rdA(hh + 1) + rds
        if n == NS - 1 and h == 1 and j >= 3:
            js = {3: (0, 1), 4: (2, 3), 5: (4, 5), 6: (6,)}[j]
            rds += [(f"ds_write_b32 v{VCS}, v{AC+4*x} offset:{64*x}", "cs") for x in js]
        ld = None
        if pend: ld = pend.pop(0)
        per = -(-len(rds) // len(m))
        for x in rds[:per]: sb.ds(*x)
        for i in range(1, len(m)):
            k(m[i])
            for x in rds[per * i: per * (i + 1)]: sb.ds(*x)
            if i == 1 and ld: emit(ld[1], ld[0])
    if stamps: stamp_mid(k, 1)
    sb.drain("lgkmcnt")
    k("s_barrier")
    sb.vm(f"global_load_dword v{T+40}, v{VF}, s[28:29] sc1", "flag")
    C = T
    k(f"v_xor_b32 v{VCS}, 512, v{VCS}")
    for j in range(7): sb.ds(f"ds_read_b32 v{C+j}, v{VCS} offset:{64*j}", "c")
    Q = T + 8; S = T + 16; RR = T + 24; RM = T + 32
    for x in range(8): sb.ds(f"ds_bpermute_b32 v{Q+x}, v{VBP}, v{AQ+x} offset:{4*(x&3)}", "q")
    for x in range(8): k(f"v_mov_b32_dpp v{S+x}, v{ACC+x} row_newbcast:0 row_mask:0xf bank_mask:0xf")
    k(f"""
    s_mov_b32 s38, {fbits(1/576)}
    s_mov_b32 s39, {fbits(1e-5)}
    s_mov_b32 s62, {fbits(1.4426950408889634)}
    s_mov_b32 s63, {fbits(1e-6)}
    v_mov_b32 v{VT}, {fbits(-1e-6 * 1.4426950408889634)}
    """)
    for x in range(8): k(f"v_mul_f32 v{S+x}, s38, v{S+x}")
    for x in range(8): k(f"v_fma_f32 v{RM+x}, -v{S+x}, v{S+x}, s39")
    sb.needds("c")
    for j in range(7): k(f"v_add_f32 v{C+j}, v{C+j}, v{AC+4*j}")
    sb.needds("q")
    for x in range(8): k(f"v_fma_f32 v{Q+x}, v{Q+x}, s38, v{RM+x}")
    for x in range(8): k(f"v_max_f32 v{Q+x}, s39, v{Q+x}")
    for x in range(8): k(f"v_rsq_f32 v{RR+x}, v{Q+x}")
    for x in range(8): k(f"v_mul_f32 v{RM+x}, v{RR+x}, v{S+x}")
    if stamps: stamp_mid(k, 2)
    E = AC
    def fin(j):
        a0 = acc(j, 0)
        for x in range(8):
            if j < 4: k(f"v_fma_f32 v{a0+x}, v{a0+x}, v{RR+x}, s63")
            elif j == 4: k(f"v_fma_f32 v{a0+x}, v{a0+x}, v{RR+x}, v{VEPS}")
            else: k(f"v_mul_f32 v{a0+x}, v{a0+x}, v{RR+x}")
        for x in range(8): k(f"v_fma_f32 v{a0+x}, -v{RM+x}, v{C+j}, v{a0+x}")
        if j <= 4:
            for x in range(8): k(f"v_fma_f32 v{E+x}, v{a0+x}, s62, v{VT}")
            for x in range(8): k(f"v_exp_f32_e64 v{E+x}, v{E+x} clamp")
            if j < 4:
                for x in range(8): k(f"v_max_f32 v{a0+x}, s63, v{a0+x}")
                for x in range(8): k(f"v_add_f32 v{a0+x}, v{a0+x}, v{E+x}")
            else:
                for x in range(8): k(f"v_max_f32 v{E+8+x}, s63, v{a0+x}")
                for x in range(8): k(f"v_add_f32 v{E+x}, v{E+8+x}, v{E+x}")
                for x in range(8): k(f"v_cndmask_b32 v{a0+x}, v{a0+x}, v{E+x}, s[60:61]")
        for x in range(4): k(f"v_cvt_pk_bf16_f32 v{bf(j)+x}, v{a0+2*x}, v{a0+2*x+1}")
    srd(k, 12, 30, 31, PQ_SZ, PQ_OFF)
    for j in (3, 2, 4):
        fin(j)
        sb.vm(f"buffer_store_dwordx4 {v(bf(j),4)}, v{VP+j-2}, s[12:15], s59 offen {aux_o}".rstrip(), "pq")
    for x in range(4): k(f"v_cndmask_b32 v{AF+x}, v{bf(4)+x}, v{ONE}, s[60:61]")
    for j in (0, 1, 5, 6): fin(j)
    KV = ACC
    pairs = [(AF, 0), (AF, 1), (AF, 2), (bf(5), 0), (bf(5), 1), (bf(5), 2), (bf(6), 1), (bf(6), 2)]
    for i, (av, kb) in enumerate(pairs):
        k(f"{MF} {v(KV+4*i,4)}, {v(av,4)}, {v(bf(kb),4)}, 0")
    LS = k.label("spin"); LG = k.label("go")
    k(f"""
    s_mov_b32 s38, 0
    s_waitcnt vmcnt(3)
    {LS}:
    v_readfirstlane_b32 s39, v{T+40}
    s_add_u32 s38, s38, 1
    s_cmp_lg_u32 s39, 0
    s_cbranch_scc1 {LG}
    s_cmp_ge_u32 s38, 0x40000
    s_cbranch_scc1 {LG}
    global_load_dword v{T+40}, v{VF}, s[28:29] sc1
    s_waitcnt vmcnt(0)
    s_branch {LS}
    {LG}:
    """)
    for i in range(8):
        sb.ds(f"ds_write_b128 v{VRD}, {v(KV+4*i,4)} offset:{1024*i}", "kv")
    if stamps: stamp_mid(k, 3)
    LT2 = k.label("notask2"); LT3 = k.label("left");
    k(f"""
    s_cmp_ge_u32 s45, 180
    s_cbranch_scc1 {LT2}
    v_bfe_u32 v{T+2}, v1, 2, 4
    v_and_b32 v{T+3}, 3, v1
    v_lshlrev_b32 v{T+3}, 3, v{T+3}
    v_lshl_add_u32 v{T+2}, v{T+2}, 7, v{T+3}
    v_add_u32 v{T+2}, {TB}, v{T+2}
    """)
    for cc in range(4):
        for u in range(2):
            k(f"ds_read_b64_tr_b16 {v(AC+4*cc+2*u,2)}, v{T+2} offset:{cc*32 + u*2048}")
    srd(k, 16, 30, 31, WOF_SZ, WOF_OFF)
    k(f"v_lshlrev_b32 v{T+3}, 4, v1")
    for cc in range(4):
        k(f"""
        s_lshl_b32 s38, s47, 2
        s_add_u32 s38, s38, {cc}                   ; CB
        s_mul_i32 s39, s38, 57
        s_lshr_b32 s39, s39, 9                     ; ct
        s_mul_i32 s54, s39, 9
        s_sub_u32 s38, s38, s54                    ; cb
        s_lshl_b32 s39, s39, 2
        s_add_u32 s39, s39, s48
        s_mul_i32 s39, s39, 41
        s_mul_i32 s54, s49, 9
        s_add_u32 s39, s39, s54
        s_add_u32 s54, s39, s38
        s_lshl_b32 s{64+cc}, s54, 10
        s_lshr_b32 s54, s38, 1
        s_add_u32 s54, s54, s39
        s_lshl_b32 s54, s54, 10
        s_and_b32 s38, s38, 1
        s_lshl_b32 s38, s38, 3
        s_add_u32 s54, s54, s38
        s_cmp_eq_u32 s49, 4
        s_cselect_b32 s{64+cc}, s54, s{64+cc}
        """)
    k(f"s_waitcnt lgkmcnt(0)\ns_cmp_eq_u32 s49, 4\ns_cbranch_scc1 {LT3}")
    for cc in range(4): k(f"buffer_store_dwordx4 {v(AC+4*cc,4)}, v{T+3}, s[16:19], s{64+cc} offen {aux_o}".rstrip())
    k(f"s_branch {LT2}\n{LT3}:")
    for cc in range(4): k(f"buffer_store_dwordx2 {v(AC+4*cc,2)}, v{T+3}, s[16:19], s{64+cc} offen {aux_o}".rstrip())
    k(f"{LT2}:")
    k("s_waitcnt lgkmcnt(0)\ns_barrier")
    G = AF + 4
    for m in range(3):
        for w in range(4):
            k(f"ds_read_b32 v{G+4*m+w}, v{GA+m} offset:{8192*w}")
    for m in range(3):
        k(f"s_waitcnt lgkmcnt({8 - 4*m})")
        k(f"v_add_f32 v{G+4*m}, v{G+4*m}, v{G+4*m+1}\nv_add_f32 v{G+4*m+2}, v{G+4*m+2}, v{G+4*m+3}\nv_add_f32 v{G+4*m}, v{G+4*m}, v{G+4*m+2}")
        k(f"buffer_atomic_add_f32 v{G+4*m}, v{GO+m}, s[20:23], s44 offen")
    if stamps: stamp_end(k, kidx)
    k(f"{END}:\ns_endpgm")
    if pf:
        k(f"{HELP}:")
        helper_wave(k, "w1", pf, pfaux)
    return k, (name, (256, 1, 1), (320 if pf else 256, 1, 1), CS + 2048)

if __name__ == "__main__":
    k, l = gen_k1(kidx=0, stamps=True)
    emit_file("k1.s", [l], [k])
```

```python
from asmlib import *
from layout import *
from k4 import weave_at, MF
import struct
def fbits(x): return struct.unpack("<I", struct.pack("<f", x))[0]

def gen_k3(name="k3_kernel", kidx=2, stamps=False, aux_w="", aux_h="", aux_o="", npf=0, pfaux='', pfd=2, pfn=288, pfw=4, D=6, D0=3, L=4, dbg=''):
    NS = 32; NB = 8
    k = K(name, vgpr=184, agpr=96)
    END = k.label("end")
    ACC = 56
    def acc(fb, db): return ACC + (fb * 3 + db) * 4
    BF = 152
    def bf(fb): return BF + fb * 4
    VH = 2
    VW = 4
    VT = 8
    BI = 16
    VU = 32
    VX = 38
    T0 = 40
    def abuf(n, db): return (n % NB) * 12 + db * 4
    nwg = 216 + npf
    HELP = k.label("help")
    k(f"s_cmp_ge_u32 s2, 216\ns_cbranch_scc1 {HELP if npf else END}")
    if stamps: stamp_begin(k)
    k(f"""
    s_load_dwordx4 s[4:7], s[0:1], 32          ; w1, b1
    s_load_dwordx2 s[10:11], s[0:1], 80        ; ws
    v_lshrrev_b32 v40, 6, v0
    v_and_b32 v1, 63, v0                       ; lane
    s_and_b32 s33, s2, 7
    v_readfirstlane_b32 s3, v40                ; wave
    s_mul_i32 s33, s33, 27
    s_lshr_b32 s34, s2, 3
    s_add_u32 s33, s33, s34                    ; tau
    s_mul_i32 s34, s33, 171
    s_lshr_b32 s34, s34, 10
    s_mul_i32 s35, s34, 6
    s_sub_u32 s35, s33, s35                    ; dt
    s_lshr_b32 s36, s3, 1                      ; kh
    s_and_b32 s37, s3, 1                       ; mh
    v_lshlrev_b32 v{VH}, 4, v1
    v_lshrrev_b32 v40, 4, v1                   ; g = l>>4
    v_and_b32 v41, 15, v1                      ; i
    s_lshl_b32 s38, s37, 4
    v_add_u32 v42, s38, v40
    s_movk_i32 s39, 9216
    v_mul_u32_u24 v42, s39, v42
    v_lshlrev_b32 v43, 1, v40
    v_xor_b32 v43, v43, v41
    v_xor_b32 v44, 8, v43
    v_lshl_add_u32 v{VW}, v43, 4, v42
    v_lshl_add_u32 v{VW+1}, v44, 4, v42
    v_add_u32 v{VW+2}, {2*(4*9216-1024)}, v{VW}
    v_add_u32 v{VW+1}, {4*9216-1024}, v{VW+1}
    v_add_u32 v{VW+3}, {2*(4*9216-1024)}, v{VW+1}
    s_mul_i32 s40, s36, 36
    s_mul_i32 s41, s35, 6
    s_add_u32 s40, s40, s41
    s_mul_i32 s41, s37, 3
    s_add_u32 s40, s40, s41
    s_lshl_b32 s40, s40, 10
    s_mul_i32 s41, s36, {32*9216}
    s_lshl_b32 s42, s34, 8
    s_add_u32 s41, s41, s42                    ; s41 = w1 soffset
    s_lshl_b32 s42, s36, 16
    s_lshl_b32 s43, s37, 12
    s_add_u32 s43, s43, s42
    s_waitcnt lgkmcnt(0)
    """)
    srd(k, 12, 4, 5, 2048 * 9216)
    srd(k, 16, 10, 11, HL_SZ, HL_OFF)
    def dma(n):
        out = []
        for q in range(4):
            g = []
            if q == 0: g += [f"s_add_u32 m0, s43, {(n % NB) * 8192}", "s_nop 0"]
            g.append(f"buffer_load_dwordx4 v{VW+q}, s[12:15], s41 offen offset:{q*1024} {aux_w} lds")
            if q == 3 and 'same' not in dbg: g.append(f"s_add_u32 s41, s41, {64*9216}")
            out.append(g)
        return out
    def hld(n):
        out = []
        for db in range(3):
            g = [f"buffer_load_dwordx4 {a(abuf(n,db),4)}, v{VH}, s[16:19], s40 offen offset:{db*1024} {aux_h}".rstrip()]
            if db == 2 and 'same' not in dbg: g.append(f"s_add_u32 s40, s40, {72*1024}")
            out.append(g)
        return out
    for g in dma(0) + hld(0): k(g)
    srd(k, 20, 6, 7, 9216)
    srd(k, 24, 10, 11, U_SZ, U_OFF)
    k(f"""
    s_lshl_b32 s44, s34, 8
    s_lshl_b32 s45, s36, 7
    s_add_u32 s44, s44, s45
    v_lshlrev_b32 v42, 3, v40
    """)
    for j in range(4):
        k(f"buffer_load_dwordx2 {v(T0+8+2*j,2)}, v42, s[20:23], s44 offen offset:{32*j}")
    for n in range(1, D0):
        for g in dma(n) + hld(n): k(g)
    k(f"""
    v_bfe_u32 v42, v1, 2, 4                    ; row
    v_and_b32 v43, 7, v42
    v_and_b32 v44, 3, v1
    v_lshlrev_b32 v44, 3, v44
    v_lshl_add_u32 v44, v42, 8, v44
    v_add_u32 v44, s42, v44
    s_xor_b32 s45, s36, 1
    s_lshl_b32 s45, s45, 2
    v_xor_b32 v43, s45, v43
    """)
    for fb in range(8):
        k(f"v_xor_b32 v45, {fb}, v43\nv_lshl_add_u32 v{VT+fb}, v45, 5, v44")
    k(f"""
    s_lshl_b32 s48, s34, 1
    s_add_u32 s48, s48, s36
    s_mul_i32 s48, s48, 72
    s_mul_i32 s45, s35, 6
    s_add_u32 s48, s48, s45
    s_mul_i32 s45, s37, 3
    s_add_u32 s48, s48, s45
    s_lshl_b32 s48, s48, 10
    s_add_u32 s49, s48, 36864
    """)
    k(f"""
    s_mul_i32 s45, s37, 12288
    s_add_u32 s46, s45, s42
    s_xor_b32 s47, s46, 0x10000
    v_add_u32 v{VX}, s46, v{VH}
    v_add_u32 v{VX+1}, s47, v{VH}
    """)
    def reads(t):
        n, fb = divmod(t, 8)
        return [f"ds_read_b64_tr_b16 {v(bf(fb)+2*u,2)}, v{VT+fb} offset:{(n%NB)*8192 + u*4096}" for u in range(2)]
    def mfmas(t):
        n, fb = divmod(t, 8)
        out = []
        for db in range(3):
            c = v(acc(fb, db), 4)
            if n == 0: c = "0" if fb < 4 else v(BI + 4 * (fb - 4), 4)
            out.append(f"{MF} {v(acc(fb,db),4)}, {v(bf(fb),4)}, {a(abuf(n,db),4)}, {c}")
        return out
    k(f"s_waitcnt vmcnt({7*(D0-1)})")
    for j in range(4):
        for r in range(2):
            k(f"v_lshlrev_b32 v{BI+4*j+2*r}, 16, v{T0+8+2*j+r}\nv_and_b32 v{BI+4*j+2*r+1}, 0xffff0000, v{T0+8+2*j+r}")
    k("s_barrier")
    if stamps: stamp_mid(k, 0)
    for t in range(L): k(reads(t))
    issued = [n for n in range(D0) for _ in range(7)]
    nxt = D0
    pend = []
    for t in range(NS * 8):
        n, fb = divmod(t, 8)
        pre = []
        left = min(L, NS * 8 - t)
        pre.append(f"s_waitcnt lgkmcnt({2*(left-1)})")
        side = []
        if fb == 8 - L and n + 1 < NS:
            cnt = sum(1 for x in issued if x > n + 1)
            assert all(st > n + 1 for st, _ in pend) and cnt < 64
            bar = [f"s_waitcnt vmcnt({cnt})"] + ([] if 'nobar' in dbg else ["s_barrier"])
            todo = 2 if nxt - n < D else 1
            for _ in range(todo):
                if nxt < NS and nxt - NB <= n - 1 and 'noload' not in dbg:
                    pend += [(nxt, g) for g in dma(nxt) + hld(nxt)]
                    nxt += 1
            per = -(-len(pend) // 8)
        else:
            bar = []
        m = mfmas(t)
        r = reads(t + L) if t + L < NS * 8 else []
        ld = []
        if pend:
            ld, pend = pend[:per], pend[per:]
            issued += [st for st, _ in ld]
        ld = [g for _, g in ld]
        if n == NS - 1 and fb >= 4:
            ld = [[f"ds_write_b128 v{VX}, {v(acc(fb-4,db),4)} offset:{((fb-4)*3+db)*1024}"] for db in range(3)]
            pre = [f"s_waitcnt lgkmcnt({2*(left-1) + 3*(fb-4)})"]
        k(pre)
        k(m[0]); k(bar); k(r[:1]);
        for g in ld[:1]: k(g)
        k(m[1]); k(r[1:])
        for g in ld[1:2]: k(g)
        k(m[2])
        for g in ld[2:]: k(g)
    if stamps: stamp_mid(k, 1)
    k("s_waitcnt lgkmcnt(0)\ns_barrier")
    for fb in range(4):
        for db in range(3):
            k(f"ds_read_b128 {v(acc(fb,db),4)}, v{VX+1} offset:{(fb*3+db)*1024}")
    c1 = -2.0 * 0.7978845608028654 * 1.4426950408889634
    k(f"""
    s_mov_b32 s50, {fbits(c1)}
    s_mov_b32 s51, {fbits(c1)}
    s_mov_b32 s52, {fbits(c1 * 0.044715)}
    s_mov_b32 s53, {fbits(c1 * 0.044715)}
    s_mov_b32 s54, 1.0
    s_mov_b32 s55, 1.0
    v_mov_b32 v{T0}, s50
    v_mov_b32 v{T0+1}, s50
    """)
    if stamps: stamp_mid(k, 2)
    order = [(m_, db) for m_ in range(2) for db in range(3)]
    for (m_, db) in order:
        k(f"s_waitcnt lgkmcnt({11 - ((2*m_+1)*3+db)})")
        xs = []
        for fb in (2 * m_, 2 * m_ + 1):
            for h in (0, 2):
                xs.append((acc(fb + 4, db) + h, acc(fb, db) + h))
        for (x, t) in xs: k(f"v_pk_add_f32 {v(x,2)}, {v(x,2)}, {v(t,2)}")
        for (x, t) in xs: k(f"v_pk_mul_f32 {v(t,2)}, {v(x,2)}, {v(x,2)}")
        for (x, t) in xs: k(f"v_pk_fma_f32 {v(t,2)}, {v(t,2)}, s[52:53], {v(T0,2)}")
        for (x, t) in xs: k(f"v_pk_mul_f32 {v(t,2)}, {v(t,2)}, {v(x,2)}")
        for (x, t) in xs: k(f"v_exp_f32 v{t}, v{t}\nv_exp_f32 v{t+1}, v{t+1}")
        for (x, t) in xs: k(f"v_pk_add_f32 {v(t,2)}, {v(t,2)}, s[54:55]")
        for (x, t) in xs: k(f"v_rcp_f32 v{t}, v{t}\nv_rcp_f32 v{t+1}, v{t+1}")
        for (x, t) in xs: k(f"v_pk_mul_f32 {v(x,2)}, {v(x,2)}, {v(t,2)}")
        o = acc(2 * m_, db)
        for i, (x, t) in enumerate(xs): k(f"v_cvt_pk_bf16_f32 v{o+i}, v{x}, v{x+1}")
        k(f"buffer_store_dwordx4 {v(o,4)}, v{VH}, s[24:27], s{48+m_} offen offset:{db*1024} {aux_o}".rstrip())
    if stamps: stamp_end(k, kidx)
    k(f"{END}:\ns_endpgm")
    if npf:
        LP = k.label("pf")
        k(f"""
        {HELP}:
        s_cmp_ge_u32 s2, 256
        s_cbranch_scc1 {END}
        """)
        if stamps: stamp_begin(k)
        k(f"""
        s_load_dwordx2 s[4:5], s[0:1], 48
        v_lshrrev_b32 v2, 6, v0
        v_and_b32 v1, 63, v0
        s_and_b32 s33, s2, 7
        v_readfirstlane_b32 s3, v2
        s_sub_u32 s34, s2, 216
        s_lshr_b32 s34, s34, 3
        s_mul_i32 s34, s34, {pfw}
        s_add_u32 s34, s34, s3                     ; 0..19
        s_cmp_ge_u32 s3, {pfw}
        s_cbranch_scc1 {END}
        v_lshrrev_b32 v2, 4, v1
        v_and_b32 v3, 15, v1
        v_lshlrev_b32 v3, 7, v3
        v_lshl_add_u32 v3, v2, 12, v3
        s_lshr_b32 s35, s33, 1
        s_mul_i32 s35, s35, {1152 * 4096}
        s_and_b32 s33, s33, 1
        s_lshl_b32 s33, s33, 11
        s_add_u32 s33, s33, s35
        s_lshl_b32 s35, s34, 14
        s_add_u32 s33, s33, s35
        s_waitcnt lgkmcnt(0)
        """)
        srd(k, 12, 4, 5, 4608 * 4096)
        k(f"""
        {LP}:
        buffer_load_dword v8, v3, s[12:15], s33 offen {pfaux}
        s_add_u32 s33, s33, {5 * pfw * 16384}
        s_add_u32 s34, s34, {5 * pfw}
        s_waitcnt vmcnt({pfd - 1})
        s_cmp_lt_u32 s34, {pfn}
        s_cbranch_scc1 {LP}
        """)
        if stamps: stamp_end(k, kidx)
        k("s_endpgm")
    return k, (name, (nwg, 1, 1), (256, 1, 1), 131072)

if __name__ == "__main__":
    k, l = gen_k3(kidx=0, stamps=True)
    emit_file("k3.s", [l], [k])
```

```python
from asmlib import *
from layout import *

def gen_k4(name="k4_kernel", kidx=3, stamps=False, aux_w="", aux_u="", aux_o="", D=4, LA=5, BS=1, P=2,
           dbg="", xpos=8, aux_x="sc1", nph=1, D0=None, ramp=1.25):
    NK = 36; NB = 8; SLB = 9216
    D0 = D0 or D
    k = K(name, vgpr=256)
    sb = SB(k)
    END = k.label("end")
    VL = 2
    VW = 3
    VA = 5
    VT = 8
    VS8 = 12; VO = 13; VO8 = 15; VB2 = 16; VF = 17
    T = 20
    ACC = 40
    def acc(j, nb): return ACC + (j * 2 + nb) * 4
    AF = 112
    def af(t): return AF + (t % 8) * 4
    BF = 144
    def bf(n, nb): return BF + ((n % 4) * 2 + nb) * 4
    HRF = 176
    SEL = 188; B2F = 194; ONE = 200
    PK = 204
    XB = 131072
    k(f"s_cmp_ge_u32 s2, 256\ns_cbranch_scc1 {END}")
    if stamps: stamp_begin(k)
    k(f"""
    s_load_dwordx4 s[4:7], s[0:1], 48          ; w2, b2
    s_load_dwordx2 s[10:11], s[0:1], 80        ; ws
    s_load_dwordx2 s[8:9], s[0:1], 64          ; out
    v_lshrrev_b32 v{T}, 6, v0
    v_and_b32 v1, 63, v0                       ; lane
    s_bfe_u32 s32, s2, 0x20001                 ; kq
    v_readfirstlane_b32 s3, v{T}               ; wave
    s_bfe_u32 s33, s2, 0x20003                 ; T
    s_and_b32 s34, s2, 1
    s_lshl_b32 s34, s34, 3
    s_lshr_b32 s35, s2, 5
    s_add_u32 s34, s34, s35                    ; st
    v_lshrrev_b32 v{T}, 4, v1                  ; g
    v_and_b32 v{T+1}, 15, v1                   ; i
    v_lshlrev_b32 v{T+2}, 1, v{T}
    v_xor_b32 v{T+2}, v{T+2}, v{T+1}
    v_lshlrev_b32 v{T+3}, 12, v{T}
    v_lshl_add_u32 v{VW}, v{T+2}, 4, v{T+3}
    v_xor_b32 v{VW+1}, 0x80, v{VW}
    v_add_u32 v{VW+1}, {4*4096 - 1024}, v{VW+1}
    v_lshlrev_b32 v{VL}, 4, v1
    s_mul_i32 s36, s32, 144
    s_add_u32 s36, s36, s3
    s_lshl_b32 s36, s36, 15
    s_lshl_b32 s37, s34, 8
    s_add_u32 s36, s36, s37                    ; s36 = w2 soffset
    s_mul_i32 s37, s32, {36*36}
    s_mul_i32 s38, s33, 9
    s_add_u32 s37, s37, s38
    s_mul_i32 s39, s3, 36
    s_add_u32 s39, s39, s37
    s_add_u32 s39, s39, 10
    s_lshl_b32 s39, s39, 10
    s_add_u32 s38, s3, s32
    s_and_b32 s38, s38, 3
    s_lshl_b32 s38, s38, 1
    s_add_u32 s37, s37, s38
    s_lshl_b32 s37, s37, 10                    ; s37 = U soffset
    s_lshl_b32 s40, s3, 12
    s_lshl_b32 s41, s3, 10
    s_add_u32 s41, s41, {XB}
    s_mov_b32 m0, s40
    s_mov_b32 s14, {4608*4096}
    s_mov_b32 s15, 0x20000
    s_mov_b32 s18, {U_SZ + 2048}
    s_mov_b32 s19, 0x20000
    s_waitcnt lgkmcnt(0)
    s_mov_b32 s12, s4
    s_mov_b32 s13, s5
    s_add_u32 s16, s10, {U_OFF - 2048}
    s_addc_u32 s17, s11, 0
    """)
    S = []
    for n in range(NK):
        same = "same" in dbg
        pre = [f"s_add_u32 m0, s40, {(n % NB) * 16384}"] if n else []
        S.append((pre, f"buffer_load_dwordx4 v{VW}, s[12:15], s36 offen {aux_w} lds", [], n))
        S.append(([], f"buffer_load_dwordx4 v{VW+1}, s[12:15], s36 offen offset:1024 {aux_w} lds", [] if same else ["s_add_u32 s36, s36, 131072"], n))
        S.append(([], f"buffer_load_dwordx4 v{VL}, s[16:19], s37 offen offset:2048 {aux_u} lds", [], n))
        S.append(([], f"buffer_load_dwordx4 v{VL}, s[16:19], s37 offen offset:3072 {aux_u} lds", [] if same else ["s_add_u32 s37, s37, 36864"], n))
        if n % 4 == 0:
            S.append(([f"s_add_u32 m0, s41, {((n // 4) % 3) * 4096}"], f"buffer_load_dwordx4 v{VL}, s[16:19], s39 offen {aux_u} lds", [] if same else [f"s_add_u32 s39, s39, {4*36864}"], n))
    if "noU" in dbg: S = [x if (x[3] < D or "s[12:15]" in x[1]) else (x[0], "s_nop 0", x[2], x[3]) for x in S]
    if "noW" in dbg: S = [x if (x[3] < D or "s[16:19]" in x[1]) else (x[0], "s_nop 0", x[2], x[3]) for x in S]
    NL = len(S)
    ptr = [0]
    def load(free, nop=False):
        pre, ins, post, n = S[ptr[0]]
        assert n - NB <= free, (n, free)
        assert n % 4 or (n // 4 - 3) * 4 + 3 <= free
        ptr[0] += 1
        sb.vm(ins, n); k(post)
        if ins.startswith("s_nop"): sb.q["vmcnt"].pop()
        if ptr[0] < NL and S[ptr[0]][0]:
            k(S[ptr[0]][0])
            if nop: k("s_nop 0")
    su = []
    def add(txt):
        for l in txt.strip("\n").split("\n"):
            l = l.split(";")[0].strip()
            if not l: continue
            if l.startswith("s_addc"): su[-1] = su[-1] + "\n" + l
            else: su.append(l)
    add(f"""
    v_add_u32 v{VA}, 0x10000, v{VL}
    v_add_u32 v{VA+1}, {XB}, v{VL}
    v_bfe_u32 v{T+2}, v1, 2, 3                 ; row & 7
    v_lshrrev_b32 v{T+3}, 5, v1
    v_lshlrev_b32 v{T+3}, 12, v{T+3}
    v_lshl_add_u32 v{T+3}, v{T+2}, 8, v{T+3}
    v_and_b32 v{T+4}, 3, v1
    v_lshl_add_u32 v{T+3}, v{T+4}, 3, v{T+3}
    s_lshl_b32 s42, s3, 1
    v_xor_b32 v{T+2}, s42, v{T+2}
    v_lshl_add_u32 v{VT}, v{T+2}, 5, v{T+3}
    v_xor_b32 v{VT+2}, 32, v{VT}
    v_add_u32 v{VT+1}, 0x10000, v{VT}
    v_add_u32 v{VT+3}, 0x10000, v{VT+2}
    """)
    nfirst = len(su)
    add(f"""
    s_add_u32 s20, s10, {HR_OFF}
    s_addc_u32 s21, s11, 0
    s_mov_b32 s22, {XQ_OFF + XQ_SZ - HR_OFF}
    s_mov_b32 s23, 0x20000
    s_mov_b32 s24, s6
    s_mov_b32 s25, s7
    s_mov_b32 s26, 4096
    s_mov_b32 s27, 0x20000
    s_mov_b32 s28, s8
    s_mov_b32 s29, s9
    s_mov_b32 s30, {2048*1152}
    s_mov_b32 s31, 0x20000
    s_lshl_b32 s42, s34, 2
    s_add_u32 s42, s42, s3
    s_lshl_b32 s43, s42, 6
    s_mul_i32 s44, s42, {32*1152}
    s_mul_i32 s45, s33, 288
    s_add_u32 s44, s44, s45
    s_add_u32 s45, s44, 256
    s_lshl_b32 s46, s32, 6
    s_add_u32 s44, s44, s46
    s_mul_i32 s42, s42, 36
    s_mul_i32 s46, s33, 9
    s_add_u32 s42, s42, s46
    s_add_u32 s46, s42, 8
    s_lshl_b32 s46, s46, 10
    s_lshl_b32 s47, s32, 1
    s_add_u32 s42, s42, s47
    s_lshl_b32 s42, s42, 10
    s_lshr_b32 s47, s2, 3
    s_lshl_b32 s47, s47, 1
    s_and_b32 s48, s2, 1
    s_add_u32 s47, s47, s48
    s_lshl_b32 s48, s47, 2
    s_add_u32 s48, s48, s3
    s_lshl_b32 s48, s48, 7
    s_add_u32 s48, s48, {FLG_OFF - HR_OFF}
    s_lshl_b32 s49, s32, 2
    s_add_u32 s49, s49, s48
    s_mul_i32 s47, s47, {12*SLB}
    s_add_u32 s47, s47, {XQ_OFF - HR_OFF}
    s_lshl_b32 s54, s3, 11
    """)
    for i in (1, 2, 3):
        add(f"""
        s_add_u32 s55, s32, {i}
        s_and_b32 s55, s55, 3
        s_mul_i32 s55, s55, {3*SLB}
        s_add_u32 s55, s55, s47
        s_add_u32 s55, s55, s54
        s_add_u32 s{49+i}, s55, {(i-1)*SLB}
        """)
    add(f"""
    s_sub_u32 s55, s3, s32
    s_add_u32 s55, s55, 3
    s_and_b32 s55, s55, 3
    s_mul_i32 s56, s3, 3
    s_add_u32 s55, s55, s56
    s_mul_i32 s55, s55, {SLB}
    s_add_u32 s55, s55, s47
    s_add_u32 s53, s55, 8192
    s_mul_i32 s55, s32, {3*SLB}
    s_add_u32 s55, s55, s47
    s_add_u32 s56, s55, s54
    s_add_u32 s57, s56, {SLB}
    s_add_u32 s58, s56, {2*SLB}
    s_add_u32 s59, s55, 8192
    s_add_u32 s60, s59, {SLB}
    s_add_u32 s61, s59, {2*SLB}
    s_cmp_eq_u32 s3, s32
    s_cselect_b32 s62, 0x40000000, 0
    v_or_b32 v{VS8}, s62, v{VL}
    v_mov_b32 v{VF}, 0
    s_movk_i32 s63, 1152
    v_mul_u32_u24 v{T+2}, s63, v{T+1}
    v_lshrrev_b32 v{T+3}, 1, v{T}
    v_lshl_add_u32 v{T+2}, v{T+3}, 4, v{T+2}
    v_and_b32 v{T+3}, 1, v{T}
    v_lshl_add_u32 v{VO}, v{T+3}, 5, v{T+2}
    v_add_u32 v{VO+1}, {16*1152}, v{VO}
    v_mul_u32_u24 v{T+3}, {16*1152}, v{T+3}
    v_add_u32 v{VO8}, v{T+3}, v{T+2}
    v_cmp_gt_u32 vcc, 16, v1
    v_lshlrev_b32 v{T+2}, 1, v1
    v_mov_b32 v{T+3}, 0x40000000
    v_mov_b32 v{B2F+1}, 0
    v_cndmask_b32 v{VB2}, v{T+3}, v{T+2}, vcc
    v_mov_b32 v{B2F+2}, 0
    v_mov_b32 v{B2F+3}, 0
    v_mov_b32 v{B2F+4}, 0
    v_mov_b32 v{ONE}, 0x3f803f80
    v_mov_b32 v{ONE+1}, 0x3f803f80
    v_mov_b32 v{ONE+2}, 0x3f803f80
    v_mov_b32 v{ONE+3}, 0x3f803f80
    v_lshrrev_b32 v{T+2}, 2, v{T+1}
    v_cmp_eq_u32 vcc, v{T+2}, v{T}
    v_and_b32 v{T+3}, 1, v{T+1}
    v_lshlrev_b32 v{T+3}, 4, v{T+3}
    v_mov_b32 v{T+4}, 0x3f80
    v_lshlrev_b32 v{T+4}, v{T+3}, v{T+4}
    v_cndmask_b32 v{T+4}, 0, v{T+4}, vcc
    v_and_b32 v{T+3}, 2, v{T+1}
    v_cmp_eq_u32 vcc, 0, v{T+3}
    v_mov_b32 v{SEL+2}, 0
    v_mov_b32 v{SEL+3}, 0
    v_cndmask_b32 v{SEL}, 0, v{T+4}, vcc
    v_cndmask_b32 v{SEL+1}, v{T+4}, 0, vcc
    v_mov_b32 v{SEL+4}, v{SEL}
    v_mov_b32 v{SEL+5}, v{SEL+1}
    """)
    i = su.index("s_cmp_eq_u32 s3, s32"); su[i:i+2] = [su[i] + "\n" + su[i+1]]
    npre = sum(1 for x in S if x[3] < D0)
    nD = sum(1 for x in S if x[3] < D)
    skip = 4
    per = -(-len(su) // (npre - skip))
    for i in range(npre):
        load(-1, nop=(i < skip - 1 or not su))
        if i >= skip - 1:
            k(su[:per]); su = su[per:]
    k(su)
    JOIN = k.label("join")
    def mainloop(ph):
        units = [(n, j) for n in range(NK - P) for j in range(9)]
        units += [(n, j) for j in (2, 3, 4, 5, 6, 7, 8, 0, 1) for n in range(NK - P, NK)]
        NU = len(units)
        def rdA(t):
            n, j = units[t]
            if j == 8: return (f"ds_read_b128 {v(af(t),4)}, v{VA+1} offset:{((n//4)%3)*4096 + (n%4)*1024}", ("A", t))
            s_ = n % NB
            return (f"ds_read_b128 {v(af(t),4)}, v{VA if s_ >= 4 else VL} offset:{(s_%4)*16384 + (j>>1)*4096 + 2048 + (j&1)*1024}", ("A", t))
        def rdB(n):
            s_ = n % NB
            return [(f"ds_read_b64_tr_b16 {v(bf(n,nb)+2*u,2)}, v{VT+2*nb+(s_>=4)} offset:{(s_%4)*16384 + u*8192}", ("B", n)) for nb in range(2) for u in range(2)]
        landed = [-1]
        free = [-1]
        def barrier(upto, cur):
            sb.need("vmcnt", lambda tg: isinstance(tg, int) and tg <= upto)
            assert all(x[3] > upto for x in S[ptr[0]:]) or "noload" in dbg
            if "nobar" not in dbg: k("s_barrier")
            landed[0] = upto; free[0] = cur - 1
        def grp(n):
            if n >= NK - P: return NK - 1
            return min((n // BS) * BS + BS - 1, NK - P - 1)
        barrier(grp(0), 0)
        if stamps: stamp_mid(k, 0)
        for x in rdB(0): sb.ds(*x)
        for t in range(LA): sb.ds(*rdA(t))
        extra = [f"buffer_load_dwordx4 {v(HRF,4)}, v{VL}, s[20:23], s42 offen",
                 f"buffer_load_dwordx4 {v(HRF+4,4)}, v{VL}, s[20:23], s42 offen offset:1024",
                 f"buffer_load_dwordx4 {v(HRF+8,4)}, v{VL}, s[20:23], s46 offen",
                 f"buffer_load_ushort v{B2F}, v{VB2}, s[24:27], s43 offen",
                 f"buffer_load_ushort v{B2F+5}, v{VB2}, s[24:27], s43 offen offset:32"]
        wq = []
        def put(ins):
            if ins.startswith("v_"): k(ins)
            else: sb.vm(ins, "E")
        def flush(maxn):
            c = 0
            while wq and c < maxn and len(k.lines) - wq[0][0] >= 8:
                put(wq.pop(0)[1]); c += 1
        bq = []; bdone = {0}
        per_k = NL / NK
        for t, (n, j) in enumerate(units):
            cur = min(n, NK - P)
            sb.needds(("A", t), ("B", n))
            side = []
            for nb in range(2):
                c = "0" if n == 0 else v(acc(j, nb), 4)
                k(f"{MF} {v(acc(j,nb),4)}, {v(af(t),4)}, {v(bf(n,nb),4)}, {c}")
                if n == NK - 1 and j >= 2 and nb == 1 and "nox" not in dbg:
                    o = PK + 4 * (j - 2)
                    for x in range(4): wq.append((len(k.lines), f"v_cvt_pk_bf16_f32 v{o+x}, v{acc(j,0)+2*x}, v{acc(j,0)+2*x+1}"))
                    if j < 8: wq.append((0, f"buffer_store_dwordx4 {v(o,4)}, v{VL}, s[20:23], s{49 + j//2} offen offset:{(j&1)*1024} {aux_x}"))
                    else: wq.append((0, f"buffer_store_dwordx4 {v(o,4)}, v{VS8}, s[20:23], s53 offen {aux_x}"))
                if nb == 0 and t + LA < NU:
                    n2 = units[t + LA][0]
                    if n2 > landed[0]: barrier(grp(n2), cur)
                    for n3 in ([n2] if n2 < NK - P else range(NK - P, NK)):
                        if n3 not in bdone: bq += rdB(n3); bdone.add(n3)
                    if "halfA" in dbg and units[t + LA][1] % 2: sb.ds("s_nop 0", ("A", t + LA)); sb.q["lgkmcnt"].pop()
                    else: sb.ds(*rdA(t + LA))
                if nb == 1:
                    for _ in range(2):
                        if bq: sb.ds(*bq.pop(0))
                if "noload" not in dbg:
                    x_ = (2 * t + nb + 1 - ph) / 18.0
                    want = min(NL, int(min(npre + per_k * x_ * ramp, nD + per_k * x_) + 0.76))
                    if ptr[0] < want and S[ptr[0]][3] - NB <= free[0]: load(free[0])
                if n == xpos and nb == 0 and extra and j >= 2: sb.vm(extra.pop(0), "X")
                flush(2)
        assert ptr[0] == NL or "noload" in dbg
        if stamps: stamp_mid(k, 1)
        sb.needvm("X")
        tail = []
        for j in (0, 1, 8):
            for nb in range(2): tail.append(f"{MF} {v(acc(j,nb),4)}, {v(HRF+4*min(j,2),4)}, {v(SEL+2*nb,4)}, {v(acc(j,nb),4)}")
        for j in (0, 1, 8):
            for nb in range(2): tail.append(f"{MF} {v(acc(j,nb),4)}, {v(ONE,4)}, {v(B2F+2*nb,4)}, {v(acc(j,nb),4)}")
        main = [x for x in tail if v(acc(8,0),4) not in x and v(acc(8,1),4) not in x]
        for x in main: k(x); flush(2)
        while wq:
            d = 8 - (len(k.lines) - wq[0][0])
            if d > 0: k(f"s_nop {d-1}"); wq[0] = (wq[0][0] - d + 1, wq[0][1])
            put(wq.pop(0)[1])
        return tail, main
    labs = [k.label("ph") for _ in range(nph)]
    for i in range(1, nph): k(f"s_and_b32 s63, s3, {nph-1}\ns_cmp_eq_u32 s63, {i}\ns_cbranch_scc1 {labs[i]}")
    import copy
    st0 = (copy.deepcopy(sb.q), dict(sb.done), ptr[0])
    for i in range(nph):
        sb.q = copy.deepcopy(st0[0]); sb.done = dict(st0[1]); ptr[0] = st0[2]
        if i: k(f"{labs[i]}:")
        tail, main = mainloop(i * 4 // nph)
        if i + 1 < nph: k(f"s_branch {JOIN}")
    k(f"{JOIN}:")
    LS = k.label("spin"); LG = k.label("go"); L8 = k.label("no8")
    k("s_waitcnt vmcnt(0)")
    if stamps: stamp_mid(k, 2)
    k(f"buffer_store_dword v{VF}, v{VF}, s[20:23], s49 offen sc1")
    for x in tail:
        if x not in main: k(x)
    k(f"""
    s_mov_b32 s63, 0
    {LS}:
    buffer_load_dwordx4 {v(T,4)}, v{VF}, s[20:23], s48 offen sc1
    s_add_u32 s63, s63, 1
    s_waitcnt vmcnt(0)
    v_or3_b32 v{T}, v{T}, v{T+1}, v{T+2}
    v_or_b32 v{T}, v{T}, v{T+3}
    s_cmp_ge_u32 s63, {1 if 'nox' in dbg else 0x40000}
    v_cmp_ne_u32 vcc, 0, v{T}
    s_cbranch_scc1 {LG}
    s_cbranch_vccnz {LS}
    {LG}:
    """)
    if stamps: stamp_mid(k, 3)
    def rx(s_, j): return acc(2, 0) + 4 * (j * 3 + s_)
    for j in range(2):
        for s_ in range(3):
            k(f"buffer_load_dwordx4 {v(rx(s_,j),4)}, v{VL}, s[20:23], s{56+s_} offen offset:{j*1024} sc1")
    def summ(j, jj, cnt):
        for s_ in range(3):
            k(f"s_waitcnt vmcnt({cnt - s_})")
            for nb in range(2): k(f"{MF} {v(acc(j,nb),4)}, {v(SEL+2*nb,4)}, {v(rx(s_,jj),4)}, {v(acc(j,nb),4)}")
    def pack(dst, a0, a1):
        k(f"""
        v_cvt_pk_bf16_f32 v{dst}, v{a0}, v{a0+1}
        v_cvt_pk_bf16_f32 v{dst+2}, v{a1}, v{a1+1}
        v_cvt_pk_bf16_f32 v{dst+1}, v{a0+2}, v{a0+3}
        v_cvt_pk_bf16_f32 v{dst+3}, v{a1+2}, v{a1+3}
        s_nop 0
        v_permlane16_swap_b32 v{dst}, v{dst+2}
        v_permlane16_swap_b32 v{dst+1}, v{dst+3}
        """)
    def finish():
        for nb in range(2):
            pack(BF + 4 * nb, acc(0, nb), acc(1, nb))
            k(f"buffer_store_dwordx4 {v(BF+4*nb,4)}, v{VO+nb}, s[28:31], s44 offen {aux_o}".rstrip())
    k(f"s_cmp_lg_u32 s3, s32\ns_cbranch_scc1 {L8}")
    for s_ in range(3):
        k(f"buffer_load_dwordx4 {v(rx(s_,2),4)}, v{VL}, s[20:23], s{59+s_} offen sc1")
    summ(0, 0, 8); summ(1, 1, 5); summ(8, 2, 2)
    k("s_nop 1")
    finish()
    pack(BF + 8, acc(8, 0), acc(8, 1))
    k(f"buffer_store_dwordx4 {v(BF+8,4)}, v{VO8}, s[28:31], s45 offen {aux_o}".rstrip())
    if stamps: stamp_end(k, kidx)
    k(f"s_endpgm\n{L8}:")
    summ(0, 0, 5); summ(1, 1, 2)
    k("s_nop 7")
    finish()
    if stamps: stamp_end(k, kidx)
    k(f"{END}:\ns_endpgm")
    return k, (name, (256, 1, 1), (256, 1, 1), XB + 12288)

if __name__ == "__main__":
    from hazchk import check
    k, l = gen_k4(kidx=0, stamps=True)
    emit_file("k4.s", [l], [k]); check("k4.s")
```

```python
NAME = "sequential_preLN__linear_attn_block__mixer_token_mlp__prompt"
STAMP = 200 << 20

class K:
    def __init__(self, name, vgpr=256, agpr=0, sgpr=102):
        self.name = name; self.lines = []; self.vgpr = vgpr; self.agpr = agpr; self.sgpr = sgpr
        self.nlab = 0
        self.tag = name.replace("_kernel", "")[-10:]
    def __call__(self, s):
        if isinstance(s, (list, tuple)):
            for x in s: self(x)
            return
        for l in s.strip("\n").split("\n"):
            l = l.strip()
            if not l: continue
            self.lines.append(l if l.endswith(":") else "    " + l)
    def label(self, base="L"):
        self.nlab += 1
        return f"L{self.tag}_{base}{self.nlab}"
    def text(self):
        s = f".text\n.globl {self.name}\n.p2align 8\n.type {self.name},@function\n{self.name}:\n"
        s += "\n".join(self.lines) + "\n"
        return s
    def desc(self):
        acc = (self.vgpr + 3) // 4 * 4
        nfv = acc + self.agpr if self.agpr else self.vgpr
        s = f""".amdhsa_kernel {self.name}
  .amdhsa_next_free_vgpr {nfv}
  .amdhsa_next_free_sgpr {self.sgpr}
  .amdhsa_accum_offset {acc}
  .amdhsa_group_segment_fixed_size 0
  .amdhsa_kernarg_size 88
  .amdhsa_user_sgpr_count 2
  .amdhsa_user_sgpr_kernarg_segment_ptr 1
  .amdhsa_system_sgpr_workgroup_id_x 1
  .amdhsa_float_denorm_mode_32 3
.end_amdhsa_kernel
"""
        return s

def emit_file(path, launches, kernels, header=""):
    s = header
    for (n, g, b, l) in launches:
        s += f"; @launch kernel={n} grid=({g[0]},{g[1]},{g[2]}) block=({b[0]},{b[1]},{b[2]}) lds={l}\n"
    s += '.amdgcn_target "amdgcn-amd-amdhsa--gfx950"\n'
    for k in kernels: s += k.text()
    s += "Lcode_end:\n"
    s += '.section .rodata,"a"\n'
    for k in kernels: s += ".p2align 6\n" + k.desc()
    open(path, "w").write(s)

def v(a, n=1): return f"v{a}" if n == 1 else f"v[{a}:{a+n-1}]"
def a(x, n=1): return f"a{x}" if n == 1 else f"a[{x}:{x+n-1}]"
def s(x, n=1): return f"s{x}" if n == 1 else f"s[{x}:{x+n-1}]"

def weave(main, side, start=0, end=None):
    end = len(main) if end is None else end
    n = end - start
    out = []
    slots = [[] for _ in main]
    m = len(side)
    for i, it in enumerate(side):
        pos = start + (i * n) // m if m else start
        slots[pos].append(it)
    for ins, sl in zip(main, slots):
        out.append(ins)
        for it in sl:
            out.extend(it if isinstance(it, (list, tuple)) else [it])
    return out

def srd(k, r, lo, hi, size, add=0):
    if add:
        k(f"s_add_u32 s{r}, s{lo}, {add}\ns_addc_u32 s{r+1}, s{hi}, 0")
    else:
        k(f"s_mov_b32 s{r}, s{lo}\ns_mov_b32 s{r+1}, s{hi}")
    k(f"s_mov_b32 s{r+2}, {size}\ns_mov_b32 s{r+3}, 0x20000")

def stamp_begin(k):
    k("s_memrealtime s[90:91]\ns_memtime s[92:93]")
def stamp_mid(k, i):
    k(f"s_memtime s[{70+2*i}:{71+2*i}]")
def stamp_end(k, kidx):
    L = k.label("nost")
    k(f"""
    s_waitcnt vmcnt(0)
    s_memrealtime s[94:95]
    s_memtime s[96:97]
    s_load_dwordx2 s[84:85], s[0:1], 80
    s_waitcnt lgkmcnt(0)
    s_add_u32 s84, s84, {STAMP + kidx * 65536}
    s_addc_u32 s85, s85, 0
    s_lshl_b32 s86, s2, 6
    s_mov_b64 exec, -1
    v_mov_b32 v1, s86
    v_mov_b32 v4, s90
    v_mov_b32 v5, s91
    v_mov_b32 v6, s94
    v_mov_b32 v7, s95
    v_mov_b32 v8, s92
    v_mov_b32 v9, s93
    v_mov_b32 v10, s96
    v_mov_b32 v11, s97
    v_mov_b32 v12, s70
    v_mov_b32 v13, s72
    v_mov_b32 v14, s74
    v_mov_b32 v15, s76
    v_mov_b32 v16, s78
    v_mov_b32 v17, s80
    v_mov_b32 v18, s82
    v_mov_b32 v19, s92
    v_cmp_eq_u32 vcc, 0, v0
    s_and_saveexec_b64 s[88:89], vcc
    s_cbranch_execz {L}
    global_store_dwordx4 v1, v[4:7], s[84:85]
    global_store_dwordx4 v1, v[8:11], s[84:85] offset:16
    global_store_dwordx4 v1, v[12:15], s[84:85] offset:32
    global_store_dwordx4 v1, v[16:19], s[84:85] offset:48
    {L}:
    """)

class SB:
    def __init__(self, k):
        self.k = k
        self.q = {"lgkmcnt": [], "vmcnt": []}
        self.done = {"lgkmcnt": 0, "vmcnt": 0}
        self.mx = {"lgkmcnt": 15, "vmcnt": 63}
    def op(self, c, ins, tag=None):
        self.k(ins); self.q[c].append(tag)
    def ds(self, ins, tag=None): self.op("lgkmcnt", ins, tag)
    def vm(self, ins, tag=None): self.op("vmcnt", ins, tag)
    def need(self, c, pred):
        q = self.q[c]
        last = -1
        for i in range(len(q) - 1, -1, -1):
            if pred(q[i]): last = i; break
        if last < self.done[c]: return
        n = min(len(q) - 1 - last, self.mx[c])
        self.k(f"s_waitcnt {c}({n})")
        self.done[c] = len(q) - n
    def needds(self, *tags): self.need("lgkmcnt", lambda t: t in tags)
    def needvm(self, *tags): self.need("vmcnt", lambda t: t in tags)
    def drain(self, c):
        if self.done[c] < len(self.q[c]):
            self.k(f"s_waitcnt {c}(0)"); self.done[c] = len(self.q[c])

import struct
def fbits(x): return struct.unpack("<I", struct.pack("<f", x))[0]
MF = "v_mfma_f32_16x16x32_bf16"

def pf_addr_w1(k, vt, vout, slam, sx):
    k(f"""
    v_add_u32 v{vt}, s{slam}, v1
    v_mul_hi_u32 v{vt+1}, v{vt}, s98
    v_mul_u32_u24 v{vt+1}, s99, v{vt+1}
    v_lshl_add_u32 v{vout}, v{vt}, 7, v{vt+1}
    """)
def helper_wave(k, what, plan, aux="", wgx="s_and_b32 s33, s2, 7", wgi="s_lshr_b32 s34, s2, 3", nwg=32, m0=0):
    off = {"w1": 32, "w2": 48}[what]
    k(f"""
    s_load_dwordx2 s[4:5], s[0:1], {off}
    v_and_b32 v1, 63, v0
    {wgx}
    {wgi}
    s_mov_b32 s98, {(1 << 32) // 9 + 1}
    s_movk_i32 s99, {9216 - 9 * 128}
    s_lshl_b32 s34, s34, 6
    s_mul_i32 s33, s33, {1152 if what == "w1" else 512}
    s_add_u32 s34, s34, {m0 * nwg * 64}
    v_lshrrev_b32 v2, 2, v1
    v_and_b32 v3, 3, v1
    v_lshlrev_b32 v3, 7, v3
    v_lshl_add_u32 v3, v2, 12, v3
    s_waitcnt lgkmcnt(0)
    """)
    srd(k, 12, 4, 5, 2048 * 9216)
    if what == "w2": k("s_lshl_b32 s34, s34, 10\ns_add_u32 s33, s33, s34")
    n = 0
    for i, c in enumerate(plan):
        for _ in range(c):
            if what == "w1":
                pf_addr_w1(k, 4, 6 + n % 2, 34, 33)
                k(f"buffer_load_dword v8, v{6 + n % 2}, s[12:15], s33 offen {aux}\ns_add_u32 s34, s34, {nwg*64}")
            else:
                k(f"buffer_load_dword v8, v3, s[12:15], s33 offen {aux}\ns_add_u32 s33, s33, {nwg * 65536}")
            n += 1
        if any(plan[i + 1:]): k("s_barrier")
    k("s_endpgm")

def helper_k1(k, plan, aux="", m0=0):
    k(f"""
    s_load_dwordx4 s[4:7], s[0:1], 0
    s_load_dwordx2 s[8:9], s[0:1], 32
    s_load_dwordx2 s[10:11], s[0:1], 80
    v_and_b32 v1, 63, v0
    s_and_b32 s33, s2, 7
    s_lshr_b32 s34, s2, 3
    s_mov_b32 s98, {(1 << 32) // 9 + 1}
    s_movk_i32 s99, {9216 - 9 * 128}
    s_mul_i32 s35, s34, {54 * 128}
    v_lshlrev_b32 v2, 7, v1
    v_add_u32 v2, s35, v2
    s_lshl_b32 s36, s33, 8
    s_lshl_b32 s37, s34, 3
    s_add_u32 s36, s36, s37
    s_sub_u32 s36, s36, 54
    v_add_u32 v3, s36, v1
    s_movk_i32 s37, 1152
    v_mul_lo_u32 v3, v3, s37
    v_cmp_gt_u32 vcc, 54, v1
    v_mov_b32 v10, 128
    v_mov_b32 v11, {64 * 3456}
    v_cndmask_b32 v2, v3, v2, vcc
    v_cndmask_b32 v10, v10, v11, vcc           ; step
    s_lshl_b32 s34, s34, 6
    s_add_u32 s34, s34, {m0 * 2048}
    s_mul_i32 s33, s33, 1152
    s_waitcnt lgkmcnt(0)
    v_mov_b32 v12, s4
    v_mov_b32 v13, s5
    v_mov_b32 v14, s6
    v_mov_b32 v15, s7
    v_cndmask_b32 v12, v12, v14, vcc
    v_cndmask_b32 v13, v13, v15, vcc
    v_mov_b32 v3, 0
    v_mov_b32 v11, 0
    v_lshl_add_u64 v[12:13], v[2:3], 0, v[12:13]
    s_mov_b32 s40, -1
    s_mov_b32 s41, 0x3fffffff
    """)
    srd(k, 12, 8, 9, 2048 * 9216)
    nz = 0
    if any("z" in c for c in plan):
        from layout import XQ_OFF, XQ_SZ
        srd(k, 16, 10, 11, XQ_SZ, XQ_OFF)
        k(f"""
        s_mul_i32 s38, s2, {27 * 1024}
        v_lshlrev_b32 v20, 4, v1
        v_mov_b32 v24, -1
        v_mov_b32 v25, -1
        v_mov_b32 v26, -1
        v_mov_b32 v27, -1
        """)
    n = 0; ns = 0
    for i, c in enumerate(plan):
        for ch in c:
            if ch == "s":
                k(f"""
                s_mov_b64 exec, s[40:41]
                global_load_dword v8, v[12:13], off
                v_lshl_add_u64 v[12:13], v[10:11], 0, v[12:13]
                s_mov_b64 exec, -1
                """)
                ns += 1
            elif ch == "z":
                for q in range(3): k(f"buffer_store_dwordx4 v[24:27], v20, s[16:19], s38 offen offset:{q * 1024} sc1")
                k("s_add_u32 s38, s38, 3072"); nz += 1
            elif ch == "c": code_pf(k, k.name, "Lcode_end", 16, 8, 44)
            elif ch == "d": code_pf(k, "k2_kernel", "k3_kernel", 16, 8, 44)
            elif ch == "w":
                pf_addr_w1(k, 4, 6 + n % 2, 34, 33)
                k(f"buffer_load_dword v8, v{6 + n % 2}, s[12:15], s33 offen {aux}\ns_add_u32 s34, s34, {32*64}")
                n += 1
            else: k(f"s_waitcnt vmcnt({ch})")
        if any(plan[i + 1:]): k("s_barrier")
    assert ns <= 9 and n + m0 <= 9 and nz in (0, 9)
    k("s_endpgm")

def code_pf(k, first, last, vt, vd, st, vlane=1, emit=None, n=32, wave=None):
    H = k.label("pc")
    k(f"""
    s_getpc_b64 s[{st}:{st+1}]
    {H}:
    s_add_u32 s{st}, s{st}, {first}-{H}
    s_addc_u32 s{st+1}, s{st+1}, {"-1" if first == k.name else "0"}
    s_lshr_b32 s{st+2}, s2, 3
    """)
    if wave is not None: k(f"s_lshl_b32 s{st+2}, s{st+2}, 2\ns_add_u32 s{st+2}, s{st+2}, s{wave}")
    k(f"""
    s_movk_i32 s{st+3}, {n * (4 if wave is not None else 1)}
    v_mov_b32 v{vt+2}, s{st+2}
    v_mad_u32_u24 v{vt+2}, v{vlane}, s{st+3}, v{vt+2}
    v_lshlrev_b32 v{vt+2}, 7, v{vt+2}
    v_cmp_gt_u32 vcc, {last}-{first}, v{vt+2}
    v_mov_b32 v{vt+3}, 0
    v_mov_b32 v{vt}, s{st}
    v_mov_b32 v{vt+1}, s{st+1}
    v_lshl_add_u64 v[{vt}:{vt+1}], v[{vt+2}:{vt+3}], 0, v[{vt}:{vt+1}]
    s_and_saveexec_b64 s[{st+2}:{st+3}], vcc
    """)
    ins = f"global_load_dword v{vd}, v[{vt}:{vt+1}], off"
    if emit: emit(ins)
    else: k(ins)
    k(f"s_mov_b64 exec, s[{st+2}:{st+3}]")
```

```python
from asmlib import *
from layout import *

def gen_k1(name="k1_kernel", kidx=0, stamps=False, aux_x="", aux_w="", aux_o="", L=4, dbg="", pf=None, pfaux="", pfm0=0, hfirst=False):
    NS = 9; NB = 4
    k = K(name, vgpr=232)
    sb = SB(k)
    END = k.label("end")
    VX = 2; VW = 6; VA = 10; VB = 12; ONE = 26
    ACC = 32
    def acc(j, rb): return ACC + (j * 2 + rb) * 4
    AQ = 88; AC = 96
    AF = 124
    def af(h, rb): return AF + (h * 2 + rb) * 4
    BF = 140
    def bf(j): return BF + 4 * j
    GA = 168; GO = 171; VP = 174; VF = 177; VCS = 178; VBP = 179; VEPS = 180; VRD = 181; VT = 182
    T = 184
    XB = 65536; TB = 131072; CS = TB + 4096
    k(f"s_cmp_ge_u32 s2, 256\ns_cbranch_scc1 {END}")
    HELP = k.label("help")
    if pf and hfirst:
        k(f"v_readfirstlane_b32 s3, v0\ns_cmp_lt_u32 s3, 256\ns_cbranch_scc1 {HELP}")
        helper_k1(k, pf, pfaux, pfm0)
        k(f"{HELP}:")
    elif pf: k(f"v_readfirstlane_b32 s3, v0\ns_cmp_ge_u32 s3, 256\ns_cbranch_scc1 {HELP}")
    if stamps: stamp_begin(k)
    k(f"""
    s_load_dwordx4 s[4:7], s[0:1], 0           ; x, wqkv
    s_load_dwordx2 s[8:9], s[0:1], 16          ; wo
    s_load_dwordx4 s[28:31], s[0:1], 72
    v_lshrrev_b32 v{T}, 6, v0
    v_and_b32 v1, 63, v0                       ; lane
    s_and_b32 s33, s2, 7
    v_readfirstlane_b32 s3, v{T}               ; wave
    s_lshl_b32 s33, s33, 1
    s_bfe_u32 s34, s2, 0x10003
    s_add_u32 s33, s33, s34                    ; rt
    s_lshr_b32 s34, s2, 4                      ; hp
    v_lshrrev_b32 v{T}, 4, v1                  ; g
    v_and_b32 v{T+1}, 15, v1                   ; i
    v_lshrrev_b32 v{T+2}, 3, v1
    s_movk_i32 s35, 1152
    v_mul_u32_u24 v{T+2}, s35, v{T+2}
    v_and_b32 v{T+3}, 7, v1
    v_xor_b32 v{T+3}, v{T+3}, v{T}
    v_xor_b32 v{T+4}, 4, v{T+3}
    v_lshl_add_u32 v{VX}, v{T+3}, 4, v{T+2}
    v_lshl_add_u32 v{VX+1}, v{T+4}, 4, v{T+2}
    v_add_u32 v{VX+2}, {2*(8*1152-1024)}, v{VX}
    v_add_u32 v{VX+1}, {8*1152-1024}, v{VX+1}
    v_add_u32 v{VX+3}, {2*(8*1152-1024)}, v{VX+1}
    s_movk_i32 s35, 3456
    v_mul_u32_u24 v{T+2}, s35, v{T}            ; (l>>4)*3456
    v_lshlrev_b32 v{T+3}, 1, v{T}
    v_sub_u32 v{T+3}, v{T+1}, v{T+3}
    """)
    for par in range(2):
        k(f"""
        v_add_u32 v{T+4}, {16 - 8*par}, v{T+3}
        v_and_b32 v{T+4}, 15, v{T+4}               ; chunk
        v_mov_b32 v{T+5}, {2304 - 8 - 176}
        v_mov_b32 v{T+6}, -80
        v_cmp_gt_u32 vcc, 10, v{T+4}
        v_mov_b32 v{T+7}, {1152 - 8}
        v_lshl_add_u32 v{T+8}, v{T+4}, 4, v{T+2}
        v_cndmask_b32 v{T+5}, v{T+5}, v{T+6}, vcc
        v_cmp_gt_u32 vcc, 5, v{T+4}
        v_add_u32 v{T+8}, {par * (8*3456 - 1024)}, v{T+8}
        s_nop 0
        v_cndmask_b32 v{T+5}, v{T+5}, v{T+7}, vcc
        v_add_u32 v{VW+par}, v{T+5}, v{T+8}
        v_add_u32 v{VW+2+par}, {4*3456 - 2048}, v{VW+par}
        """)
    def lanes(*ls): return sum(1 << x for x in ls)
    mE = ~lanes(10, 28, 46, 48) & (2**64 - 1); mO = ~lanes(2, 20, 38, 56) & (2**64 - 1)
    k(f"""
    s_mov_b32 s50, {mE & 0xffffffff}
    s_mov_b32 s51, {mE >> 32}
    s_mov_b32 s52, {mO & 0xffffffff}
    s_mov_b32 s53, {mO >> 32}
    s_lshl_b32 s36, s33, 2
    s_add_u32 s36, s36, s3                     ; rt32
    s_mul_i32 s40, s36, {32*1152}              ; s40 = x soffset
    s_mul_i32 s41, s3, {16*3456}
    s_mul_i32 s37, s34, 72
    s_add_u32 s41, s41, s37                    ; s41 = w soffset
    s_lshl_b32 s42, s3, 12
    s_lshl_b32 s43, s3, 14
    s_add_u32 s43, s43, {XB}
    v_mov_b32 v{ONE}, 0x3f803f80
    v_mov_b32 v{ONE+1}, 0x3f803f80
    v_mov_b32 v{ONE+2}, 0x3f803f80
    v_mov_b32 v{ONE+3}, 0x3f803f80
    v_and_b32 v{T+4}, 7, v0
    v_lshl_add_u32 v{T+4}, v{T+4}, 1, 10
    v_and_b32 v{T+4}, 15, v{T+4}
    v_lshlrev_b32 v{T+4}, 4, v{T+4}
    v_lshl_add_u32 v{T+4}, v0, 8, v{T+4}
    """)
    sb.ds(f"ds_write_b128 v{T+4}, {v(ONE,4)}", "ones")
    k("s_waitcnt lgkmcnt(0)"); sb.done["lgkmcnt"] = 1
    srd(k, 12, 4, 5, 2048 * 1152)
    srd(k, 16, 6, 7, 576 * 3456)
    srd(k, 20, 30, 31, KVT_SZ, KVT_OFF)
    LZ = k.label("noz")
    k(f"""
    s_mul_i32 s44, s34, 3040
    s_cmp_lg_u32 s33, 0
    s_cbranch_scc1 {LZ}
    v_mov_b32 v{T+8}, 0
    v_mov_b32 v{T+9}, 0
    v_mov_b32 v{T+10}, 0
    v_mov_b32 v{T+11}, 0
    v_lshlrev_b32 v{T+4}, 4, v0
    v_cmp_gt_u32 vcc, 190, v0
    v_mov_b32 v{T+5}, 0x40000000
    s_nop 0
    v_cndmask_b32 v{T+4}, v{T+5}, v{T+4}, vcc
    buffer_store_dwordx4 {v(T+8,4)}, v{T+4}, s[20:23], s44 offen sc1
    {LZ}:
    """)
    def issue(n):
        out = []
        g = [f"s_add_u32 m0, s42, {(n % NB) * 16384}", "s_mov_b64 exec, s[50:51]"]
        for q in (0, 2):
            g.append(("vm", f"buffer_load_dwordx4 v{VW+q}, s[16:19], s41 offen offset:{q*1024} {aux_w} lds"))
        g.append("s_mov_b64 exec, -1")
        out.append(g)
        g = ["s_mov_b64 exec, s[52:53]"]
        for q in (1, 3):
            g.append(("vm", f"buffer_load_dwordx4 v{VW+q}, s[16:19], s41 offen offset:{q*1024} {aux_w} lds"))
        g += ["s_mov_b64 exec, -1", f"s_add_u32 s41, s41, {64*3456}"]
        out.append(g)
        for q in range(4):
            g = []
            if q == 0: g += [f"s_add_u32 m0, s43, {(n % NB) * 4096}", "s_nop 0"]
            g.append(("vm", f"buffer_load_dwordx4 v{VX+q}, s[12:15], s40 offen offset:{q*1024} {aux_x} lds"))
            if q == 3: g.append("s_add_u32 s40, s40, 128")
            out.append(g)
        return out
    def emit(g, tag):
        for x in g:
            if isinstance(x, tuple): sb.vm(x[1], tag)
            else: k(x)
    for g in issue(0): emit(g, 0)
    LT = k.label("notask"); LC = k.label("noclr")
    srd(k, 24, 8, 9, 576 * 1152)
    k(f"""
    s_cmp_eq_u32 s3, 3
    s_cselect_b32 s45, s2, 255
    s_cmp_ge_u32 s45, 180
    s_cbranch_scc1 {LT}
    s_mul_i32 s46, s45, 57
    s_lshr_b32 s46, s46, 9
    s_mul_i32 s47, s46, 9
    s_sub_u32 s47, s45, s47                    ; cq
    s_mul_i32 s48, s46, 52
    s_lshr_b32 s48, s48, 8                     ; w' = wt / 5
    s_mul_i32 s49, s48, 5
    s_sub_u32 s49, s46, s49                    ; t
    v_lshrrev_b32 v{T+4}, 3, v1                ; b = l>>3
    v_lshrrev_b32 v{T+5}, 1, v{T+4}
    v_mul_u32_u24 v{T+5}, 18, v{T+5}
    v_and_b32 v{T+6}, 1, v{T+4}
    v_add3_u32 v{T+5}, v{T+5}, v{T+6}, 16
    s_mov_b32 s54, {8*1152-1024}
    s_mov_b32 s55, {18*1152-2048}
    s_mov_b32 s56, {26*1152-3072}
    s_cmp_eq_u32 s49, 4
    s_cselect_b64 vcc, -1, 0
    s_cmov_b32 s54, {72*1152-1024}
    s_cselect_b32 s57, 0, s49
    v_cndmask_b32 v{T+4}, v{T+4}, v{T+5}, vcc
    s_movk_i32 s58, 1152
    v_mul_u32_u24 v{T+4}, s58, v{T+4}
    v_and_b32 v{T+5}, 7, v1
    v_lshl_add_u32 v{T+4}, v{T+5}, 4, v{T+4}
    s_mul_i32 s58, s48, 144
    s_mul_i32 s57, s57, 36
    s_add_u32 s58, s58, s57
    s_mul_i32 s58, s58, 1152
    s_lshl_b32 s57, s47, 7
    s_add_u32 s58, s58, s57
    s_add_u32 s54, s54, s58
    s_add_u32 s55, s55, s58
    s_add_u32 s56, s56, s58
    s_mov_b32 m0, {TB}
    s_nop 0
    buffer_load_dwordx4 v{T+4}, s[24:27], s58 offen offset:0 lds
    buffer_load_dwordx4 v{T+4}, s[24:27], s54 offen offset:1024 lds
    buffer_load_dwordx4 v{T+4}, s[24:27], s55 offen offset:2048 lds
    buffer_load_dwordx4 v{T+4}, s[24:27], s56 offen offset:3072 lds
    {LT}:
    """)
    srd(k, 24, 30, 31, FLG_OFF + FLG_SZ - XCH_OFF, XCH_OFF)
    k(f"""
    s_cmp_lg_u32 s3, 2
    s_cbranch_scc1 {LC}
    v_mov_b32 v{T+8}, -1
    v_lshlrev_b32 v{T+4}, 4, v1
    s_lshl_b32 s46, s2, 8
    v_mov_b32 v{T+9}, -1
    v_mov_b32 v{T+10}, -1
    v_mov_b32 v{T+11}, -1
    s_mov_b64 exec, 0xffff
    buffer_store_dwordx4 {v(T+8,4)}, v{T+4}, s[24:27], s46 offen {aux_o}
    s_lshr_b32 s46, s46, 1
    s_add_u32 s46, s46, {FLG_OFF - XCH_OFF}
    s_mov_b64 exec, 0xf
    buffer_store_dwordx4 {v(T+8,4)}, v{T+4}, s[24:27], s46 offen {aux_o}
    s_mov_b64 exec, -1
    {LC}:
    """)
    for g in issue(1): emit(g, 1)
    k(f"""
    s_and_b32 s37, s3, 1                       ; parity
    v_lshrrev_b32 v{T+2}, 1, v{T+1}
    v_xor_b32 v{T+2}, v{T+2}, v{T}
    s_lshl_b32 s38, s37, 2
    v_xor_b32 v{T+2}, s38, v{T+2}
    v_lshlrev_b32 v{T+2}, 4, v{T+2}
    v_lshl_add_u32 v{T+2}, v{T+1}, 7, v{T+2}
    v_add_u32 v{VA}, s43, v{T+2}
    v_xor_b32 v{VA+1}, 64, v{VA}
    v_bfe_u32 v{T+2}, v1, 2, 3                 ; rho = 4(g&1)+r
    v_lshrrev_b32 v{T+3}, 5, v1
    v_lshl_add_u32 v{T+3}, v{T+3}, 4, v{T+2}   ; pi0
    v_lshlrev_b32 v{T+3}, 8, v{T+3}
    s_lshl_b32 s38, s37, 13
    v_add_u32 v{T+3}, s38, v{T+3}
    v_and_b32 v{T+4}, 3, v1                    ; c
    v_lshl_add_u32 v{T+5}, v{T+2}, 2, v{T+4}   ; c + 4 rho
    v_cmp_eq_u32 s[54:55], 0, v{T+4}
    v_cmp_eq_u32 s[56:57], 3, v{T+4}
    """)
    for j in range(7):
        base = [0, 4, 8, 12, 16, 24, 28][j]
        if j == 0: k(f"v_add_u32 v{T+6}, 20, v{T+5}\nv_cndmask_b32 v{T+6}, v{T+5}, v{T+6}, s[54:55]")
        elif j == 4: k(f"v_add_u32 v{T+6}, 16, v{T+5}\nv_add_u32 v{T+7}, 20, v{T+5}\nv_cndmask_b32 v{T+6}, v{T+6}, v{T+7}, s[56:57]")
        else: k(f"v_add_u32 v{T+6}, {base}, v{T+5}")
        k(f"""
        v_and_b32 v{T+6}, 31, v{T+6}
        v_lshl_add_u32 v{VB+j}, v{T+6}, 3, v{T+3}
        v_xor_b32 v{VB+7+j}, 0x2000, v{VB+j}
        """)
    k(f"""
    s_mul_i32 s38, s34, 36
    s_mul_i32 s39, s36, 576
    s_add_u32 s38, s38, s39
    s_lshl_b32 s59, s38, 6
    v_lshlrev_b32 v{T+2}, 6, v{T+1}
    v_lshl_add_u32 v{T+2}, v{T}, 4, v{T+2}     ; i*64 + g*16
    v_mov_b32 v{T+3}, 0x40000000
    v_cmp_lt_u32 vcc, 7, v{T+1}
    v_add_u32 v{T+4}, -512, v{T+2}
    v_add_u32 v{VP+1}, 512, v{T+2}
    v_cndmask_b32 v{VP}, v{T+3}, v{T+4}, vcc
    v_cmp_gt_u32 s[60:61], 12, v{T+1}
    v_add_u32 v{T+4}, {24*64}, v{T+2}
    v_mov_b32 v{T+5}, {fbits(1e-6)}
    v_cndmask_b32 v{VP+2}, v{T+3}, v{T+4}, s[60:61]
    v_cndmask_b32 v{VEPS}, 0, v{T+5}, s[60:61]
    s_lshl_b32 s38, s3, 9
    s_add_u32 s38, s38, {CS}
    v_lshl_add_u32 v{VCS}, v{T+1}, 2, s38
    v_and_b32 v{T+2}, 48, v1
    v_lshl_add_u32 v{T+2}, v{T}, 2, v{T+2}
    v_lshlrev_b32 v{VBP}, 2, v{T+2}
    s_lshl_b32 s38, s3, 13
    v_lshl_add_u32 v{VRD}, v1, 4, s38
    s_lshl_b32 s38, s34, 2
    v_mov_b32 v{VF}, s38
    s_movk_i32 s38, 3277
    s_movk_i32 s39, 380
    """)
    for m in range(3):
        k(f"""
        v_add_u32 v{T+2}, {256*m}, v0              ; idx
        v_cmp_le_u32 vcc, s39, v{T+2}
        v_lshlrev_b32 v{T+8}, 2, v{T+2}
        v_subrev_u32 v{T+4}, s39, v{T+2}
        v_cndmask_b32 v{T+4}, v{T+2}, v{T+4}, vcc  ; rem = e*20+d
        v_cndmask_b32 v{T+5}, 0, 18, vcc           ; 18 hh
        v_mul_u32_u24 v{T+6}, s38, v{T+4}
        v_lshrrev_b32 v{T+6}, 16, v{T+6}           ; e
        v_mul_u32_u24 v{T+7}, 20, v{T+6}
        v_sub_u32 v{T+7}, v{T+4}, v{T+7}           ; d
        v_cmp_gt_u32 s[54:55], 18, v{T+7}
        v_cmp_gt_u32 s[56:57], 19, v{T+6}
        v_cmp_gt_u32 vcc, 18, v{T+6}
        v_add3_u32 v{T+7}, v{T+7}, v{T+5}, 4       ; kappa + 4
        v_add3_u32 v{T+6}, v{T+6}, v{T+5}, 12      ; nu + 12
        s_and_b64 s[54:55], s[54:55], s[56:57]
        v_cndmask_b32 v{T+6}, 0, v{T+6}, vcc
        v_cndmask_b32 v{GO+m}, v{T+3}, v{T+8}, s[54:55]
        v_lshrrev_b32 v{T+8}, 4, v{T+6}            ; vb
        v_lshrrev_b32 v{T+9}, 5, v{T+6}            ; vb==2
        v_mul_u32_u24 v{T+8}, 3, v{T+8}
        v_sub_u32 v{T+8}, v{T+8}, v{T+9}
        v_lshrrev_b32 v{T+9}, 4, v{T+7}
        v_add_u32 v{T+8}, v{T+8}, v{T+9}           ; blk
        v_and_b32 v{T+7}, 15, v{T+7}
        v_lshlrev_b32 v{T+7}, 4, v{T+7}
        v_lshl_add_u32 v{T+8}, v{T+8}, 10, v{T+7}
        v_bfe_u32 v{T+9}, v{T+6}, 2, 2
        v_lshl_add_u32 v{T+8}, v{T+9}, 8, v{T+8}
        v_and_b32 v{T+9}, 3, v{T+6}
        v_lshl_add_u32 v{T+8}, v{T+9}, 2, v{T+8}
        v_cndmask_b32 v{GA+m}, 0, v{T+8}, s[54:55]
        """)
    NI = NS * 14
    def rdB(t):
        n, r = divmod(t, 14); h, j = divmod(r, 7)
        return [(f"ds_read_b64_tr_b16 {v(bf(j)+2*u,2)}, v{VB+7*h+j} offset:{(n%NB)*16384 + u*2048}", ("B", t)) for u in range(2)]
    def rdA(hh):
        n, h = divmod(hh, 2)
        return [(f"ds_read_b128 {v(af(h,rb),4)}, v{VA+h} offset:{(n%NB)*4096 + rb*2048}", ("A", hh)) for rb in range(2)]
    sb.needvm(0)
    k("s_barrier")
    LF = k.label("nof")
    k(f"""
    s_or_b32 s38, s33, s3
    s_cmp_lg_u32 s38, 0
    s_cbranch_scc1 {LF}
    v_mov_b32 v{T+2}, 1
    global_store_dword v{VF}, v{T+2}, s[28:29] sc1
    {LF}:
    """)
    if stamps: stamp_mid(k, 0)
    for x in rdA(0): sb.ds(*x)
    for t in range(L):
        for x in rdB(t): sb.ds(*x)
    pend = [(n, g) for n in (2, 3) for g in issue(n)]
    nxt = 4
    for t in range(NI):
        n, r = divmod(t, 14); h, j = divmod(r, 7); hh = 2 * n + h
        m = []
        for rb in range(2):
            c = "0" if hh == 0 else v(acc(j, rb), 4)
            m.append(f"{MF} {v(acc(j,rb),4)}, {v(af(h,rb),4)}, {v(bf(j),4)}, {c}")
        if h == 0:
            m.append(f"{MF} {v(AC+4*j,4)}, {v(ONE,4)}, {v(bf(j),4)}, {'0' if n == 0 else v(AC+4*j,4)}")
        if j in (1, 3):
            rb = j >> 1
            m.append(f"{MF} {v(AQ+4*rb,4)}, {v(af(h,rb),4)}, {v(af(h,rb),4)}, {'0' if hh == 0 else v(AQ+4*rb,4)}")
        sb.needds(("B", t), ("A", hh))
        k(m[0])
        side = []
        if r == 14 - L and n + 1 < NS:
            assert all(st > n + 1 for st, _ in pend)
            sb.needvm(n + 1)
            k("s_barrier")
            if nxt < NS and nxt - NB <= n - 1:
                pend += [(nxt, g) for g in issue(nxt)]; nxt += 1
        rds = rdB(t + L) if t + L < NI else []
        if j == 7 - L and hh + 1 < 2 * NS: rds = rdA(hh + 1) + rds
        if n == NS - 1 and h == 1 and j >= 3:
            js = {3: (0, 1), 4: (2, 3), 5: (4, 5), 6: (6,)}[j]
            rds += [(f"ds_write_b32 v{VCS}, v{AC+4*x} offset:{64*x}", "cs") for x in js]
        ld = None
        if pend: ld = pend.pop(0)
        per = -(-len(rds) // len(m))
        for x in rds[:per]: sb.ds(*x)
        for i in range(1, len(m)):
            k(m[i])
            for x in rds[per * i: per * (i + 1)]: sb.ds(*x)
            if i == 1 and ld: emit(ld[1], ld[0])
    if stamps: stamp_mid(k, 1)
    sb.drain("lgkmcnt")
    k("s_barrier")
    sb.vm(f"global_load_dword v{T+40}, v{VF}, s[28:29] sc1", "flag")
    C = T
    k(f"v_xor_b32 v{VCS}, 512, v{VCS}")
    for j in range(7): sb.ds(f"ds_read_b32 v{C+j}, v{VCS} offset:{64*j}", "c")
    Q = T + 8; S = T + 16; RR = T + 24; RM = T + 32
    for x in range(8): sb.ds(f"ds_bpermute_b32 v{Q+x}, v{VBP}, v{AQ+x} offset:{4*(x&3)}", "q")
    for x in range(8): k(f"v_mov_b32_dpp v{S+x}, v{ACC+x} row_newbcast:0 row_mask:0xf bank_mask:0xf")
    k(f"""
    s_mov_b32 s38, {fbits(1/576)}
    s_mov_b32 s39, {fbits(1e-5)}
    s_mov_b32 s62, {fbits(1.4426950408889634)}
    s_mov_b32 s63, {fbits(1e-6)}
    v_mov_b32 v{VT}, {fbits(-1e-6 * 1.4426950408889634)}
    """)
    for x in range(8): k(f"v_mul_f32 v{S+x}, s38, v{S+x}")
    for x in range(8): k(f"v_fma_f32 v{RM+x}, -v{S+x}, v{S+x}, s39")
    sb.needds("c")
    for j in range(7): k(f"v_add_f32 v{C+j}, v{C+j}, v{AC+4*j}")
    sb.needds("q")
    for x in range(8): k(f"v_fma_f32 v{Q+x}, v{Q+x}, s38, v{RM+x}")
    for x in range(8): k(f"v_max_f32 v{Q+x}, s39, v{Q+x}")
    for x in range(8): k(f"v_rsq_f32 v{RR+x}, v{Q+x}")
    for x in range(8): k(f"v_mul_f32 v{RM+x}, v{RR+x}, v{S+x}")
    if stamps: stamp_mid(k, 2)
    E = AC
    def fin(j):
        a0 = acc(j, 0)
        for x in range(8):
            if j < 4: k(f"v_fma_f32 v{a0+x}, v{a0+x}, v{RR+x}, s63")
            elif j == 4: k(f"v_fma_f32 v{a0+x}, v{a0+x}, v{RR+x}, v{VEPS}")
            else: k(f"v_mul_f32 v{a0+x}, v{a0+x}, v{RR+x}")
        for x in range(8): k(f"v_fma_f32 v{a0+x}, -v{RM+x}, v{C+j}, v{a0+x}")
        if j <= 4:
            for x in range(8): k(f"v_fma_f32 v{E+x}, v{a0+x}, s62, v{VT}")
            for x in range(8): k(f"v_exp_f32_e64 v{E+x}, v{E+x} clamp")
            if j < 4:
                for x in range(8): k(f"v_max_f32 v{a0+x}, s63, v{a0+x}")
                for x in range(8): k(f"v_add_f32 v{a0+x}, v{a0+x}, v{E+x}")
            else:
                for x in range(8): k(f"v_max_f32 v{E+8+x}, s63, v{a0+x}")
                for x in range(8): k(f"v_add_f32 v{E+x}, v{E+8+x}, v{E+x}")
                for x in range(8): k(f"v_cndmask_b32 v{a0+x}, v{a0+x}, v{E+x}, s[60:61]")
        for x in range(4): k(f"v_cvt_pk_bf16_f32 v{bf(j)+x}, v{a0+2*x}, v{a0+2*x+1}")
    srd(k, 12, 30, 31, PQ_SZ, PQ_OFF)
    for j in (3, 2, 4):
        fin(j)
        sb.vm(f"buffer_store_dwordx4 {v(bf(j),4)}, v{VP+j-2}, s[12:15], s59 offen {aux_o}".rstrip(), "pq")
    for x in range(4): k(f"v_cndmask_b32 v{AF+x}, v{bf(4)+x}, v{ONE}, s[60:61]")
    for j in (0, 1, 5, 6): fin(j)
    KV = ACC
    pairs = [(AF, 0), (AF, 1), (AF, 2), (bf(5), 0), (bf(5), 1), (bf(5), 2), (bf(6), 1), (bf(6), 2)]
    for i, (av, kb) in enumerate(pairs):
        k(f"{MF} {v(KV+4*i,4)}, {v(av,4)}, {v(bf(kb),4)}, 0")
    LS = k.label("spin"); LG = k.label("go")
    k(f"""
    s_mov_b32 s38, 0
    s_waitcnt vmcnt(3)
    {LS}:
    v_readfirstlane_b32 s39, v{T+40}
    s_add_u32 s38, s38, 1
    s_cmp_lg_u32 s39, 0
    s_cbranch_scc1 {LG}
    s_cmp_ge_u32 s38, 0x40000
    s_cbranch_scc1 {LG}
    global_load_dword v{T+40}, v{VF}, s[28:29] sc1
    s_waitcnt vmcnt(0)
    s_branch {LS}
    {LG}:
    """)
    for i in range(8):
        sb.ds(f"ds_write_b128 v{VRD}, {v(KV+4*i,4)} offset:{1024*i}", "kv")
    if stamps: stamp_mid(k, 3)
    LT2 = k.label("notask2"); LT3 = k.label("left");
    k(f"""
    s_cmp_ge_u32 s45, 180
    s_cbranch_scc1 {LT2}
    v_bfe_u32 v{T+2}, v1, 2, 4
    v_and_b32 v{T+3}, 3, v1
    v_lshlrev_b32 v{T+3}, 3, v{T+3}
    v_lshl_add_u32 v{T+2}, v{T+2}, 7, v{T+3}
    v_add_u32 v{T+2}, {TB}, v{T+2}
    """)
    for cc in range(4):
        for u in range(2):
            k(f"ds_read_b64_tr_b16 {v(AC+4*cc+2*u,2)}, v{T+2} offset:{cc*32 + u*2048}")
    srd(k, 16, 30, 31, WOF_SZ, WOF_OFF)
    k(f"v_lshlrev_b32 v{T+3}, 4, v1")
    for cc in range(4):
        k(f"""
        s_lshl_b32 s38, s47, 2
        s_add_u32 s38, s38, {cc}                   ; CB
        s_mul_i32 s39, s38, 57
        s_lshr_b32 s39, s39, 9                     ; ct
        s_mul_i32 s54, s39, 9
        s_sub_u32 s38, s38, s54                    ; cb
        s_lshl_b32 s39, s39, 2
        s_add_u32 s39, s39, s48
        s_mul_i32 s39, s39, 41
        s_mul_i32 s54, s49, 9
        s_add_u32 s39, s39, s54
        s_add_u32 s54, s39, s38
        s_lshl_b32 s{64+cc}, s54, 10
        s_lshr_b32 s54, s38, 1
        s_add_u32 s54, s54, s39
        s_lshl_b32 s54, s54, 10
        s_and_b32 s38, s38, 1
        s_lshl_b32 s38, s38, 3
        s_add_u32 s54, s54, s38
        s_cmp_eq_u32 s49, 4
        s_cselect_b32 s{64+cc}, s54, s{64+cc}
        """)
    k(f"s_waitcnt lgkmcnt(0)\ns_cmp_eq_u32 s49, 4\ns_cbranch_scc1 {LT3}")
    for cc in range(4): k(f"buffer_store_dwordx4 {v(AC+4*cc,4)}, v{T+3}, s[16:19], s{64+cc} offen {aux_o}".rstrip())
    k(f"s_branch {LT2}\n{LT3}:")
    for cc in range(4): k(f"buffer_store_dwordx2 {v(AC+4*cc,2)}, v{T+3}, s[16:19], s{64+cc} offen {aux_o}".rstrip())
    k(f"{LT2}:")
    k("s_waitcnt lgkmcnt(0)\ns_barrier")
    G = AF + 4
    for m in range(3):
        for w in range(4):
            k(f"ds_read_b32 v{G+4*m+w}, v{GA+m} offset:{8192*w}")
    for m in range(3):
        k(f"s_waitcnt lgkmcnt({8 - 4*m})")
        k(f"v_add_f32 v{G+4*m}, v{G+4*m}, v{G+4*m+1}\nv_add_f32 v{G+4*m+2}, v{G+4*m+2}, v{G+4*m+3}\nv_add_f32 v{G+4*m}, v{G+4*m}, v{G+4*m+2}")
        k(f"buffer_atomic_add_f32 v{G+4*m}, v{GO+m}, s[20:23], s44 offen")
    if stamps: stamp_end(k, kidx)
    k(f"{END}:\ns_endpgm")
    if pf and not hfirst:
        k(f"{HELP}:")
        if isinstance(pf[0], str): helper_k1(k, pf, pfaux, pfm0)
        else: helper_wave(k, "w1", pf, pfaux)
    return k, (name, (256, 1, 1), (320 if pf else 256, 1, 1), CS + 2048)

if __name__ == "__main__":
    k, l = gen_k1(kidx=0, stamps=True)
    emit_file("k1.s", [l], [k])
```

```python
from asmlib import *
from layout import *
MF16 = "v_mfma_f32_16x16x16_bf16"

def gen_k2(name="k2_kernel", kidx=1, stamps=False, aux_o="", dbg="", pf=None, pfpos=3, wpace=1, cpf=False, clr=None):
    k = K(name, vgpr=248, agpr=164)
    sb = SB(k)
    END = k.label("end")
    VL = 2
    VWT = 3
    VKW = 7
    VA0 = 8; VA1 = 9; VB0 = 10; VB1 = 11
    VXD = 12
    VRW = 15
    VRR = 16
    VXR = 19; VST = 20; VPL = 21
    T = 22
    ACC = 32
    def acc(cb, rb): return ACC + (cb * 2 + rb) * 4
    FR = 104
    def fr(t, u, x): return FR + ((t & 1) * 2 + u) * 16 + x * 4
    DD = 168
    def dd(u, rb, b): return DD + ((u * 2 + rb) * 2 + b) * 4
    OF = 200
    def of(t, rb): return OF + ((t & 1) * 2 + rb) * 4
    LF = 216
    RAW = 168
    X = 220
    def wf(t, cb): return (t * 9 + cb) * 4
    def wl(cb): return 144 + (cb >> 1) * 4 + (cb & 1) * 2
    KVI = 0; PQI = 6144; XI = 65536; ST = XI + 9216
    k(f"s_cmp_ge_u32 s2, 256\ns_cbranch_scc1 {END}")
    if stamps: stamp_begin(k)
    k(f"""
    s_load_dwordx2 s[4:5], s[0:1], 0           ; x
    s_load_dwordx2 s[10:11], s[0:1], 80        ; ws
    {"s_load_dwordx2 s[60:61], s[0:1], 32" if pf else ""}
    v_lshrrev_b32 v{T}, 6, v0
    v_and_b32 v1, 63, v0                       ; lane
    s_and_b32 s33, s2, 7
    v_readfirstlane_b32 s3, v{T}               ; wave
    s_lshl_b32 s33, s33, 3
    s_lshr_b32 s34, s2, 5
    s_add_u32 s33, s33, s34                    ; rt32
    s_bfe_u32 s34, s2, 0x20003                 ; ct
    v_lshlrev_b32 v{VL}, 4, v1
    s_mul_i32 s35, s3, 12160
    s_mul_i32 s36, s33, 4
    s_add_u32 s36, s36, s3
    s_mul_i32 s36, s36, 9216
    s_lshl_b32 s37, s3, 14
    v_add_u32 v{VWT}, 4096, v{VL}
    v_add_u32 v{VWT+1}, 8192, v{VL}
    s_waitcnt lgkmcnt(0)
    """)
    srd(k, 12, 10, 11, WOF_OFF + WOF_SZ - KVT_OFF, KVT_OFF)
    srd(k, 16, 10, 11, PQ_SZ, PQ_OFF)
    for i in range(12):
        base = VL if i < 4 else VWT + i // 4 - 1
        sb.vm(f"buffer_load_dwordx4 {v(RAW+4*i,4)}, v{base}, s[12:15], s35 offen offset:{(i%4)*1024}", ("kv", i))
    for i in range(9):
        base = VL if i < 4 else VWT + i // 4 - 1
        if i % 4 == 0: k(f"s_add_u32 m0, s37, {PQI + i*1024}\ns_nop 0")
        sb.vm(f"buffer_load_dwordx4 v{base}, s[16:19], s36 offen offset:{(i%4)*1024} lds", "pq")
    srd(k, 20, 4, 5, 2048 * 1152)
    k(f"""
    s_mov_b32 s38, {(1 << 32) // 18 + 1}
    s_movk_i32 s39, {1152 - 288}
    s_mul_i32 s40, s33, {32*1152}
    s_mul_i32 s41, s34, 288
    s_add_u32 s40, s40, s41                    ; x soffset
    """)
    for n in range(3):
        k(f"""
        v_add_u32 v{T}, {256*n}, v0
        v_mul_hi_u32 v{T+1}, v{T}, s38
        v_mul_u32_u24 v{T+1}, s39, v{T+1}
        v_lshl_add_u32 v{VXD+n}, v{T}, 4, v{T+1}
        """)
    LX = k.label("x3")
    k(f"""
    s_cmp_lg_u32 s3, 0
    s_cbranch_scc1 {LX}
    s_mov_b32 m0, {XI + 8192}
    s_nop 0
    buffer_load_dwordx4 v{VXD+2}, s[20:23], s40 offen lds
    {LX}:
    s_lshl_b32 s41, s3, 10
    """)
    for n in range(2):
        k(f"s_add_u32 m0, s41, {XI + 4096*n}\ns_nop 0")
        sb.vm(f"buffer_load_dwordx4 v{VXD+n}, s[20:23], s40 offen lds", "x")
    k(f"""
    s_lshl_b32 s41, s34, 2
    s_add_u32 s41, s41, s3
    s_mul_i32 s41, s41, {41*1024}
    s_add_u32 s41, s41, {WOF_OFF - KVT_OFF}
    """)
    for p in range(4):
        k(f"""
        s_add_u32 s42, s3, {p}
        s_and_b32 s42, s42, 3
        s_lshl_b32 s43, s42, 11
        s_add_u32 s{44+p}, s41, s43
        s_lshl_b32 s43, s42, 10
        s_add_u32 s{50+p}, s41, s43
        """)
    k(f"s_add_u32 s48, s41, 8192\ns_add_u32 s54, s41, 4096")
    for t in range(1, 5): k(f"v_add_u32 v{VWT+t-1}, {9216*t}, v{VL}")
    wq = []
    for t in range(4):
        for cb in range(9):
            wq.append((f"buffer_load_dwordx4 {a(wf(t,cb),4)}, v{VL if t == 0 else VWT+t-1}, s[12:15], s{44 + cb//2} offen offset:{(cb&1)*1024}", ("w", t)))
    for p in range(5):
        wq.append((f"buffer_load_dwordx4 {a(144+4*p,4)}, v{VWT+3}, s[12:15], s{50+p} offen", ("w", 4)))
    def wload(n=1):
        for _ in range(n):
            if wq: sb.vm(*wq.pop(0))
    wload(4)
    k(f"""
    v_lshrrev_b32 v{T}, 4, v1                  ; g
    v_and_b32 v{T+1}, 15, v1                   ; i
    v_lshl_add_u32 v{VKW}, v1, 3, s37
    v_lshl_add_u32 v{T+2}, v{T}, 3, s37
    v_mad_u32_u24 v{VA0}, v{T+1}, 40, v{T+2}
    v_and_b32 v{T+3}, 3, v1                    ; c
    v_min_u32 v{T+4}, 2, v{T+3}
    v_mad_u32_u24 v{T+4}, v{T+4}, 40, v{T+2}
    v_add_u32 v{VA1}, 640, v{T+4}
    v_bfe_u32 v{T+4}, v1, 2, 4                 ; 4g + r
    v_lshl_add_u32 v{T+5}, v{T+3}, 4, s37
    v_add_u32 v{T+5}, {PQI}, v{T+5}
    v_lshl_add_u32 v{VB0}, v{T+4}, 6, v{T+5}
    v_cmp_gt_u32 vcc, 16, v1
    v_and_b32 v{T+6}, 1, v{T+4}
    v_or_b32 v{T+6}, 16, v{T+6}
    v_cndmask_b32 v{T+6}, v{T+4}, v{T+6}, vcc
    v_lshl_add_u32 v{VB1}, v{T+6}, 6, v{T+5}
    v_add_u32 v{VRW}, s37, v{VL}
    s_movk_i32 s42, 288
    v_mul_u32_u24 v{T+4}, s42, v{T+4}
    v_lshl_add_u32 v{T+4}, v{T+3}, 3, v{T+4}
    s_lshl_b32 s42, s3, 6
    s_add_u32 s42, s42, {XI}
    v_add_u32 v{VXR}, s42, v{T+4}
    """)
    for j in range(1, 4):
        k(f"""
        s_sub_u32 s42, s3, {j}
        s_and_b32 s42, s42, 3
        s_lshl_b32 s42, s42, 14
        s_add_u32 s42, s42, {(j-1)*4096}
        v_add_u32 v{VRR+j-1}, s42, v{VL}
        """)
    k(f"""
    v_bfe_u32 v{T+2}, v1, 3, 1                 ; stat
    v_bfe_u32 v{T+4}, v1, 2, 1                 ; rb
    v_lshlrev_b32 v{T+5}, 4, v{T}
    v_lshl_add_u32 v{T+5}, v{T+4}, 6, v{T+5}
    v_lshl_add_u32 v{T+5}, v{T+2}, 7, v{T+5}
    s_lshl_b32 s42, s3, 8
    s_add_u32 s42, s42, {ST}
    v_add_u32 v{VST}, s42, v{T+5}
    v_lshlrev_b32 v{T+5}, 4, v{T}
    v_lshl_add_u32 v{T+5}, v{T+2}, 6, v{T+5}
    v_lshl_add_u32 v{T+5}, v{T+4}, 7, v{T+5}
    v_lshl_add_u32 v{VPL}, v{T+3}, 8, v{T+5}
    """)
    for t in range(2):
        for u in range(2):
            for x in (0, 1):
                k(f"v_mov_b32 v{fr(t,u,x)+2}, 0\nv_mov_b32 v{fr(t,u,x)+3}, 0")
    for i in range(12):
        sb.needvm(("kv", i))
        if i == 0 and stamps: stamp_mid(k, 0)
        k(f"v_cvt_pk_bf16_f32 v{RAW+4*i}, v{RAW+4*i}, v{RAW+4*i+1}\nv_cvt_pk_bf16_f32 v{RAW+4*i+1}, v{RAW+4*i+2}, v{RAW+4*i+3}")
        sb.ds(f"ds_write_b64 v{VKW}, {v(RAW+4*i,2)} offset:{KVI + 512*i}", "kvw")
        wload(wpace)
    def reads(t):
        out = []
        for u in range(2):
            hl = 2 * t + u
            g = [(f"ds_read_b64 {v(fr(t,u,0),2)}, v{VA0} offset:{KVI + hl*760}", ("f", t, u)),
                 (f"ds_read_b64 {v(fr(t,u,1),2)}, v{VA1} offset:{KVI + hl*760}", ("f", t, u)),
                 "s_mov_b64 exec, 0xffff",
                 (f"ds_read_b64 {v(fr(t,u,0)+2,2)}, v{VA0} offset:{KVI + hl*760 + 32}", ("f", t, u)),
                 (f"ds_read_b64 {v(fr(t,u,1)+2,2)}, v{VA1} offset:{KVI + hl*760 + 32}", ("f", t, u)),
                 "s_mov_b64 exec, -1"]
            out.append(g)
            for rb in range(2):
                out.append([(f"ds_read_b64_tr_b16 {v(fr(t,u,2+rb),2)}, v{VB0} offset:{hl*1152 + 8*rb}", ("f", t, u)),
                            (f"ds_read_b64_tr_b16 {v(fr(t,u,2+rb)+2,2)}, v{VB1} offset:{hl*1152 + 8*rb}", ("f", t, u))])
        return out
    def emit(g):
        for x in g:
            if isinstance(x, tuple): sb.ds(*x)
            else: k(x)
    def omfma(t):
        for u in range(2):
            sb.needds(("f", t, u))
            for rb in range(2):
                for b in (1, 0):
                    k(f"{MF} {v(dd(u,rb,b),4)}, {v(fr(t,u,b),4)}, {v(fr(t,u,2+rb),4)}, 0")
    def ovalu(t):
        out = []
        P = [(u, rb) for u in range(2) for rb in range(2)]
        for (u, rb) in P: out.append(f"v_add_f32 v{dd(u,rb,1)+2}, s55, v{dd(u,rb,1)+2}")
        for (u, rb) in P: out.append(f"v_rcp_f32 v{dd(u,rb,1)+2}, v{dd(u,rb,1)+2}")
        for (u, rb) in P:
            for x in range(4): out.append(f"v_mul_f32 v{dd(u,rb,0)+x}, v{dd(u,rb,0)+x}, v{dd(u,rb,1)+2}")
            for x in range(2): out.append(f"v_mul_f32 v{dd(u,rb,1)+x}, v{dd(u,rb,1)+x}, v{dd(u,rb,1)+2}")
        for (u, rb) in P: out.append(f"v_cvt_pk_bf16_f32 v{dd(u,rb,1)}, v{dd(u,rb,1)}, v{dd(u,rb,1)+1}")
        for (u, rb) in P:
            for x in range(2): out.append(f"v_cvt_pk_bf16_f32 v{of(t,rb)+2*u+x}, v{dd(u,rb,0)+2*x}, v{dd(u,rb,0)+2*x+1}")
        for (u, rb) in P: out.append(f"v_mov_b32_dpp v{LF+2*rb+u}, v{dd(u,rb,1)} quad_perm:[0,1,2,3] row_mask:{1<<t} bank_mask:0xf")
        return out
    def gemm(t):
        out = []
        for cb in range(9):
            for rb in range(2):
                out.append(f"{MF} {v(acc(cb,rb),4)}, {v(of(t,rb),4)}, {a(wf(t,cb),4)}, {'0' if t == 0 else v(acc(cb,rb),4)}")
        return out
    k(f"s_mov_b32 s55, {fbits(1e-6)}")
    def prefetch():
        m0, n = pf
        LN = k.label("nopf")
        k(f"""
        s_mov_b32 s62, {2048 * 9216}
        s_mov_b32 s63, 0x20000
        s_mov_b32 s58, {(1 << 32) // 9 + 1}
        s_movk_i32 s59, {9216 - 9 * 128}
        s_lshr_b32 s56, s2, 3
        s_lshl_b32 s56, s56, 6
        s_add_u32 s57, s3, {m0}
        s_lshl_b32 s57, s57, 11
        s_add_u32 s56, s56, s57
        s_and_b32 s57, s2, 7
        s_mul_i32 s57, s57, 1152
        """)
        for r in range(0, n, 4):
            k(f"""
            s_cmp_ge_u32 s3, {n - r}
            s_cselect_b32 s64, 0x40000000, 0
            v_add_u32 v{T}, s56, v1
            v_mul_hi_u32 v{T+1}, v{T}, s58
            v_mul_u32_u24 v{T+1}, s59, v{T+1}
            v_lshl_add_u32 v{T}, v{T}, 7, v{T+1}
            v_or_b32 v{T}, s64, v{T}
            s_add_u32 s56, s56, 8192
            """)
            sb.vm(f"buffer_load_dword v{T+9}, v{T}, s[60:63], s57 offen", "pf")
    sb.needvm("pq")
    if stamps: stamp_mid(k, 1)
    for g in reads(0): emit(g)
    wload(3)
    for t in range(5):
        if t < 4:
            omfma(t)
            if t + 1 < 4:
                for g in reads(t + 1): emit(g); wload(1)
            else:
                wload(99)
            val = ovalu(t)
        else: val = []
        if t > 0:
            sb.needvm(("w", t - 1))
            gm = gemm(t - 1)
            body = weave(gm, val, 2 if val else 0, 18)
            k(body)
        else:
            k("s_nop 4"); k(val)
        if clr is not None and t == clr:
            wload(99)
            srd(k, 24, 10, 11, XQ_SZ, XQ_OFF)
            k(f"""
            s_mul_i32 s28, s2, {27 * 1024}
            s_mul_i32 s29, s3, {7 * 1024}
            s_add_u32 s28, s28, s29
            s_cmp_eq_u32 s3, 3
            s_cselect_b32 s29, 0x40000000, 0
            v_or_b32 v{T+1}, s29, v{VL}
            """)
            for x in range(4): k(f"v_mov_b32 v{T+2+x}, -1")
            for q in range(7):
                if q == 4: k("s_add_u32 s28, s28, 4096")
                sb.vm(f"buffer_store_dwordx4 {v(T+2,4)}, v{VL if q < 6 else T+1}, s[24:27], s28 offen offset:{(q % 4) * 1024} sc1", "clr")
            k("s_nop 1")
        if pf and t == pfpos:
            wload(99)
            if cpf: code_pf(k, "k3_kernel", "k4_kernel", T + 2, T + 9, 64, emit=lambda x: sb.vm(x, "pf"), wave=3)
            prefetch()
    if stamps: stamp_mid(k, 2)
    sb.needvm(("w", 4))
    order = [2, 3, 4, 5, 6, 7, 8, 0, 1]
    gm = [f"{MF16} {v(acc(cb,rb),4)}, {v(LF+2*rb,2)}, {a(wl(cb),2)}, {v(acc(cb,rb),4)}" for cb in order for rb in range(2)]
    wr = [f"ds_write_b128 v{VRW}, {v(acc(cb,rb),4)} offset:{((cb-2)*2+rb)*1024}" for cb in range(2, 9) for rb in range(2)]
    for i, m in enumerate(gm):
        k(m)
        if i >= 8: sb.ds(wr[i - 8], "rw")
    for w in wr[10:]: sb.ds(w, "rw")
    sb.drain("lgkmcnt")
    k("s_barrier")
    if stamps: stamp_mid(k, 3)
    G = FR
    for c in range(2):
        for u in range(2): sb.ds(f"ds_read_b64_tr_b16 {v(X+4*c+2*u,2)}, v{VXR} offset:{c*32 + u*4608}", ("x", c))
        for j in range(3):
            for rb in range(2): sb.ds(f"ds_read_b128 {v(G + ((c*3+j)*2+rb)*4,4)}, v{VRR+j} offset:{(c*2+rb)*1024}", ("g", c))
    S = DD; Q = DD + 8
    def finish(cb, gb, xr, first):
        a0 = acc(cb, 0)
        for x in range(0, 8, 2): k(f"v_pk_add_f32 {v(gb+x,2)}, {v(gb+x,2)}, {v(gb+8+x,2)}")
        for x in range(0, 8, 2): k(f"v_pk_add_f32 {v(a0+x,2)}, {v(a0+x,2)}, {v(gb+16+x,2)}")
        for x in range(4): k(f"v_lshlrev_b32 v{gb+8+2*x}, 16, v{xr+x}\nv_and_b32 v{gb+9+2*x}, 0xffff0000, v{xr+x}")
        for x in range(0, 8, 2): k(f"v_pk_add_f32 {v(a0+x,2)}, {v(a0+x,2)}, {v(gb+x,2)}")
        for x in range(0, 8, 2): k(f"v_pk_add_f32 {v(a0+x,2)}, {v(a0+x,2)}, {v(gb+8+x,2)}")
        for x in range(0, 8, 2):
            if first == 0: k(f"v_pk_mul_f32 {v(Q+x,2)}, {v(a0+x,2)}, {v(a0+x,2)}")
            else: k(f"v_pk_fma_f32 {v(Q+x,2)}, {v(a0+x,2)}, {v(a0+x,2)}, {v(Q+x,2)}")
        for x in range(0, 8, 2):
            if first == 1: k(f"v_pk_add_f32 {v(S+x,2)}, {v(a0+x,2)}, {v(acc(0,0)+x,2)}")
            elif first == 2: k(f"v_pk_add_f32 {v(S+x,2)}, {v(a0+x,2)}, {v(S+x,2)}")
    for c in range(2):
        sb.needds(("g", c))
        finish(c, G + c * 24, X + 4 * c, c)
    L8 = k.label("no8")
    k(f"s_cmp_lg_u32 s3, 0\ns_cbranch_scc1 {L8}")
    for u in range(2): k(f"ds_read_b64_tr_b16 {v(X+8+2*u,2)}, v{VXR} offset:{256 + u*4608}")
    for j in range(3):
        for rb in range(2): k(f"ds_read_b128 {v(G + (j*2+rb)*4,4)}, v{VL} offset:{(j+1)*16384 + (12+rb)*1024}")
    k("s_waitcnt lgkmcnt(0)")
    finish(8, G, X + 8, 2)
    k(f"{L8}:\ns_nop 1")
    R = DD + 16; TT = DD + 24
    for x in range(8):
        k(f"v_add_f32_dpp v{R+x}, v{S+x}, v{S+x} row_ror:8 row_mask:0xf bank_mask:0x3")
    for x in range(8):
        k(f"v_add_f32_dpp v{R+x}, v{Q+x}, v{Q+x} row_ror:8 row_mask:0xf bank_mask:0xc")
    for x in range(4):
        k(f"v_add_f32_dpp v{TT+x}, v{R+x}, v{R+x} row_half_mirror row_mask:0xf bank_mask:0x5")
    for x in range(4):
        k(f"v_add_f32_dpp v{TT+x}, v{R+4+x}, v{R+4+x} row_half_mirror row_mask:0xf bank_mask:0xa")
    for pm in ("[1,0,3,2]", "[2,3,0,1]"):
        for x in range(4): k(f"v_add_f32_dpp v{TT+x}, v{TT+x}, v{TT+x} quad_perm:{pm} row_mask:0xf bank_mask:0xf")
    k(f"ds_write_b128 v{VST}, {v(TT,4)}\ns_waitcnt lgkmcnt(0)\ns_barrier")
    LP = k.label("nopub")
    k(f"""
    s_lshl_b32 s42, s33, 10
    s_add_u32 s42, s42, {XCH_OFF - KVT_OFF}
    s_lshl_b32 s43, s34, 8
    s_add_u32 s43, s43, s42
    s_cmp_lg_u32 s3, 1
    s_cbranch_scc1 {LP}
    s_mov_b64 exec, 0xffff
    v_add_u32 v{T}, {ST}, v{VL}
    """)
    for w in range(4): k(f"ds_read_b128 {v(G+4*w,4)}, v{T} offset:{256*w}")
    k("s_waitcnt lgkmcnt(0)")
    for x in (0, 2): k(f"v_pk_add_f32 {v(G+x,2)}, {v(G+x,2)}, {v(G+4+x,2)}\nv_pk_add_f32 {v(G+8+x,2)}, {v(G+8+x,2)}, {v(G+12+x,2)}")
    for x in (0, 2): k(f"v_pk_add_f32 {v(G+x,2)}, {v(G+x,2)}, {v(G+8+x,2)}")
    k(f"""
    buffer_store_dwordx4 {v(G,4)}, v{VL}, s[12:15], s43 offen sc1
    s_mov_b64 exec, -1
    {LP}:
    """)
    if stamps: stamp_mid(k, 4)
    srd(k, 16, 10, 11, HL_SZ + HR_SZ, HL_OFF)
    k(f"""
    s_mul_i32 s44, s33, 36
    s_mul_i32 s45, s34, 9
    s_add_u32 s44, s44, s45
    s_lshl_b32 s44, s44, 10
    s_add_u32 s46, s44, 8192                   ; block 8
    s_lshl_b32 s45, s3, 11
    s_add_u32 s44, s44, s45
    s_add_u32 s45, s44, {HL_SZ}
    s_add_u32 s47, s46, {HL_SZ}
    buffer_load_dwordx4 {v(TT,4)}, v{VPL}, s[12:15], s42 offen sc1
    """)
    def cvst(cb, o, so, off):
        for x in range(4): k(f"v_cvt_pk_bf16_f32 v{o+x}, v{acc(cb,0)+2*x}, v{acc(cb,0)+2*x+1}")
        k(f"buffer_store_dwordx4 {v(o,4)}, v{VL}, s[16:19], s{so} offen offset:{off} {aux_o}".rstrip())
    H = G + 16
    cvst(0, H, 45, 0); cvst(1, H + 4, 45, 1024)
    L9 = k.label("no8b"); LS = k.label("spin"); LG = k.label("go")
    k(f"s_cmp_lg_u32 s3, 0\ns_cbranch_scc1 {L9}")
    cvst(8, H + 8, 47, 0)
    k(f"""
    {L9}:
    s_mov_b32 s48, 0
    s_waitcnt vmcnt(2)
    {LS}:
    v_max3_u32 v{T}, v{TT}, v{TT+1}, v{TT+2}
    v_max_u32 v{T}, v{T}, v{TT+3}
    v_cmp_eq_u32 vcc, -1, v{T}
    s_add_u32 s48, s48, 1
    s_cmp_eq_u64 vcc, 0
    s_cbranch_scc1 {LG}
    s_cmp_ge_u32 s48, 0x40000
    s_cbranch_scc1 {LG}
    buffer_load_dwordx4 {v(TT,4)}, v{VPL}, s[12:15], s42 offen sc1
    s_waitcnt vmcnt(0)
    s_branch {LS}
    {LG}:
    """)
    if stamps: stamp_mid(k, 5)
    for pm in ("[1,0,3,2]", "[2,3,0,1]"):
        for x in range(4): k(f"v_add_f32_dpp v{TT+x}, v{TT+x}, v{TT+x} quad_perm:{pm} row_mask:0xf bank_mask:0xf")
    k(f"s_mov_b32 s48, {fbits(1/576)}\ns_mov_b32 s49, {fbits(1e-5)}")
    for x in range(4): k(f"v_mul_f32 v{TT+x}, s48, v{TT+x}")
    k("s_nop 0")
    for x in range(4): k(f"v_mov_b32_dpp v{R+x}, v{TT+x} row_ror:12 row_mask:0xf bank_mask:0xf")
    for x in range(4): k(f"v_fma_f32 v{R+x}, -v{TT+x}, v{TT+x}, v{R+x}")
    for x in range(4): k(f"v_max_f32 v{R+x}, 0, v{R+x}")
    for x in range(4): k(f"v_add_f32 v{R+4+x}, s49, v{R+x}")
    for x in range(4): k(f"v_rsq_f32 v{R+4+x}, v{R+4+x}")
    for x in range(4): k(f"v_mul_f32 v{R+x}, v{R+x}, v{R+4+x}")
    for x in range(4): k(f"v_fma_f32 v{R+x}, v{R+x}, v{R+4+x}, s49")
    for x in range(4): k(f"v_rsq_f32 v{R+x}, v{R+x}")
    for x in range(4): k(f"v_mul_f32 v{R+x}, v{R+x}, v{R+4+x}")
    for x in range(4): k(f"v_mul_f32 v{R+4+x}, v{TT+x}, v{R+x}")
    for rb in range(2):
        for x in range(4): k(f"v_mov_b32_dpp v{S+4*rb+x}, v{R+x} row_newbcast:{8*rb} row_mask:0xf bank_mask:0xf")
        for x in range(4): k(f"v_mov_b32_dpp v{Q+4*rb+x}, v{R+4+x} row_newbcast:{8*rb} row_mask:0xf bank_mask:0xf")
    def norm(cb):
        for x in range(8): k(f"v_fma_f32 v{acc(cb,0)+x}, v{acc(cb,0)+x}, v{S+x}, -v{Q+x}")
    H2 = G + 32
    norm(0); cvst(0, H2, 44, 0); norm(1); cvst(1, H2 + 4, 44, 1024)
    LE = k.label("no8c")
    k(f"s_cmp_lg_u32 s3, 0\ns_cbranch_scc1 {LE}")
    norm(8); cvst(8, H2 + 8, 46, 0)
    k(f"{LE}:")
    if stamps: stamp_end(k, kidx)
    k(f"{END}:\ns_endpgm")
    return k, (name, (256, 1, 1), (256, 1, 1), ST + 1024)

if __name__ == "__main__":
    k, l = gen_k2(kidx=0, stamps=True)
    emit_file("k2.s", [l], [k])
```

```python
from asmlib import *
from layout import *
from k4 import weave_at, MF
import struct
def fbits(x): return struct.unpack("<I", struct.pack("<f", x))[0]

def gen_k3(name="k3_kernel", kidx=2, stamps=False, aux_w="", aux_h="", aux_o="", npf=0, pfaux='', pfd=2, pfn=288, pfw=4, D=6, D0=3, L=4, dbg='', jit=None, cpf=None):
    NS = 32; NB = 8
    k = K(name, vgpr=184, agpr=96)
    END = k.label("end")
    ACC = 56
    def acc(fb, db): return ACC + (fb * 3 + db) * 4
    BF = 152
    def bf(fb): return BF + fb * 4
    VH = 2
    VW = 4
    VT = 8
    BI = 16
    VU = 32
    VX = 38
    T0 = 40
    def abuf(n, db): return (n % NB) * 12 + db * 4
    nwg = 216 + npf
    HELP = k.label("help")
    k(f"s_cmp_ge_u32 s2, 216\ns_cbranch_scc1 {HELP if npf else END}")
    if stamps: stamp_begin(k)
    k(f"""
    s_load_dwordx4 s[4:7], s[0:1], 32          ; w1, b1
    s_load_dwordx2 s[10:11], s[0:1], 80        ; ws
    v_lshrrev_b32 v40, 6, v0
    v_and_b32 v1, 63, v0                       ; lane
    s_and_b32 s33, s2, 7
    v_readfirstlane_b32 s3, v40                ; wave
    s_mul_i32 s33, s33, 27
    s_lshr_b32 s34, s2, 3
    s_add_u32 s33, s33, s34                    ; tau
    s_mul_i32 s34, s33, 171
    s_lshr_b32 s34, s34, 10
    s_mul_i32 s35, s34, 6
    s_sub_u32 s35, s33, s35                    ; dt
    s_lshr_b32 s36, s3, 1                      ; kh
    s_and_b32 s37, s3, 1                       ; mh
    v_lshlrev_b32 v{VH}, 4, v1
    v_lshrrev_b32 v40, 4, v1                   ; g = l>>4
    v_and_b32 v41, 15, v1                      ; i
    s_lshl_b32 s38, s37, 4
    v_add_u32 v42, s38, v40
    s_movk_i32 s39, 9216
    v_mul_u32_u24 v42, s39, v42
    v_lshlrev_b32 v43, 1, v40
    v_xor_b32 v43, v43, v41
    v_xor_b32 v44, 8, v43
    v_lshl_add_u32 v{VW}, v43, 4, v42
    v_lshl_add_u32 v{VW+1}, v44, 4, v42
    v_add_u32 v{VW+2}, {2*(4*9216-1024)}, v{VW}
    v_add_u32 v{VW+1}, {4*9216-1024}, v{VW+1}
    v_add_u32 v{VW+3}, {2*(4*9216-1024)}, v{VW+1}
    s_mul_i32 s40, s36, 36
    s_mul_i32 s41, s35, 6
    s_add_u32 s40, s40, s41
    s_mul_i32 s41, s37, 3
    s_add_u32 s40, s40, s41
    s_lshl_b32 s40, s40, 10
    s_mul_i32 s41, s36, {32*9216}
    s_lshl_b32 s42, s34, 8
    s_add_u32 s41, s41, s42                    ; s41 = w1 soffset
    s_lshl_b32 s42, s36, 16
    s_lshl_b32 s43, s37, 12
    s_add_u32 s43, s43, s42
    s_waitcnt lgkmcnt(0)
    """)
    srd(k, 12, 4, 5, 2048 * 9216)
    srd(k, 16, 10, 11, HL_SZ, HL_OFF)
    def dma(n):
        out = []
        for q in range(4):
            g = []
            if q == 0: g += [f"s_add_u32 m0, s43, {(n % NB) * 8192}", "s_nop 0"]
            g.append(f"buffer_load_dwordx4 v{VW+q}, s[12:15], s41 offen offset:{q*1024} {aux_w} lds")
            if q == 3 and 'same' not in dbg: g.append(f"s_add_u32 s41, s41, {64*9216}")
            out.append(g)
        return out
    def hld(n):
        out = []
        for db in range(3):
            g = [f"buffer_load_dwordx4 {a(abuf(n,db),4)}, v{VH}, s[16:19], s40 offen offset:{db*1024} {aux_h}".rstrip()]
            if db == 2 and 'same' not in dbg: g.append(f"s_add_u32 s40, s40, {72*1024}")
            out.append(g)
        return out
    for g in dma(0) + hld(0): k(g)
    srd(k, 20, 6, 7, 9216)
    srd(k, 24, 10, 11, U_SZ, U_OFF)
    k(f"""
    s_lshl_b32 s44, s34, 8
    s_lshl_b32 s45, s36, 7
    s_add_u32 s44, s44, s45
    v_lshlrev_b32 v42, 3, v40
    """)
    for j in range(4):
        k(f"buffer_load_dwordx2 {v(T0+8+2*j,2)}, v42, s[20:23], s44 offen offset:{32*j}")
    for n in range(1, D0):
        for g in dma(n) + hld(n): k(g)
    k(f"""
    v_bfe_u32 v42, v1, 2, 4                    ; row
    v_and_b32 v43, 7, v42
    v_and_b32 v44, 3, v1
    v_lshlrev_b32 v44, 3, v44
    v_lshl_add_u32 v44, v42, 8, v44
    v_add_u32 v44, s42, v44
    s_xor_b32 s45, s36, 1
    s_lshl_b32 s45, s45, 2
    v_xor_b32 v43, s45, v43
    """)
    for fb in range(8):
        k(f"v_xor_b32 v45, {fb}, v43\nv_lshl_add_u32 v{VT+fb}, v45, 5, v44")
    k(f"""
    s_lshl_b32 s48, s34, 1
    s_add_u32 s48, s48, s36
    s_mul_i32 s48, s48, 72
    s_mul_i32 s45, s35, 6
    s_add_u32 s48, s48, s45
    s_mul_i32 s45, s37, 3
    s_add_u32 s48, s48, s45
    s_lshl_b32 s48, s48, 10
    s_add_u32 s49, s48, 36864
    """)
    k(f"""
    s_mul_i32 s45, s37, 12288
    s_add_u32 s46, s45, s42
    s_xor_b32 s47, s46, 0x10000
    v_add_u32 v{VX}, s46, v{VH}
    v_add_u32 v{VX+1}, s47, v{VH}
    """)
    def reads(t):
        n, fb = divmod(t, 8)
        return [f"ds_read_b64_tr_b16 {v(bf(fb)+2*u,2)}, v{VT+fb} offset:{(n%NB)*8192 + u*4096}" for u in range(2)]
    def mfmas(t):
        n, fb = divmod(t, 8)
        out = []
        for db in range(3):
            c = v(acc(fb, db), 4)
            if n == 0: c = "0" if fb < 4 else v(BI + 4 * (fb - 4), 4)
            out.append(f"{MF} {v(acc(fb,db),4)}, {v(bf(fb),4)}, {a(abuf(n,db),4)}, {c}")
        return out
    k(f"s_waitcnt vmcnt({7*(D0-1)})")
    for j in range(4):
        for r in range(2):
            k(f"v_lshlrev_b32 v{BI+4*j+2*r}, 16, v{T0+8+2*j+r}\nv_and_b32 v{BI+4*j+2*r+1}, 0xffff0000, v{T0+8+2*j+r}")
    k("s_barrier")
    if stamps: stamp_mid(k, 0)
    for t in range(L): k(reads(t))
    issued = [n for n in range(D0) for _ in range(7)]
    nxt = D0
    pend = []
    for t in range(NS * 8):
        n, fb = divmod(t, 8)
        pre = []
        left = min(L, NS * 8 - t)
        pre.append(f"s_waitcnt lgkmcnt({2*(left-1)})")
        side = []
        if fb == 8 - L and n + 1 < NS:
            cnt = sum(1 for x in issued if x > n + 1)
            assert all(st > n + 1 for st, _ in pend) and cnt < 64
            bar = [f"s_waitcnt vmcnt({cnt})"] + ([] if 'nobar' in dbg else ["s_barrier"])
            todo = 2 if nxt - n < D else 1
            for _ in range(todo):
                if nxt < NS and nxt - NB <= n - 1 and 'noload' not in dbg:
                    pend += [(nxt, g) for g in dma(nxt) + hld(nxt)]
                    nxt += 1
            per = -(-len(pend) // 8)
        else:
            bar = []
        m = mfmas(t)
        r = reads(t + L) if t + L < NS * 8 else []
        ld = []
        if pend:
            ld, pend = pend[:per], pend[per:]
            issued += [st for st, _ in ld]
        ld = [g for _, g in ld]
        if n == NS - 1 and fb >= 4:
            ld = [[f"ds_write_b128 v{VX}, {v(acc(fb-4,db),4)} offset:{((fb-4)*3+db)*1024}"] for db in range(3)]
            pre = [f"s_waitcnt lgkmcnt({2*(left-1) + 3*(fb-4)})"]
        if cpf and n == NS - 1 and fb < 4:
            if fb == 0:
                kk = K(name); kk.nlab = 900
                code_pf(kk, "k4_kernel", "Lcode_end", T0 + 2, T0 + 6, 56, n=27, wave=3)
                cl_ = kk.lines
                cg = [cl_[:5], cl_[5:7], cl_[7:9], cl_[9:10], cl_[10:11], cl_[11:12], cl_[12:13], cl_[13:14], cl_[14:15], cl_[15:16], cl_[16:]]
            ld = cg[3 * fb: 3 * fb + 3]
        k(pre)
        k(m[0]); k(bar); k(r[:1]);
        for g in ld[:1]: k(g)
        k(m[1]); k(r[1:])
        for g in ld[1:2]: k(g)
        k(m[2])
        for g in ld[2:]: k(g)
    if stamps: stamp_mid(k, 1)
    k("s_waitcnt lgkmcnt(0)\ns_barrier")
    for fb in range(4):
        for db in range(3):
            k(f"ds_read_b128 {v(acc(fb,db),4)}, v{VX+1} offset:{(fb*3+db)*1024}")
    c1 = -2.0 * 0.7978845608028654 * 1.4426950408889634
    k(f"""
    s_mov_b32 s50, {fbits(c1)}
    s_mov_b32 s51, {fbits(c1)}
    s_mov_b32 s52, {fbits(c1 * 0.044715)}
    s_mov_b32 s53, {fbits(c1 * 0.044715)}
    s_mov_b32 s54, 1.0
    s_mov_b32 s55, 1.0
    v_mov_b32 v{T0}, s50
    v_mov_b32 v{T0+1}, s50
    """)
    if stamps: stamp_mid(k, 2)
    order = [(m_, db) for m_ in range(2) for db in range(3)]
    for (m_, db) in order:
        k(f"s_waitcnt lgkmcnt({11 - ((2*m_+1)*3+db)})")
        xs = []
        for fb in (2 * m_, 2 * m_ + 1):
            for h in (0, 2):
                xs.append((acc(fb + 4, db) + h, acc(fb, db) + h))
        for (x, t) in xs: k(f"v_pk_add_f32 {v(x,2)}, {v(x,2)}, {v(t,2)}")
        for (x, t) in xs: k(f"v_pk_mul_f32 {v(t,2)}, {v(x,2)}, {v(x,2)}")
        for (x, t) in xs: k(f"v_pk_fma_f32 {v(t,2)}, {v(t,2)}, s[52:53], {v(T0,2)}")
        for (x, t) in xs: k(f"v_pk_mul_f32 {v(t,2)}, {v(t,2)}, {v(x,2)}")
        for (x, t) in xs: k(f"v_exp_f32 v{t}, v{t}\nv_exp_f32 v{t+1}, v{t+1}")
        for (x, t) in xs: k(f"v_pk_add_f32 {v(t,2)}, {v(t,2)}, s[54:55]")
        for (x, t) in xs: k(f"v_rcp_f32 v{t}, v{t}\nv_rcp_f32 v{t+1}, v{t+1}")
        for (x, t) in xs: k(f"v_pk_mul_f32 {v(x,2)}, {v(x,2)}, {v(t,2)}")
        o = acc(2 * m_, db)
        for i, (x, t) in enumerate(xs): k(f"v_cvt_pk_bf16_f32 v{o+i}, v{x}, v{x+1}")
        k(f"buffer_store_dwordx4 {v(o,4)}, v{VH}, s[24:27], s{48+m_} offen offset:{db*1024} {aux_o}".rstrip())
    if stamps: stamp_end(k, kidx)
    k(f"{END}:\ns_endpgm")
    if npf:
        LP = k.label("pf")
        k(f"""
        {HELP}:
        s_cmp_ge_u32 s2, 256
        s_cbranch_scc1 {END}
        """)
        if stamps: stamp_begin(k)
        if jit is not None:
            LJ = k.label("jit"); LH = k.label("jh"); LN = k.label("jn")
            k(f"""
            s_load_dwordx2 s[4:5], s[0:1], 32
            s_load_dwordx2 s[10:11], s[0:1], 80
            v_lshrrev_b32 v2, 6, v0
            v_and_b32 v1, 63, v0
            s_and_b32 s33, s2, 7
            v_readfirstlane_b32 s3, v2
            s_sub_u32 s34, s2, 216
            s_lshr_b32 s34, s34, 3
            s_lshl_b32 s34, s34, 2
            s_add_u32 s34, s34, s3                     ; 0..19
            s_add_u32 s34, s34, {18 * jit}
            s_mul_i32 s33, s33, 1152
            s_mov_b32 s40, {(1 << 32) // 9 + 1}
            s_movk_i32 s41, {9216 - 9 * 128}
            v_lshlrev_b32 v3, 7, v1
            s_waitcnt lgkmcnt(0)
            """)
            srd(k, 12, 4, 5, 2048 * 9216)
            srd(k, 16, 10, 11, HL_SZ, HL_OFF)
            k(f"""
            {LJ}:
            s_mul_i32 s35, s34, 3641
            s_lshr_b32 s35, s35, 16                    ; stage = q / 18
            s_mul_i32 s36, s35, 18
            s_sub_u32 s36, s34, s36                    ; r
            s_mul_i32 s35, s35, 9
            s_add_u32 s35, s35, s36                    ; 9 stage + r
            s_cmp_ge_u32 s36, 9
            s_cbranch_scc1 {LH}
            s_lshl_b32 s35, s35, 6
            v_add_u32 v4, s35, v1
            v_mul_hi_u32 v5, v4, s40
            v_mul_u32_u24 v5, s41, v5
            v_lshl_add_u32 v4, v4, 7, v5
            buffer_load_dword v8, v4, s[12:15], s33 offen
            s_branch {LN}
            {LH}:
            s_sub_u32 s35, s35, 9
            s_lshl_b32 s35, s35, 13
            buffer_load_dword v8, v3, s[16:19], s35 offen
            {LN}:
            s_add_u32 s34, s34, 20
            s_waitcnt vmcnt({pfd - 1})
            s_cmp_lt_u32 s34, 576
            s_cbranch_scc1 {LJ}
            """)
        k(f"""
        s_load_dwordx2 s[4:5], s[0:1], 48
        v_lshrrev_b32 v2, 6, v0
        v_and_b32 v1, 63, v0
        s_and_b32 s33, s2, 7
        v_readfirstlane_b32 s3, v2
        s_sub_u32 s34, s2, 216
        s_lshr_b32 s34, s34, 3
        s_mul_i32 s34, s34, {pfw}
        s_add_u32 s34, s34, s3                     ; 0..19
        s_cmp_ge_u32 s3, {pfw}
        s_cbranch_scc1 {END}
        v_lshrrev_b32 v2, 4, v1
        v_and_b32 v3, 15, v1
        v_lshlrev_b32 v3, 7, v3
        v_lshl_add_u32 v3, v2, 12, v3
        s_lshr_b32 s35, s33, 1
        s_mul_i32 s35, s35, {1152 * 4096}
        s_and_b32 s33, s33, 1
        s_lshl_b32 s33, s33, 11
        s_add_u32 s33, s33, s35
        s_lshl_b32 s35, s34, 14
        s_add_u32 s33, s33, s35
        s_waitcnt lgkmcnt(0)
        """)
        srd(k, 12, 4, 5, 4608 * 4096)
        k(f"""
        {LP}:
        buffer_load_dword v8, v3, s[12:15], s33 offen {pfaux}
        s_add_u32 s33, s33, {5 * pfw * 16384}
        s_add_u32 s34, s34, {5 * pfw}
        s_waitcnt vmcnt({pfd - 1})
        s_cmp_lt_u32 s34, {pfn}
        s_cbranch_scc1 {LP}
        """)
        if stamps: stamp_end(k, kidx)
        k("s_endpgm")
    return k, (name, (nwg, 1, 1), (256, 1, 1), 131072)

if __name__ == "__main__":
    k, l = gen_k3(kidx=0, stamps=True)
    emit_file("k3.s", [l], [k])
```

```python
from asmlib import *
from layout import *

def gen_k4(name="k4_kernel", kidx=3, stamps=False, aux_w="", aux_u="", aux_o="", D=4, LA=5, BS=1, P=2,
           dbg="", xpos=8, aux_x="sc1", nph=1, D0=None, ramp=1.25, ldw=0, prio=0, rot=None, mix=0):
    NK = 36; NB = 8; SLB = 9216
    D0 = D0 or D
    k = K(name, vgpr=256)
    sb = SB(k)
    END = k.label("end")
    VL = 2
    VW = 3
    VA = 5
    VT = 8
    VS8 = 12; VO = 13; VO8 = 15; VB2 = 16; VF = 17
    T = 20
    ACC = 40
    def acc(j, nb): return ACC + (j * 2 + nb) * 4
    AF = 112
    def af(t): return AF + (t % 8) * 4
    BF = 144
    def bf(n, nb): return BF + ((n % 4) * 2 + nb) * 4
    HRF = 176
    SEL = 188; B2F = 194; ONE = 200
    PK = 204
    XB = 131072
    k(f"s_cmp_ge_u32 s2, 256\ns_cbranch_scc1 {END}")
    if stamps: stamp_begin(k)
    k(f"""
    s_load_dwordx4 s[4:7], s[0:1], 48          ; w2, b2
    s_load_dwordx2 s[10:11], s[0:1], 80        ; ws
    s_load_dwordx2 s[8:9], s[0:1], 64          ; out
    v_lshrrev_b32 v{T}, 6, v0
    v_and_b32 v1, 63, v0                       ; lane
    s_bfe_u32 s32, s2, 0x20001                 ; kq
    v_readfirstlane_b32 s3, v{T}               ; wave
    s_bfe_u32 s33, s2, 0x20003                 ; T
    s_and_b32 s34, s2, 1
    s_lshl_b32 s34, s34, 3
    s_lshr_b32 s35, s2, 5
    s_add_u32 s34, s34, s35                    ; st
    {"s_lshr_b32 s64, s3, 2" if ldw else ""}
    {"s_and_b32 s3, s3, 3" if ldw else ""}
    v_lshrrev_b32 v{T}, 4, v1                  ; g
    v_and_b32 v{T+1}, 15, v1                   ; i
    v_lshlrev_b32 v{T+2}, 1, v{T}
    v_xor_b32 v{T+2}, v{T+2}, v{T+1}
    v_lshlrev_b32 v{T+3}, 12, v{T}
    v_lshl_add_u32 v{VW}, v{T+2}, 4, v{T+3}
    v_xor_b32 v{VW+1}, 0x80, v{VW}
    v_add_u32 v{VW+1}, {4*4096 - 1024}, v{VW+1}
    v_lshlrev_b32 v{VL}, 4, v1
    s_mul_i32 s36, s32, 144
    s_add_u32 s36, s36, s3
    s_lshl_b32 s36, s36, 15
    s_lshl_b32 s37, s34, 8
    s_add_u32 s36, s36, s37                    ; s36 = w2 soffset
    s_mul_i32 s37, s32, {36*36}
    s_mul_i32 s38, s33, 9
    s_add_u32 s37, s37, s38
    s_mul_i32 s39, s3, 36
    s_add_u32 s39, s39, s37
    s_add_u32 s39, s39, 10
    s_lshl_b32 s39, s39, 10
    s_add_u32 s38, s3, s32
    s_and_b32 s38, s38, 3
    s_lshl_b32 s38, s38, 1
    s_add_u32 s37, s37, s38
    s_lshl_b32 s37, s37, 10                    ; s37 = U soffset
    s_lshl_b32 s40, s3, 12
    s_lshl_b32 s41, s3, 10
    s_add_u32 s41, s41, {XB}
    s_mov_b32 m0, s40
    s_mov_b32 s14, {4608*4096}
    s_mov_b32 s15, 0x20000
    s_mov_b32 s18, {U_SZ + 2048}
    s_mov_b32 s19, 0x20000
    s_waitcnt lgkmcnt(0)
    s_mov_b32 s12, s4
    s_mov_b32 s13, s5
    s_add_u32 s16, s10, {U_OFF - 2048}
    s_addc_u32 s17, s11, 0
    """)
    S = []
    for n in range(NK):
        same = "same" in dbg
        pre = [f"s_add_u32 m0, s40, {(n % NB) * 16384}"] if n else []
        S.append((pre, f"buffer_load_dwordx4 v{VW}, s[12:15], s36 offen {aux_w} lds", [], n))
        S.append(([], f"buffer_load_dwordx4 v{VW+1}, s[12:15], s36 offen offset:1024 {aux_w} lds", [] if same else ["s_add_u32 s36, s36, 131072"], n))
        S.append(([], f"buffer_load_dwordx4 v{VL}, s[16:19], s37 offen offset:2048 {aux_u} lds", [], n))
        S.append(([], f"buffer_load_dwordx4 v{VL}, s[16:19], s37 offen offset:3072 {aux_u} lds", [] if same else ["s_add_u32 s37, s37, 36864"], n))
        if mix: S[-3], S[-2] = S[-2], S[-3]
        if n % 4 == 0:
            S.append(([f"s_add_u32 m0, s41, {((n // 4) % 3) * 4096}"], f"buffer_load_dwordx4 v{VL}, s[16:19], s39 offen {aux_u} lds", [] if same else [f"s_add_u32 s39, s39, {4*36864}"], n))
    if "noU" in dbg: S = [x if (x[3] < D or "s[12:15]" in x[1]) else (x[0], "s_nop 0", x[2], x[3]) for x in S]
    if "noW" in dbg: S = [x if (x[3] < D or "s[16:19]" in x[1]) else (x[0], "s_nop 0", x[2], x[3]) for x in S]
    NL = len(S)
    if ldw:
        LC = k.label("comp")
        k(f"s_cmp_eq_u32 s64, 0\ns_cbranch_scc1 {LC}")
        lb = SB(k); lp = 0
        if rot:
            k(f"""
            s_lshr_b32 s65, s2, 5
            s_mul_i32 s65, s65, {rot[0]}
            s_mul_i32 s66, s33, {rot[1]}
            s_add_u32 s65, s65, s66
            s_mul_i32 s66, s65, 57
            s_lshr_b32 s66, s66, 9
            s_mul_i32 s66, s66, 9
            s_sub_u32 s65, s65, s66
            s_lshl_b32 s66, s65, 19
            s_add_u32 s36, s36, s66
            s_mul_i32 s66, s65, {4*36864}
            s_add_u32 s37, s37, s66
            s_add_u32 s39, s39, s66
            s_sub_u32 s65, 9, s65
            """)
            S2 = []
            for (pre, ins, post, n) in S:
                if n % 4 == 3 and post and "s37" in post[0]:
                    post = post + ["s_sub_u32 s65, s65, 1", "s_cmp_eq_u32 s65, 0", f"s_cselect_b32 s66, {36*131072}, 0", f"s_cselect_b32 s67, {36*36864}, 0",
                                   "s_sub_u32 s36, s36, s66", "s_sub_u32 s37, s37, s67", "s_sub_u32 s39, s39, s67"]
                S2.append((pre, ins, post, n))
            S = S2
        def lissue(upto):
            nonlocal lp
            while lp < NL and S[lp][3] <= upto:
                pre, ins, post, n = S[lp]
                if pre: k(pre); k("s_nop 0")
                lb.vm(ins, n); k(post); lp += 1
                if ins.startswith("s_nop"): lb.q["vmcnt"].pop()
        bars = list(range(NK - P)) + [NK - 1]
        lissue(D0 - 1)
        for i, up in enumerate(bars):
            assert all(x[3] > up for x in S[lp:])
            lb.need("vmcnt", lambda tg: tg <= up)
            k("s_barrier")
            lissue(min(i + D, i - 2 + NB, D0 - 1 + 2 * (i + 1)))
        k(f"s_endpgm\n{LC}:")
        if prio: k(f"s_setprio {prio}")
        S = []; NL = 0
    ptr = [0]
    def load(free, nop=False):
        pre, ins, post, n = S[ptr[0]]
        assert n - NB <= free, (n, free)
        assert n % 4 or (n // 4 - 3) * 4 + 3 <= free
        ptr[0] += 1
        sb.vm(ins, n); k(post)
        if ins.startswith("s_nop"): sb.q["vmcnt"].pop()
        if ptr[0] < NL and S[ptr[0]][0]:
            k(S[ptr[0]][0])
            if nop: k("s_nop 0")
    su = []
    def add(txt):
        for l in txt.strip("\n").split("\n"):
            l = l.split(";")[0].strip()
            if not l: continue
            if l.startswith("s_addc"): su[-1] = su[-1] + "\n" + l
            else: su.append(l)
    add(f"""
    v_add_u32 v{VA}, 0x10000, v{VL}
    v_add_u32 v{VA+1}, {XB}, v{VL}
    v_bfe_u32 v{T+2}, v1, 2, 3                 ; row & 7
    v_lshrrev_b32 v{T+3}, 5, v1
    v_lshlrev_b32 v{T+3}, 12, v{T+3}
    v_lshl_add_u32 v{T+3}, v{T+2}, 8, v{T+3}
    v_and_b32 v{T+4}, 3, v1
    v_lshl_add_u32 v{T+3}, v{T+4}, 3, v{T+3}
    s_lshl_b32 s42, s3, 1
    v_xor_b32 v{T+2}, s42, v{T+2}
    v_lshl_add_u32 v{VT}, v{T+2}, 5, v{T+3}
    v_xor_b32 v{VT+2}, 32, v{VT}
    v_add_u32 v{VT+1}, 0x10000, v{VT}
    v_add_u32 v{VT+3}, 0x10000, v{VT+2}
    """)
    nfirst = len(su)
    add(f"""
    s_add_u32 s20, s10, {HR_OFF}
    s_addc_u32 s21, s11, 0
    s_mov_b32 s22, {max(XQ_OFF + XQ_SZ, FLG_OFF + FLG_SZ) - HR_OFF}
    s_mov_b32 s23, 0x20000
    s_mov_b32 s24, s6
    s_mov_b32 s25, s7
    s_mov_b32 s26, 4096
    s_mov_b32 s27, 0x20000
    s_mov_b32 s28, s8
    s_mov_b32 s29, s9
    s_mov_b32 s30, {2048*1152}
    s_mov_b32 s31, 0x20000
    s_lshl_b32 s42, s34, 2
    s_add_u32 s42, s42, s3
    s_lshl_b32 s43, s42, 6
    s_mul_i32 s44, s42, {32*1152}
    s_mul_i32 s45, s33, 288
    s_add_u32 s44, s44, s45
    s_add_u32 s45, s44, 256
    s_lshl_b32 s46, s32, 6
    s_add_u32 s44, s44, s46
    s_mul_i32 s42, s42, 36
    s_mul_i32 s46, s33, 9
    s_add_u32 s42, s42, s46
    s_add_u32 s46, s42, 8
    s_lshl_b32 s46, s46, 10
    s_lshl_b32 s47, s32, 1
    s_add_u32 s42, s42, s47
    s_lshl_b32 s42, s42, 10
    s_lshr_b32 s47, s2, 3
    s_lshl_b32 s47, s47, 1
    s_and_b32 s48, s2, 1
    s_add_u32 s47, s47, s48
    s_lshl_b32 s48, s47, 2
    s_add_u32 s48, s48, s3
    s_lshl_b32 s48, s48, 7
    s_add_u32 s48, s48, {FLG_OFF - HR_OFF}
    s_lshl_b32 s49, s32, 2
    s_add_u32 s49, s49, s48
    s_mul_i32 s47, s47, {12*SLB}
    s_add_u32 s47, s47, {XQ_OFF - HR_OFF}
    s_lshl_b32 s54, s3, 11
    """)
    for i in (1, 2, 3):
        add(f"""
        s_add_u32 s55, s32, {i}
        s_and_b32 s55, s55, 3
        s_mul_i32 s55, s55, {3*SLB}
        s_add_u32 s55, s55, s47
        s_add_u32 s55, s55, s54
        s_add_u32 s{49+i}, s55, {(i-1)*SLB}
        """)
    add(f"""
    s_sub_u32 s55, s3, s32
    s_add_u32 s55, s55, 3
    s_and_b32 s55, s55, 3
    s_mul_i32 s56, s3, 3
    s_add_u32 s55, s55, s56
    s_mul_i32 s55, s55, {SLB}
    s_add_u32 s55, s55, s47
    s_add_u32 s53, s55, 8192
    s_mul_i32 s55, s32, {3*SLB}
    s_add_u32 s55, s55, s47
    s_add_u32 s56, s55, s54
    s_add_u32 s57, s56, {SLB}
    s_add_u32 s58, s56, {2*SLB}
    s_add_u32 s59, s55, 8192
    s_add_u32 s60, s59, {SLB}
    s_add_u32 s61, s59, {2*SLB}
    s_cmp_eq_u32 s3, s32
    s_cselect_b32 s62, 0x40000000, 0
    v_or_b32 v{VS8}, s62, v{VL}
    v_mov_b32 v{VF}, 0
    s_movk_i32 s63, 1152
    v_mul_u32_u24 v{T+2}, s63, v{T+1}
    v_lshrrev_b32 v{T+3}, 1, v{T}
    v_lshl_add_u32 v{T+2}, v{T+3}, 4, v{T+2}
    v_and_b32 v{T+3}, 1, v{T}
    v_lshl_add_u32 v{VO}, v{T+3}, 5, v{T+2}
    v_add_u32 v{VO+1}, {16*1152}, v{VO}
    v_mul_u32_u24 v{T+3}, {16*1152}, v{T+3}
    v_add_u32 v{VO8}, v{T+3}, v{T+2}
    v_cmp_gt_u32 vcc, 16, v1
    v_lshlrev_b32 v{T+2}, 1, v1
    v_mov_b32 v{T+3}, 0x40000000
    v_mov_b32 v{B2F+1}, 0
    v_cndmask_b32 v{VB2}, v{T+3}, v{T+2}, vcc
    v_mov_b32 v{B2F+2}, 0
    v_mov_b32 v{B2F+3}, 0
    v_mov_b32 v{B2F+4}, 0
    v_mov_b32 v{ONE}, 0x3f803f80
    v_mov_b32 v{ONE+1}, 0x3f803f80
    v_mov_b32 v{ONE+2}, 0x3f803f80
    v_mov_b32 v{ONE+3}, 0x3f803f80
    v_lshrrev_b32 v{T+2}, 2, v{T+1}
    v_cmp_eq_u32 vcc, v{T+2}, v{T}
    v_and_b32 v{T+3}, 1, v{T+1}
    v_lshlrev_b32 v{T+3}, 4, v{T+3}
    v_mov_b32 v{T+4}, 0x3f80
    v_lshlrev_b32 v{T+4}, v{T+3}, v{T+4}
    v_cndmask_b32 v{T+4}, 0, v{T+4}, vcc
    v_and_b32 v{T+3}, 2, v{T+1}
    v_cmp_eq_u32 vcc, 0, v{T+3}
    v_mov_b32 v{SEL+2}, 0
    v_mov_b32 v{SEL+3}, 0
    v_cndmask_b32 v{SEL}, 0, v{T+4}, vcc
    v_cndmask_b32 v{SEL+1}, v{T+4}, 0, vcc
    v_mov_b32 v{SEL+4}, v{SEL}
    v_mov_b32 v{SEL+5}, v{SEL+1}
    """)
    i = su.index("s_cmp_eq_u32 s3, s32"); su[i:i+2] = [su[i] + "\n" + su[i+1]]
    npre = sum(1 for x in S if x[3] < D0)
    nD = sum(1 for x in S if x[3] < D)
    skip = 4
    per = -(-len(su) // (npre - skip)) if npre else 0
    for i in range(npre):
        load(-1, nop=(i < skip - 1 or not su))
        if i >= skip - 1:
            k(su[:per]); su = su[per:]
    k(su)
    JOIN = k.label("join")
    def mainloop(ph):
        units = [(n, j) for n in range(NK - P) for j in range(9)]
        units += [(n, j) for j in (2, 3, 4, 5, 6, 7, 8, 0, 1) for n in range(NK - P, NK)]
        NU = len(units)
        def rdA(t):
            n, j = units[t]
            if j == 8: return (f"ds_read_b128 {v(af(t),4)}, v{VA+1} offset:{((n//4)%3)*4096 + (n%4)*1024}", ("A", t))
            s_ = n % NB
            return (f"ds_read_b128 {v(af(t),4)}, v{VA if s_ >= 4 else VL} offset:{(s_%4)*16384 + (j>>1)*4096 + 2048 + (j&1)*1024}", ("A", t))
        def rdB(n):
            s_ = n % NB
            return [(f"ds_read_b64_tr_b16 {v(bf(n,nb)+2*u,2)}, v{VT+2*nb+(s_>=4)} offset:{(s_%4)*16384 + u*8192}", ("B", n)) for nb in range(2) for u in range(2)]
        landed = [-1]
        free = [-1]
        def barrier(upto, cur):
            sb.need("vmcnt", lambda tg: isinstance(tg, int) and tg <= upto)
            assert all(x[3] > upto for x in S[ptr[0]:]) or "noload" in dbg
            if "nobar" not in dbg: k("s_barrier")
            landed[0] = upto; free[0] = cur - 1
        def grp(n):
            if n >= NK - P: return NK - 1
            return min((n // BS) * BS + BS - 1, NK - P - 1)
        barrier(grp(0), 0)
        if stamps: stamp_mid(k, 0)
        for x in rdB(0): sb.ds(*x)
        for t in range(LA): sb.ds(*rdA(t))
        extra = [f"buffer_load_dwordx4 {v(HRF,4)}, v{VL}, s[20:23], s42 offen",
                 f"buffer_load_dwordx4 {v(HRF+4,4)}, v{VL}, s[20:23], s42 offen offset:1024",
                 f"buffer_load_dwordx4 {v(HRF+8,4)}, v{VL}, s[20:23], s46 offen",
                 f"buffer_load_ushort v{B2F}, v{VB2}, s[24:27], s43 offen",
                 f"buffer_load_ushort v{B2F+5}, v{VB2}, s[24:27], s43 offen offset:32"]
        wq = []
        def put(ins):
            if ins.startswith("v_"): k(ins)
            else: sb.vm(ins, "E")
        def flush(maxn):
            c = 0
            while wq and c < maxn and len(k.lines) - wq[0][0] >= 8:
                put(wq.pop(0)[1]); c += 1
        bq = []; bdone = {0}
        per_k = NL / NK
        for t, (n, j) in enumerate(units):
            cur = min(n, NK - P)
            sb.needds(("A", t), ("B", n))
            side = []
            for nb in range(2):
                c = "0" if n == 0 else v(acc(j, nb), 4)
                k(f"{MF} {v(acc(j,nb),4)}, {v(af(t),4)}, {v(bf(n,nb),4)}, {c}")
                if n == NK - 1 and j >= 2 and nb == 1 and "nox" not in dbg:
                    o = PK + 4 * (j - 2)
                    for x in range(4): wq.append((len(k.lines), f"v_cvt_pk_bf16_f32 v{o+x}, v{acc(j,0)+2*x}, v{acc(j,0)+2*x+1}"))
                    if j < 8: wq.append((0, f"buffer_store_dwordx4 {v(o,4)}, v{VL}, s[20:23], s{49 + j//2} offen offset:{(j&1)*1024} {aux_x}"))
                    else: wq.append((0, f"buffer_store_dwordx4 {v(o,4)}, v{VS8}, s[20:23], s53 offen {aux_x}"))
                if nb == 0 and t + LA < NU:
                    n2 = units[t + LA][0]
                    if n2 > landed[0]: barrier(grp(n2), cur)
                    for n3 in ([n2] if n2 < NK - P else range(NK - P, NK)):
                        if n3 not in bdone: bq += rdB(n3); bdone.add(n3)
                    if "halfA" in dbg and units[t + LA][1] % 2: sb.ds("s_nop 0", ("A", t + LA)); sb.q["lgkmcnt"].pop()
                    else: sb.ds(*rdA(t + LA))
                if nb == 1:
                    for _ in range(2):
                        if bq: sb.ds(*bq.pop(0))
                if "noload" not in dbg and not ldw:
                    x_ = (2 * t + nb + 1 - ph) / 18.0
                    want = min(NL, int(min(npre + per_k * x_ * ramp, nD + per_k * x_) + 0.76))
                    if ptr[0] < want and S[ptr[0]][3] - NB <= free[0]: load(free[0])
                if n == xpos and nb == 0 and extra and j >= 2: sb.vm(extra.pop(0), "X")
                flush(2)
        assert ptr[0] == NL or "noload" in dbg
        if stamps: stamp_mid(k, 1)
        sb.needvm("X")
        tail = []
        for j in (0, 1, 8):
            for nb in range(2): tail.append(f"{MF} {v(acc(j,nb),4)}, {v(HRF+4*min(j,2),4)}, {v(SEL+2*nb,4)}, {v(acc(j,nb),4)}")
        for j in (0, 1, 8):
            for nb in range(2): tail.append(f"{MF} {v(acc(j,nb),4)}, {v(ONE,4)}, {v(B2F+2*nb,4)}, {v(acc(j,nb),4)}")
        main = [x for x in tail if v(acc(8,0),4) not in x and v(acc(8,1),4) not in x]
        for x in main: k(x); flush(2)
        while wq:
            d = 8 - (len(k.lines) - wq[0][0])
            if d > 0: k(f"s_nop {d-1}"); wq[0] = (wq[0][0] - d + 1, wq[0][1])
            put(wq.pop(0)[1])
        return tail, main
    labs = [k.label("ph") for _ in range(nph)]
    for i in range(1, nph): k(f"s_and_b32 s63, s3, {nph-1}\ns_cmp_eq_u32 s63, {i}\ns_cbranch_scc1 {labs[i]}")
    import copy
    st0 = (copy.deepcopy(sb.q), dict(sb.done), ptr[0])
    for i in range(nph):
        sb.q = copy.deepcopy(st0[0]); sb.done = dict(st0[1]); ptr[0] = st0[2]
        if i: k(f"{labs[i]}:")
        tail, main = mainloop(i * 4 // nph)
        if i + 1 < nph: k(f"s_branch {JOIN}")
    k(f"{JOIN}:")
    LS = k.label("spin"); LG = k.label("go"); L8 = k.label("no8")
    k("s_waitcnt vmcnt(0)")
    if stamps: stamp_mid(k, 2)
    k(f"buffer_store_dword v{VF}, v{VF}, s[20:23], s49 offen sc1")
    for x in tail:
        if x not in main: k(x)
    k(f"""
    s_mov_b32 s63, 0
    {LS}:
    buffer_load_dwordx4 {v(T,4)}, v{VF}, s[20:23], s48 offen sc1
    s_add_u32 s63, s63, 1
    s_waitcnt vmcnt(0)
    v_or3_b32 v{T}, v{T}, v{T+1}, v{T+2}
    v_or_b32 v{T}, v{T}, v{T+3}
    s_cmp_ge_u32 s63, {1 if 'nox' in dbg else 0x40000}
    v_cmp_ne_u32 vcc, 0, v{T}
    s_cbranch_scc1 {LG}
    s_cbranch_vccnz {LS}
    {LG}:
    """)
    if stamps: stamp_mid(k, 3)
    def rx(s_, j): return acc(2, 0) + 4 * (j * 3 + s_)
    for j in range(2):
        for s_ in range(3):
            k(f"buffer_load_dwordx4 {v(rx(s_,j),4)}, v{VL}, s[20:23], s{56+s_} offen offset:{j*1024} sc1")
    def summ(j, jj, cnt):
        for s_ in range(3):
            k(f"s_waitcnt vmcnt({cnt - s_})")
            for nb in range(2): k(f"{MF} {v(acc(j,nb),4)}, {v(SEL+2*nb,4)}, {v(rx(s_,jj),4)}, {v(acc(j,nb),4)}")
    def pack(dst, a0, a1):
        k(f"""
        v_cvt_pk_bf16_f32 v{dst}, v{a0}, v{a0+1}
        v_cvt_pk_bf16_f32 v{dst+2}, v{a1}, v{a1+1}
        v_cvt_pk_bf16_f32 v{dst+1}, v{a0+2}, v{a0+3}
        v_cvt_pk_bf16_f32 v{dst+3}, v{a1+2}, v{a1+3}
        s_nop 0
        v_permlane16_swap_b32 v{dst}, v{dst+2}
        v_permlane16_swap_b32 v{dst+1}, v{dst+3}
        """)
    def finish():
        for nb in range(2):
            pack(BF + 4 * nb, acc(0, nb), acc(1, nb))
            k(f"buffer_store_dwordx4 {v(BF+4*nb,4)}, v{VO+nb}, s[28:31], s44 offen {aux_o}".rstrip())
    k(f"s_cmp_lg_u32 s3, s32\ns_cbranch_scc1 {L8}")
    for s_ in range(3):
        k(f"buffer_load_dwordx4 {v(rx(s_,2),4)}, v{VL}, s[20:23], s{59+s_} offen sc1")
    summ(0, 0, 8); summ(1, 1, 5); summ(8, 2, 2)
    k("s_nop 1")
    finish()
    pack(BF + 8, acc(8, 0), acc(8, 1))
    k(f"buffer_store_dwordx4 {v(BF+8,4)}, v{VO8}, s[28:31], s45 offen {aux_o}".rstrip())
    if stamps: stamp_end(k, kidx)
    k(f"s_endpgm\n{L8}:")
    summ(0, 0, 5); summ(1, 1, 2)
    k("s_nop 7")
    finish()
    if stamps: stamp_end(k, kidx)
    k(f"{END}:\ns_endpgm")
    return k, (name, (256, 1, 1), (512 if ldw else 256, 1, 1), XB + 12288)

if __name__ == "__main__":
    from hazchk import check
    k, l = gen_k4(kidx=0, stamps=True)
    emit_file("k4.s", [l], [k]); check("k4.s")
```

```python
from mkfinal import *
from mkship import BEST, S3
import sys, copy
def var(**kw):
    d = copy.deepcopy(BEST)
    for k_, v_ in kw.items(): d[k_] = {**d.get(k_, {}), **v_} if isinstance(v_, dict) else v_
    return d
V = {
 "a": var(),
 "b": var(k4=dict(rot=(1,0))),
 "c": var(k4=dict(rot=(1,2))),
 "d": var(k4=dict(rot=(1,0), D=3)),
 "e": var(k4=dict(rot=(1,0), D=5, D0=3)),
 "f": var(k4=dict(rot=(0,2))),
}
st = len(sys.argv) > 1 and sys.argv[1] == "st"
for n, kw in V.items(): build(f"v{n}.s", stamps=st, **kw)
```

```python
NAME = "sequential_preLN__linear_attn_block__mixer_token_mlp__prompt"
STAMP = 200 << 20

class K:
    def __init__(self, name, vgpr=256, agpr=0, sgpr=102):
        self.name = name; self.lines = []; self.vgpr = vgpr; self.agpr = agpr; self.sgpr = sgpr
        self.nlab = 0
        self.tag = name.replace("_kernel", "")[-10:]
    def __call__(self, s):
        if isinstance(s, (list, tuple)):
            for x in s: self(x)
            return
        for l in s.strip("\n").split("\n"):
            l = l.strip()
            if not l: continue
            self.lines.append(l if l.endswith(":") else "    " + l)
    def label(self, base="L"):
        self.nlab += 1
        return f"L{self.tag}_{base}{self.nlab}"
    def text(self):
        s = f".text\n.globl {self.name}\n.p2align 8\n.type {self.name},@function\n{self.name}:\n"
        s += "\n".join(self.lines) + "\n"
        return s
    def desc(self):
        acc = (self.vgpr + 3) // 4 * 4
        nfv = acc + self.agpr if self.agpr else self.vgpr
        s = f""".amdhsa_kernel {self.name}
  .amdhsa_next_free_vgpr {nfv}
  .amdhsa_next_free_sgpr {self.sgpr}
  .amdhsa_accum_offset {acc}
  .amdhsa_group_segment_fixed_size 0
  .amdhsa_kernarg_size 88
  .amdhsa_user_sgpr_count 2
  .amdhsa_user_sgpr_kernarg_segment_ptr 1
  .amdhsa_system_sgpr_workgroup_id_x 1
  .amdhsa_float_denorm_mode_32 3
.end_amdhsa_kernel
"""
        return s

def emit_file(path, launches, kernels, header=""):
    s = header
    for (n, g, b, l) in launches:
        s += f"; @launch kernel={n} grid=({g[0]},{g[1]},{g[2]}) block=({b[0]},{b[1]},{b[2]}) lds={l}\n"
    s += '.amdgcn_target "amdgcn-amd-amdhsa--gfx950"\n'
    for k in kernels: s += k.text()
    s += "Lcode_end:\n"
    s += '.section .rodata,"a"\n'
    for k in kernels: s += ".p2align 6\n" + k.desc()
    open(path, "w").write(s)

def v(a, n=1): return f"v{a}" if n == 1 else f"v[{a}:{a+n-1}]"
def a(x, n=1): return f"a{x}" if n == 1 else f"a[{x}:{x+n-1}]"
def s(x, n=1): return f"s{x}" if n == 1 else f"s[{x}:{x+n-1}]"

def weave(main, side, start=0, end=None):
    end = len(main) if end is None else end
    n = end - start
    out = []
    slots = [[] for _ in main]
    m = len(side)
    for i, it in enumerate(side):
        pos = start + (i * n) // m if m else start
        slots[pos].append(it)
    for ins, sl in zip(main, slots):
        out.append(ins)
        for it in sl:
            out.extend(it if isinstance(it, (list, tuple)) else [it])
    return out

def srd(k, r, lo, hi, size, add=0):
    if add:
        k(f"s_add_u32 s{r}, s{lo}, {add}\ns_addc_u32 s{r+1}, s{hi}, 0")
    else:
        k(f"s_mov_b32 s{r}, s{lo}\ns_mov_b32 s{r+1}, s{hi}")
    k(f"s_mov_b32 s{r+2}, {size}\ns_mov_b32 s{r+3}, 0x20000")

def stamp_begin(k):
    k("s_memrealtime s[90:91]\ns_memtime s[92:93]")
def stamp_mid(k, i):
    k(f"s_memtime s[{70+2*i}:{71+2*i}]")
def stamp_end(k, kidx):
    L = k.label("nost")
    k(f"""
    s_waitcnt vmcnt(0)
    s_memrealtime s[94:95]
    s_memtime s[96:97]
    s_load_dwordx2 s[84:85], s[0:1], 80
    s_waitcnt lgkmcnt(0)
    s_add_u32 s84, s84, {STAMP + kidx * 65536}
    s_addc_u32 s85, s85, 0
    s_lshl_b32 s86, s2, 6
    s_mov_b64 exec, -1
    v_mov_b32 v1, s86
    v_mov_b32 v4, s90
    v_mov_b32 v5, s91
    v_mov_b32 v6, s94
    v_mov_b32 v7, s95
    v_mov_b32 v8, s92
    v_mov_b32 v9, s93
    v_mov_b32 v10, s96
    v_mov_b32 v11, s97
    v_mov_b32 v12, s70
    v_mov_b32 v13, s72
    v_mov_b32 v14, s74
    v_mov_b32 v15, s76
    v_mov_b32 v16, s78
    v_mov_b32 v17, s80
    v_mov_b32 v18, s82
    v_mov_b32 v19, s92
    v_cmp_eq_u32 vcc, 0, v0
    s_and_saveexec_b64 s[88:89], vcc
    s_cbranch_execz {L}
    global_store_dwordx4 v1, v[4:7], s[84:85]
    global_store_dwordx4 v1, v[8:11], s[84:85] offset:16
    global_store_dwordx4 v1, v[12:15], s[84:85] offset:32
    global_store_dwordx4 v1, v[16:19], s[84:85] offset:48
    {L}:
    """)

class SB:
    def __init__(self, k):
        self.k = k
        self.q = {"lgkmcnt": [], "vmcnt": []}
        self.done = {"lgkmcnt": 0, "vmcnt": 0}
        self.mx = {"lgkmcnt": 15, "vmcnt": 63}
    def op(self, c, ins, tag=None):
        self.k(ins); self.q[c].append(tag)
    def ds(self, ins, tag=None): self.op("lgkmcnt", ins, tag)
    def vm(self, ins, tag=None): self.op("vmcnt", ins, tag)
    def need(self, c, pred):
        q = self.q[c]
        last = -1
        for i in range(len(q) - 1, -1, -1):
            if pred(q[i]): last = i; break
        if last < self.done[c]: return
        n = min(len(q) - 1 - last, self.mx[c])
        self.k(f"s_waitcnt {c}({n})")
        self.done[c] = len(q) - n
    def needds(self, *tags): self.need("lgkmcnt", lambda t: t in tags)
    def needvm(self, *tags): self.need("vmcnt", lambda t: t in tags)
    def drain(self, c):
        if self.done[c] < len(self.q[c]):
            self.k(f"s_waitcnt {c}(0)"); self.done[c] = len(self.q[c])

import struct
def fbits(x): return struct.unpack("<I", struct.pack("<f", x))[0]
MF = "v_mfma_f32_16x16x32_bf16"

def pf_addr_w1(k, vt, vout, slam, sx):
    k(f"""
    v_add_u32 v{vt}, s{slam}, v1
    v_mul_hi_u32 v{vt+1}, v{vt}, s98
    v_mul_u32_u24 v{vt+1}, s99, v{vt+1}
    v_lshl_add_u32 v{vout}, v{vt}, 7, v{vt+1}
    """)
def helper_wave(k, what, plan, aux="", wgx="s_and_b32 s33, s2, 7", wgi="s_lshr_b32 s34, s2, 3", nwg=32, m0=0):
    off = {"w1": 32, "w2": 48}[what]
    k(f"""
    s_load_dwordx2 s[4:5], s[0:1], {off}
    v_and_b32 v1, 63, v0
    {wgx}
    {wgi}
    s_mov_b32 s98, {(1 << 32) // 9 + 1}
    s_movk_i32 s99, {9216 - 9 * 128}
    s_lshl_b32 s34, s34, 6
    s_mul_i32 s33, s33, {1152 if what == "w1" else 512}
    s_add_u32 s34, s34, {m0 * nwg * 64}
    v_lshrrev_b32 v2, 2, v1
    v_and_b32 v3, 3, v1
    v_lshlrev_b32 v3, 7, v3
    v_lshl_add_u32 v3, v2, 12, v3
    s_waitcnt lgkmcnt(0)
    """)
    srd(k, 12, 4, 5, 2048 * 9216)
    if what == "w2": k("s_lshl_b32 s34, s34, 10\ns_add_u32 s33, s33, s34")
    n = 0
    for i, c in enumerate(plan):
        for _ in range(c):
            if what == "w1":
                pf_addr_w1(k, 4, 6 + n % 2, 34, 33)
                k(f"buffer_load_dword v8, v{6 + n % 2}, s[12:15], s33 offen {aux}\ns_add_u32 s34, s34, {nwg*64}")
            else:
                k(f"buffer_load_dword v8, v3, s[12:15], s33 offen {aux}\ns_add_u32 s33, s33, {nwg * 65536}")
            n += 1
        if any(plan[i + 1:]): k("s_barrier")
    k("s_endpgm")

def helper_k1(k, plan, aux="", m0=0):
    k(f"""
    s_load_dwordx4 s[4:7], s[0:1], 0
    s_load_dwordx2 s[8:9], s[0:1], 32
    s_load_dwordx2 s[10:11], s[0:1], 80
    v_and_b32 v1, 63, v0
    """)
    plan = list(plan)
    while plan[0][:1] in ("C", "K"):
        if plan[0][0] == "C": code_pf(k, k.name, "Lcode_end", 16, 8, 44)
        else: code_pf(k, k.name, "k2_kernel", 16, 8, 44)
        plan[0] = plan[0][1:]
    k(f"""
    s_and_b32 s33, s2, 7
    s_lshr_b32 s34, s2, 3
    s_mov_b32 s98, {(1 << 32) // 9 + 1}
    s_movk_i32 s99, {9216 - 9 * 128}
    s_mul_i32 s35, s34, {54 * 128}
    v_lshlrev_b32 v2, 7, v1
    v_add_u32 v2, s35, v2
    s_lshl_b32 s36, s33, 8
    s_lshl_b32 s37, s34, 3
    s_add_u32 s36, s36, s37
    s_sub_u32 s36, s36, 54
    v_add_u32 v3, s36, v1
    s_movk_i32 s37, 1152
    v_mul_lo_u32 v3, v3, s37
    v_cmp_gt_u32 vcc, 54, v1
    v_mov_b32 v10, 128
    v_mov_b32 v11, {64 * 3456}
    v_cndmask_b32 v2, v3, v2, vcc
    v_cndmask_b32 v10, v10, v11, vcc           ; step
    s_lshl_b32 s34, s34, 6
    s_add_u32 s34, s34, {m0 * 2048}
    s_mul_i32 s33, s33, 1152
    s_waitcnt lgkmcnt(0)
    v_mov_b32 v12, s4
    v_mov_b32 v13, s5
    v_mov_b32 v14, s6
    v_mov_b32 v15, s7
    v_cndmask_b32 v12, v12, v14, vcc
    v_cndmask_b32 v13, v13, v15, vcc
    v_mov_b32 v3, 0
    v_mov_b32 v11, 0
    v_lshl_add_u64 v[12:13], v[2:3], 0, v[12:13]
    s_mov_b32 s40, -1
    s_mov_b32 s41, 0x3fffffff
    """)
    srd(k, 12, 8, 9, 2048 * 9216)
    nz = 0
    if any("z" in c for c in plan):
        from layout import XQ_OFF, XQ_SZ
        srd(k, 16, 10, 11, XQ_SZ, XQ_OFF)
        k(f"""
        s_mul_i32 s38, s2, {27 * 1024}
        v_lshlrev_b32 v20, 4, v1
        v_mov_b32 v24, -1
        v_mov_b32 v25, -1
        v_mov_b32 v26, -1
        v_mov_b32 v27, -1
        """)
    n = 0; ns = 0
    for i, c in enumerate(plan):
        for ch in c:
            if ch == "s":
                k(f"""
                s_mov_b64 exec, s[40:41]
                global_load_dword v8, v[12:13], off
                v_lshl_add_u64 v[12:13], v[10:11], 0, v[12:13]
                s_mov_b64 exec, -1
                """)
                ns += 1
            elif ch == "z":
                for q in range(3): k(f"buffer_store_dwordx4 v[24:27], v20, s[16:19], s38 offen offset:{q * 1024} sc1")
                k("s_add_u32 s38, s38, 3072"); nz += 1
            elif ch == "c": code_pf(k, k.name, "Lcode_end", 16, 8, 44)
            elif ch == "d": code_pf(k, "k2_kernel", "k3_kernel", 16, 8, 44)
            elif ch == "w":
                pf_addr_w1(k, 4, 6 + n % 2, 34, 33)
                k(f"buffer_load_dword v8, v{6 + n % 2}, s[12:15], s33 offen {aux}\ns_add_u32 s34, s34, {32*64}")
                n += 1
            else: k(f"s_waitcnt vmcnt({ch})")
        if any(plan[i + 1:]): k("s_barrier")
    assert ns <= 9 and n + m0 <= 9 and nz in (0, 9)
    k("s_endpgm")

def code_pf(k, first, last, vt, vd, st, vlane=1, emit=None, n=32, wave=None):
    H = k.label("pc")
    k(f"""
    s_getpc_b64 s[{st}:{st+1}]
    {H}:
    s_add_u32 s{st}, s{st}, {first}-{H}
    s_addc_u32 s{st+1}, s{st+1}, {"-1" if first == k.name else "0"}
    s_lshr_b32 s{st+2}, s2, 3
    """)
    if wave is not None: k(f"s_lshl_b32 s{st+2}, s{st+2}, 2\ns_add_u32 s{st+2}, s{st+2}, s{wave}")
    k(f"""
    s_movk_i32 s{st+3}, {n * (4 if wave is not None else 1)}
    v_mov_b32 v{vt+2}, s{st+2}
    v_mad_u32_u24 v{vt+2}, v{vlane}, s{st+3}, v{vt+2}
    v_lshlrev_b32 v{vt+2}, 7, v{vt+2}
    v_cmp_gt_u32 vcc, {last}-{first}, v{vt+2}
    v_mov_b32 v{vt+3}, 0
    v_mov_b32 v{vt}, s{st}
    v_mov_b32 v{vt+1}, s{st+1}
    v_lshl_add_u64 v[{vt}:{vt+1}], v[{vt+2}:{vt+3}], 0, v[{vt}:{vt+1}]
    s_and_saveexec_b64 s[{st+2}:{st+3}], vcc
    """)
    ins = f"global_load_dword v{vd}, v[{vt}:{vt+1}], off"
    if emit: emit(ins)
    else: k(ins)
    k(f"s_mov_b64 exec, s[{st+2}:{st+3}]")
```

```python
from asmlib import *
from layout import *

def gen_k1(name="k1_kernel", kidx=0, stamps=False, aux_x="", aux_w="", aux_o="", L=4, dbg="", pf=None, pfaux="", pfm0=0, hfirst=False):
    NS = 9; NB = 4
    k = K(name, vgpr=232)
    sb = SB(k)
    END = k.label("end")
    VX = 2; VW = 6; VA = 10; VB = 12; ONE = 26
    ACC = 32
    def acc(j, rb): return ACC + (j * 2 + rb) * 4
    AQ = 88; AC = 96
    AF = 124
    def af(h, rb): return AF + (h * 2 + rb) * 4
    BF = 140
    def bf(j): return BF + 4 * j
    GA = 168; GO = 171; VP = 174; VF = 177; VCS = 178; VBP = 179; VEPS = 180; VRD = 181; VT = 182
    T = 184
    XB = 65536; TB = 131072; CS = TB + 4096
    k(f"s_cmp_ge_u32 s2, 256\ns_cbranch_scc1 {END}")
    HELP = k.label("help")
    if pf and hfirst:
        k(f"v_readfirstlane_b32 s3, v0\ns_cmp_lt_u32 s3, 256\ns_cbranch_scc1 {HELP}")
        helper_k1(k, pf, pfaux, pfm0)
        k(f"{HELP}:")
    elif pf: k(f"v_readfirstlane_b32 s3, v0\ns_cmp_ge_u32 s3, 256\ns_cbranch_scc1 {HELP}")
    if stamps: stamp_begin(k)
    k(f"""
    s_load_dwordx4 s[4:7], s[0:1], 0           ; x, wqkv
    s_load_dwordx2 s[8:9], s[0:1], 16          ; wo
    s_load_dwordx4 s[28:31], s[0:1], 72
    v_lshrrev_b32 v{T}, 6, v0
    v_and_b32 v1, 63, v0                       ; lane
    s_and_b32 s33, s2, 7
    v_readfirstlane_b32 s3, v{T}               ; wave
    s_lshl_b32 s33, s33, 1
    s_bfe_u32 s34, s2, 0x10003
    s_add_u32 s33, s33, s34                    ; rt
    s_lshr_b32 s34, s2, 4                      ; hp
    v_lshrrev_b32 v{T}, 4, v1                  ; g
    v_and_b32 v{T+1}, 15, v1                   ; i
    v_lshrrev_b32 v{T+2}, 3, v1
    s_movk_i32 s35, 1152
    v_mul_u32_u24 v{T+2}, s35, v{T+2}
    v_and_b32 v{T+3}, 7, v1
    v_xor_b32 v{T+3}, v{T+3}, v{T}
    v_xor_b32 v{T+4}, 4, v{T+3}
    v_lshl_add_u32 v{VX}, v{T+3}, 4, v{T+2}
    v_lshl_add_u32 v{VX+1}, v{T+4}, 4, v{T+2}
    v_add_u32 v{VX+2}, {2*(8*1152-1024)}, v{VX}
    v_add_u32 v{VX+1}, {8*1152-1024}, v{VX+1}
    v_add_u32 v{VX+3}, {2*(8*1152-1024)}, v{VX+1}
    s_movk_i32 s35, 3456
    v_mul_u32_u24 v{T+2}, s35, v{T}            ; (l>>4)*3456
    v_lshlrev_b32 v{T+3}, 1, v{T}
    v_sub_u32 v{T+3}, v{T+1}, v{T+3}
    """)
    for par in range(2):
        k(f"""
        v_add_u32 v{T+4}, {16 - 8*par}, v{T+3}
        v_and_b32 v{T+4}, 15, v{T+4}               ; chunk
        v_mov_b32 v{T+5}, {2304 - 8 - 176}
        v_mov_b32 v{T+6}, -80
        v_cmp_gt_u32 vcc, 10, v{T+4}
        v_mov_b32 v{T+7}, {1152 - 8}
        v_lshl_add_u32 v{T+8}, v{T+4}, 4, v{T+2}
        v_cndmask_b32 v{T+5}, v{T+5}, v{T+6}, vcc
        v_cmp_gt_u32 vcc, 5, v{T+4}
        v_add_u32 v{T+8}, {par * (8*3456 - 1024)}, v{T+8}
        s_nop 0
        v_cndmask_b32 v{T+5}, v{T+5}, v{T+7}, vcc
        v_add_u32 v{VW+par}, v{T+5}, v{T+8}
        v_add_u32 v{VW+2+par}, {4*3456 - 2048}, v{VW+par}
        """)
    def lanes(*ls): return sum(1 << x for x in ls)
    mE = ~lanes(10, 28, 46, 48) & (2**64 - 1); mO = ~lanes(2, 20, 38, 56) & (2**64 - 1)
    k(f"""
    s_mov_b32 s50, {mE & 0xffffffff}
    s_mov_b32 s51, {mE >> 32}
    s_mov_b32 s52, {mO & 0xffffffff}
    s_mov_b32 s53, {mO >> 32}
    s_lshl_b32 s36, s33, 2
    s_add_u32 s36, s36, s3                     ; rt32
    s_mul_i32 s40, s36, {32*1152}              ; s40 = x soffset
    s_mul_i32 s41, s3, {16*3456}
    {"s_and_b32 s37, s34, 6" if "nc" in dbg else "s_mov_b32 s37, s34"}
    {"s_max_u32 s37, s37, 2" if "nc" in dbg else ""}
    {"s_or_b32 s38, s34, 1" if "nc" in dbg else ""}
    {"s_min_u32 s38, s38, 13" if "nc" in dbg else ""}
    {"s_cmp_ge_u32 s34, 8" if "nc" in dbg else ""}
    {"s_cselect_b32 s37, s38, s37" if "nc" in dbg else ""}
    s_mul_i32 s37, s37, 72
    s_add_u32 s41, s41, s37                    ; s41 = w soffset
    s_lshl_b32 s42, s3, 12
    s_lshl_b32 s43, s3, 14
    s_add_u32 s43, s43, {XB}
    v_mov_b32 v{ONE}, 0x3f803f80
    v_mov_b32 v{ONE+1}, 0x3f803f80
    v_mov_b32 v{ONE+2}, 0x3f803f80
    v_mov_b32 v{ONE+3}, 0x3f803f80
    v_and_b32 v{T+4}, 7, v0
    v_lshl_add_u32 v{T+4}, v{T+4}, 1, 10
    v_and_b32 v{T+4}, 15, v{T+4}
    v_lshlrev_b32 v{T+4}, 4, v{T+4}
    v_lshl_add_u32 v{T+4}, v0, 8, v{T+4}
    """)
    sb.ds(f"ds_write_b128 v{T+4}, {v(ONE,4)}", "ones")
    k("s_waitcnt lgkmcnt(0)"); sb.done["lgkmcnt"] = 1
    if stamps and "ps" in dbg: stamp_mid(k, 4)
    srd(k, 12, 4, 5, 2048 * 1152)
    srd(k, 16, 6, 7, 576 * 3456)
    srd(k, 20, 30, 31, KVT_SZ, KVT_OFF)
    if stamps and "t1" in dbg:
        k(f"v_mov_b32 v{T+8}, 0\nbuffer_load_dword v{T+9}, v{T+8}, s[12:15], s40 offen\ns_waitcnt vmcnt(0)")
        stamp_mid(k, 4)
        k(f"buffer_load_dword v{T+9}, v{T+8}, s[16:19], s41 offen\ns_waitcnt vmcnt(0)")
        stamp_mid(k, 5)
        k(f"buffer_load_dword v{T+9}, v{T+8}, s[12:15], s40 offen offset:1152\ns_waitcnt vmcnt(0)")
        stamp_mid(k, 6)
    LZ = k.label("noz")
    k(f"""
    s_mul_i32 s44, s34, 3040
    s_cmp_lg_u32 s33, 0
    s_cbranch_scc1 {LZ}
    v_mov_b32 v{T+8}, 0
    v_mov_b32 v{T+9}, 0
    v_mov_b32 v{T+10}, 0
    v_mov_b32 v{T+11}, 0
    v_lshlrev_b32 v{T+4}, 4, v0
    v_cmp_gt_u32 vcc, 190, v0
    v_mov_b32 v{T+5}, 0x40000000
    s_nop 0
    v_cndmask_b32 v{T+4}, v{T+5}, v{T+4}, vcc
    buffer_store_dwordx4 {v(T+8,4)}, v{T+4}, s[20:23], s44 offen sc1
    {LZ}:
    """)
    def issue(n):
        out = []
        g = [f"s_add_u32 m0, s42, {(n % NB) * 16384}", "s_mov_b64 exec, s[50:51]"]
        for q in (0, 2):
            g.append(("vm", f"buffer_load_dwordx4 v{VW+q}, s[16:19], s41 offen offset:{q*1024} {aux_w} lds"))
        g.append("s_mov_b64 exec, -1")
        out.append(g)
        g = ["s_mov_b64 exec, s[52:53]"]
        for q in (1, 3):
            g.append(("vm", f"buffer_load_dwordx4 v{VW+q}, s[16:19], s41 offen offset:{q*1024} {aux_w} lds"))
        g += ["s_mov_b64 exec, -1", f"s_add_u32 s41, s41, {64*3456}"]
        out.append(g)
        for q in range(4):
            g = []
            if q == 0: g += [f"s_add_u32 m0, s43, {(n % NB) * 4096}", "s_nop 0"]
            g.append(("vm", f"buffer_load_dwordx4 v{VX+q}, s[12:15], s40 offen offset:{q*1024} {aux_x} lds"))
            if q == 3: g.append("s_add_u32 s40, s40, 128")
            out.append(g)
        return out
    def emit(g, tag):
        for x in g:
            if isinstance(x, tuple): sb.vm(x[1], tag)
            else: k(x)
    for g in issue(0): emit(g, 0)
    if stamps and "p0" in dbg:
        stamp_mid(k, 4); k("s_waitcnt vmcnt(7)"); stamp_mid(k, 5); k("s_waitcnt vmcnt(0)"); stamp_mid(k, 6)
    LT = k.label("notask"); LC = k.label("noclr")
    srd(k, 24, 8, 9, 576 * 1152)
    k(f"""
    s_cmp_eq_u32 s3, 3
    s_cselect_b32 s45, s2, 255
    s_cmp_ge_u32 s45, 180
    s_cbranch_scc1 {LT}
    s_mul_i32 s46, s45, 57
    s_lshr_b32 s46, s46, 9
    s_mul_i32 s47, s46, 9
    s_sub_u32 s47, s45, s47                    ; cq
    s_mul_i32 s48, s46, 52
    s_lshr_b32 s48, s48, 8                     ; w' = wt / 5
    s_mul_i32 s49, s48, 5
    s_sub_u32 s49, s46, s49                    ; t
    v_lshrrev_b32 v{T+4}, 3, v1                ; b = l>>3
    v_lshrrev_b32 v{T+5}, 1, v{T+4}
    v_mul_u32_u24 v{T+5}, 18, v{T+5}
    v_and_b32 v{T+6}, 1, v{T+4}
    v_add3_u32 v{T+5}, v{T+5}, v{T+6}, 16
    s_mov_b32 s54, {8*1152-1024}
    s_mov_b32 s55, {18*1152-2048}
    s_mov_b32 s56, {26*1152-3072}
    s_cmp_eq_u32 s49, 4
    s_cselect_b64 vcc, -1, 0
    s_cmov_b32 s54, {72*1152-1024}
    s_cselect_b32 s57, 0, s49
    v_cndmask_b32 v{T+4}, v{T+4}, v{T+5}, vcc
    s_movk_i32 s58, 1152
    v_mul_u32_u24 v{T+4}, s58, v{T+4}
    v_and_b32 v{T+5}, 7, v1
    v_lshl_add_u32 v{T+4}, v{T+5}, 4, v{T+4}
    s_mul_i32 s58, s48, 144
    s_mul_i32 s57, s57, 36
    s_add_u32 s58, s58, s57
    s_mul_i32 s58, s58, 1152
    s_lshl_b32 s57, s47, 7
    s_add_u32 s58, s58, s57
    s_add_u32 s54, s54, s58
    s_add_u32 s55, s55, s58
    s_add_u32 s56, s56, s58
    s_mov_b32 m0, {TB}
    s_nop 0
    buffer_load_dwordx4 v{T+4}, s[24:27], s58 offen offset:0 lds
    buffer_load_dwordx4 v{T+4}, s[24:27], s54 offen offset:1024 lds
    buffer_load_dwordx4 v{T+4}, s[24:27], s55 offen offset:2048 lds
    buffer_load_dwordx4 v{T+4}, s[24:27], s56 offen offset:3072 lds
    {LT}:
    """)
    srd(k, 24, 30, 31, FLG_OFF + FLG_SZ - XCH_OFF, XCH_OFF)
    k(f"""
    s_cmp_lg_u32 s3, 2
    s_cbranch_scc1 {LC}
    v_mov_b32 v{T+8}, -1
    v_lshlrev_b32 v{T+4}, 4, v1
    s_lshl_b32 s46, s2, 8
    v_mov_b32 v{T+9}, -1
    v_mov_b32 v{T+10}, -1
    v_mov_b32 v{T+11}, -1
    s_mov_b64 exec, 0xffff
    buffer_store_dwordx4 {v(T+8,4)}, v{T+4}, s[24:27], s46 offen {aux_o}
    s_lshr_b32 s46, s46, 1
    s_add_u32 s46, s46, {FLG_OFF - XCH_OFF}
    s_mov_b64 exec, 0xf
    buffer_store_dwordx4 {v(T+8,4)}, v{T+4}, s[24:27], s46 offen {aux_o}
    s_mov_b64 exec, -1
    {LC}:
    """)
    for g in issue(1): emit(g, 1)
    if stamps and "ps" in dbg: stamp_mid(k, 5)
    k(f"""
    s_and_b32 s37, s3, 1                       ; parity
    v_lshrrev_b32 v{T+2}, 1, v{T+1}
    v_xor_b32 v{T+2}, v{T+2}, v{T}
    s_lshl_b32 s38, s37, 2
    v_xor_b32 v{T+2}, s38, v{T+2}
    v_lshlrev_b32 v{T+2}, 4, v{T+2}
    v_lshl_add_u32 v{T+2}, v{T+1}, 7, v{T+2}
    v_add_u32 v{VA}, s43, v{T+2}
    v_xor_b32 v{VA+1}, 64, v{VA}
    v_bfe_u32 v{T+2}, v1, 2, 3                 ; rho = 4(g&1)+r
    v_lshrrev_b32 v{T+3}, 5, v1
    v_lshl_add_u32 v{T+3}, v{T+3}, 4, v{T+2}   ; pi0
    v_lshlrev_b32 v{T+3}, 8, v{T+3}
    s_lshl_b32 s38, s37, 13
    v_add_u32 v{T+3}, s38, v{T+3}
    v_and_b32 v{T+4}, 3, v1                    ; c
    v_lshl_add_u32 v{T+5}, v{T+2}, 2, v{T+4}   ; c + 4 rho
    v_cmp_eq_u32 s[54:55], 0, v{T+4}
    v_cmp_eq_u32 s[56:57], 3, v{T+4}
    """)
    for j in range(7):
        base = [0, 4, 8, 12, 16, 24, 28][j]
        if j == 0: k(f"v_add_u32 v{T+6}, 20, v{T+5}\nv_cndmask_b32 v{T+6}, v{T+5}, v{T+6}, s[54:55]")
        elif j == 4: k(f"v_add_u32 v{T+6}, 16, v{T+5}\nv_add_u32 v{T+7}, 20, v{T+5}\nv_cndmask_b32 v{T+6}, v{T+6}, v{T+7}, s[56:57]")
        else: k(f"v_add_u32 v{T+6}, {base}, v{T+5}")
        k(f"""
        v_and_b32 v{T+6}, 31, v{T+6}
        v_lshl_add_u32 v{VB+j}, v{T+6}, 3, v{T+3}
        v_xor_b32 v{VB+7+j}, 0x2000, v{VB+j}
        """)
    k(f"""
    s_mul_i32 s38, s34, 36
    s_mul_i32 s39, s36, 576
    s_add_u32 s38, s38, s39
    s_lshl_b32 s59, s38, 6
    v_lshlrev_b32 v{T+2}, 6, v{T+1}
    v_lshl_add_u32 v{T+2}, v{T}, 4, v{T+2}     ; i*64 + g*16
    v_mov_b32 v{T+3}, 0x40000000
    v_cmp_lt_u32 vcc, 7, v{T+1}
    v_add_u32 v{T+4}, -512, v{T+2}
    v_add_u32 v{VP+1}, 512, v{T+2}
    v_cndmask_b32 v{VP}, v{T+3}, v{T+4}, vcc
    v_cmp_gt_u32 s[60:61], 12, v{T+1}
    v_add_u32 v{T+4}, {24*64}, v{T+2}
    v_mov_b32 v{T+5}, {fbits(1e-6)}
    v_cndmask_b32 v{VP+2}, v{T+3}, v{T+4}, s[60:61]
    v_cndmask_b32 v{VEPS}, 0, v{T+5}, s[60:61]
    s_lshl_b32 s38, s3, 9
    s_add_u32 s38, s38, {CS}
    v_lshl_add_u32 v{VCS}, v{T+1}, 2, s38
    v_and_b32 v{T+2}, 48, v1
    v_lshl_add_u32 v{T+2}, v{T}, 2, v{T+2}
    v_lshlrev_b32 v{VBP}, 2, v{T+2}
    s_lshl_b32 s38, s3, 13
    v_lshl_add_u32 v{VRD}, v1, 4, s38
    s_lshl_b32 s38, s34, 2
    v_mov_b32 v{VF}, s38
    s_movk_i32 s38, 3277
    s_movk_i32 s39, 380
    """)
    for m in range(3):
        k(f"""
        v_add_u32 v{T+2}, {256*m}, v0              ; idx
        v_cmp_le_u32 vcc, s39, v{T+2}
        v_lshlrev_b32 v{T+8}, 2, v{T+2}
        v_subrev_u32 v{T+4}, s39, v{T+2}
        v_cndmask_b32 v{T+4}, v{T+2}, v{T+4}, vcc  ; rem = e*20+d
        v_cndmask_b32 v{T+5}, 0, 18, vcc           ; 18 hh
        v_mul_u32_u24 v{T+6}, s38, v{T+4}
        v_lshrrev_b32 v{T+6}, 16, v{T+6}           ; e
        v_mul_u32_u24 v{T+7}, 20, v{T+6}
        v_sub_u32 v{T+7}, v{T+4}, v{T+7}           ; d
        v_cmp_gt_u32 s[54:55], 18, v{T+7}
        v_cmp_gt_u32 s[56:57], 19, v{T+6}
        v_cmp_gt_u32 vcc, 18, v{T+6}
        v_add3_u32 v{T+7}, v{T+7}, v{T+5}, 4       ; kappa + 4
        v_add3_u32 v{T+6}, v{T+6}, v{T+5}, 12      ; nu + 12
        s_and_b64 s[54:55], s[54:55], s[56:57]
        v_cndmask_b32 v{T+6}, 0, v{T+6}, vcc
        v_cndmask_b32 v{GO+m}, v{T+3}, v{T+8}, s[54:55]
        v_lshrrev_b32 v{T+8}, 4, v{T+6}            ; vb
        v_lshrrev_b32 v{T+9}, 5, v{T+6}            ; vb==2
        v_mul_u32_u24 v{T+8}, 3, v{T+8}
        v_sub_u32 v{T+8}, v{T+8}, v{T+9}
        v_lshrrev_b32 v{T+9}, 4, v{T+7}
        v_add_u32 v{T+8}, v{T+8}, v{T+9}           ; blk
        v_and_b32 v{T+7}, 15, v{T+7}
        v_lshlrev_b32 v{T+7}, 4, v{T+7}
        v_lshl_add_u32 v{T+8}, v{T+8}, 10, v{T+7}
        v_bfe_u32 v{T+9}, v{T+6}, 2, 2
        v_lshl_add_u32 v{T+8}, v{T+9}, 8, v{T+8}
        v_and_b32 v{T+9}, 3, v{T+6}
        v_lshl_add_u32 v{T+8}, v{T+9}, 2, v{T+8}
        v_cndmask_b32 v{GA+m}, 0, v{T+8}, s[54:55]
        """)
    NI = NS * 14
    def rdB(t):
        n, r = divmod(t, 14); h, j = divmod(r, 7)
        return [(f"ds_read_b64_tr_b16 {v(bf(j)+2*u,2)}, v{VB+7*h+j} offset:{(n%NB)*16384 + u*2048}", ("B", t)) for u in range(2)]
    def rdA(hh):
        n, h = divmod(hh, 2)
        return [(f"ds_read_b128 {v(af(h,rb),4)}, v{VA+h} offset:{(n%NB)*4096 + rb*2048}", ("A", hh)) for rb in range(2)]
    if stamps and "ps" in dbg: stamp_mid(k, 6)
    sb.needvm(0)
    k("s_barrier")
    LF = k.label("nof")
    k(f"""
    s_or_b32 s38, s33, s3
    s_cmp_lg_u32 s38, 0
    s_cbranch_scc1 {LF}
    v_mov_b32 v{T+2}, 1
    global_store_dword v{VF}, v{T+2}, s[28:29] sc1
    {LF}:
    """)
    if stamps: stamp_mid(k, 0)
    for x in rdA(0): sb.ds(*x)
    for t in range(L):
        for x in rdB(t): sb.ds(*x)
    pend = [(n, g) for n in (2, 3) for g in issue(n)]
    nxt = 4
    for t in range(NI):
        n, r = divmod(t, 14); h, j = divmod(r, 7); hh = 2 * n + h
        m = []
        for rb in range(2):
            c = "0" if hh == 0 else v(acc(j, rb), 4)
            m.append(f"{MF} {v(acc(j,rb),4)}, {v(af(h,rb),4)}, {v(bf(j),4)}, {c}")
        if h == 0:
            m.append(f"{MF} {v(AC+4*j,4)}, {v(ONE,4)}, {v(bf(j),4)}, {'0' if n == 0 else v(AC+4*j,4)}")
        if j in (1, 3):
            rb = j >> 1
            m.append(f"{MF} {v(AQ+4*rb,4)}, {v(af(h,rb),4)}, {v(af(h,rb),4)}, {'0' if hh == 0 else v(AQ+4*rb,4)}")
        sb.needds(("B", t), ("A", hh))
        k(m[0])
        side = []
        if r == 14 - L and n + 1 < NS:
            assert all(st > n + 1 for st, _ in pend)
            sb.needvm(n + 1)
            k("s_barrier")
            if nxt < NS and nxt - NB <= n - 1:
                pend += [(nxt, g) for g in issue(nxt)]; nxt += 1
        rds = rdB(t + L) if t + L < NI else []
        if j == 7 - L and hh + 1 < 2 * NS: rds = rdA(hh + 1) + rds
        if n == NS - 1 and h == 1 and j >= 3:
            js = {3: (0, 1), 4: (2, 3), 5: (4, 5), 6: (6,)}[j]
            rds += [(f"ds_write_b32 v{VCS}, v{AC+4*x} offset:{64*x}", "cs") for x in js]
        ld = None
        if pend: ld = pend.pop(0)
        per = -(-len(rds) // len(m))
        for x in rds[:per]: sb.ds(*x)
        for i in range(1, len(m)):
            k(m[i])
            for x in rds[per * i: per * (i + 1)]: sb.ds(*x)
            if i == 1 and ld: emit(ld[1], ld[0])
    if stamps: stamp_mid(k, 1)
    sb.drain("lgkmcnt")
    k("s_barrier")
    sb.vm(f"global_load_dword v{T+40}, v{VF}, s[28:29] sc1", "flag")
    C = T
    k(f"v_xor_b32 v{VCS}, 512, v{VCS}")
    for j in range(7): sb.ds(f"ds_read_b32 v{C+j}, v{VCS} offset:{64*j}", "c")
    Q = T + 8; S = T + 16; RR = T + 24; RM = T + 32
    for x in range(8): sb.ds(f"ds_bpermute_b32 v{Q+x}, v{VBP}, v{AQ+x} offset:{4*(x&3)}", "q")
    for x in range(8): k(f"v_mov_b32_dpp v{S+x}, v{ACC+x} row_newbcast:0 row_mask:0xf bank_mask:0xf")
    k(f"""
    s_mov_b32 s38, {fbits(1/576)}
    s_mov_b32 s39, {fbits(1e-5)}
    s_mov_b32 s62, {fbits(1.4426950408889634)}
    s_mov_b32 s63, {fbits(1e-6)}
    v_mov_b32 v{VT}, {fbits(-1e-6 * 1.4426950408889634)}
    """)
    for x in range(8): k(f"v_mul_f32 v{S+x}, s38, v{S+x}")
    for x in range(8): k(f"v_fma_f32 v{RM+x}, -v{S+x}, v{S+x}, s39")
    sb.needds("c")
    for j in range(7): k(f"v_add_f32 v{C+j}, v{C+j}, v{AC+4*j}")
    sb.needds("q")
    for x in range(8): k(f"v_fma_f32 v{Q+x}, v{Q+x}, s38, v{RM+x}")
    for x in range(8): k(f"v_max_f32 v{Q+x}, s39, v{Q+x}")
    for x in range(8): k(f"v_rsq_f32 v{RR+x}, v{Q+x}")
    for x in range(8): k(f"v_mul_f32 v{RM+x}, v{RR+x}, v{S+x}")
    if stamps: stamp_mid(k, 2)
    E = AC
    def fin(j):
        a0 = acc(j, 0)
        for x in range(8):
            if j < 4: k(f"v_fma_f32 v{a0+x}, v{a0+x}, v{RR+x}, s63")
            elif j == 4: k(f"v_fma_f32 v{a0+x}, v{a0+x}, v{RR+x}, v{VEPS}")
            else: k(f"v_mul_f32 v{a0+x}, v{a0+x}, v{RR+x}")
        for x in range(8): k(f"v_fma_f32 v{a0+x}, -v{RM+x}, v{C+j}, v{a0+x}")
        if j <= 4:
            for x in range(8): k(f"v_fma_f32 v{E+x}, v{a0+x}, s62, v{VT}")
            for x in range(8): k(f"v_exp_f32_e64 v{E+x}, v{E+x} clamp")
            if j < 4:
                for x in range(8): k(f"v_max_f32 v{a0+x}, s63, v{a0+x}")
                for x in range(8): k(f"v_add_f32 v{a0+x}, v{a0+x}, v{E+x}")
            else:
                for x in range(8): k(f"v_max_f32 v{E+8+x}, s63, v{a0+x}")
                for x in range(8): k(f"v_add_f32 v{E+x}, v{E+8+x}, v{E+x}")
                for x in range(8): k(f"v_cndmask_b32 v{a0+x}, v{a0+x}, v{E+x}, s[60:61]")
        for x in range(4): k(f"v_cvt_pk_bf16_f32 v{bf(j)+x}, v{a0+2*x}, v{a0+2*x+1}")
    srd(k, 12, 30, 31, PQ_SZ, PQ_OFF)
    for j in (3, 2, 4):
        fin(j)
        sb.vm(f"buffer_store_dwordx4 {v(bf(j),4)}, v{VP+j-2}, s[12:15], s59 offen {aux_o}".rstrip(), "pq")
    for x in range(4): k(f"v_cndmask_b32 v{AF+x}, v{bf(4)+x}, v{ONE}, s[60:61]")
    for j in (0, 1, 5, 6): fin(j)
    KV = ACC
    pairs = [(AF, 0), (AF, 1), (AF, 2), (bf(5), 0), (bf(5), 1), (bf(5), 2), (bf(6), 1), (bf(6), 2)]
    for i, (av, kb) in enumerate(pairs):
        k(f"{MF} {v(KV+4*i,4)}, {v(av,4)}, {v(bf(kb),4)}, 0")
    LS = k.label("spin"); LG = k.label("go")
    k(f"""
    s_mov_b32 s38, 0
    s_waitcnt vmcnt(3)
    {LS}:
    v_readfirstlane_b32 s39, v{T+40}
    s_add_u32 s38, s38, 1
    s_cmp_lg_u32 s39, 0
    s_cbranch_scc1 {LG}
    s_cmp_ge_u32 s38, 0x40000
    s_cbranch_scc1 {LG}
    global_load_dword v{T+40}, v{VF}, s[28:29] sc1
    s_waitcnt vmcnt(0)
    s_branch {LS}
    {LG}:
    """)
    for i in range(8):
        sb.ds(f"ds_write_b128 v{VRD}, {v(KV+4*i,4)} offset:{1024*i}", "kv")
    if stamps: stamp_mid(k, 3)
    LT2 = k.label("notask2"); LT3 = k.label("left");
    k(f"""
    s_cmp_ge_u32 s45, 180
    s_cbranch_scc1 {LT2}
    v_bfe_u32 v{T+2}, v1, 2, 4
    v_and_b32 v{T+3}, 3, v1
    v_lshlrev_b32 v{T+3}, 3, v{T+3}
    v_lshl_add_u32 v{T+2}, v{T+2}, 7, v{T+3}
    v_add_u32 v{T+2}, {TB}, v{T+2}
    """)
    for cc in range(4):
        for u in range(2):
            k(f"ds_read_b64_tr_b16 {v(AC+4*cc+2*u,2)}, v{T+2} offset:{cc*32 + u*2048}")
    srd(k, 16, 30, 31, WOF_SZ, WOF_OFF)
    k(f"v_lshlrev_b32 v{T+3}, 4, v1")
    for cc in range(4):
        k(f"""
        s_lshl_b32 s38, s47, 2
        s_add_u32 s38, s38, {cc}                   ; CB
        s_mul_i32 s39, s38, 57
        s_lshr_b32 s39, s39, 9                     ; ct
        s_mul_i32 s54, s39, 9
        s_sub_u32 s38, s38, s54                    ; cb
        s_lshl_b32 s39, s39, 2
        s_add_u32 s39, s39, s48
        s_mul_i32 s39, s39, 41
        s_mul_i32 s54, s49, 9
        s_add_u32 s39, s39, s54
        s_add_u32 s54, s39, s38
        s_lshl_b32 s{64+cc}, s54, 10
        s_lshr_b32 s54, s38, 1
        s_add_u32 s54, s54, s39
        s_lshl_b32 s54, s54, 10
        s_and_b32 s38, s38, 1
        s_lshl_b32 s38, s38, 3
        s_add_u32 s54, s54, s38
        s_cmp_eq_u32 s49, 4
        s_cselect_b32 s{64+cc}, s54, s{64+cc}
        """)
    k(f"s_waitcnt lgkmcnt(0)\ns_cmp_eq_u32 s49, 4\ns_cbranch_scc1 {LT3}")
    for cc in range(4): k(f"buffer_store_dwordx4 {v(AC+4*cc,4)}, v{T+3}, s[16:19], s{64+cc} offen {aux_o}".rstrip())
    k(f"s_branch {LT2}\n{LT3}:")
    for cc in range(4): k(f"buffer_store_dwordx2 {v(AC+4*cc,2)}, v{T+3}, s[16:19], s{64+cc} offen {aux_o}".rstrip())
    k(f"{LT2}:")
    k("s_waitcnt lgkmcnt(0)\ns_barrier")
    G = AF + 4
    for m in range(3):
        for w in range(4):
            k(f"ds_read_b32 v{G+4*m+w}, v{GA+m} offset:{8192*w}")
    for m in range(3):
        k(f"s_waitcnt lgkmcnt({8 - 4*m})")
        k(f"v_add_f32 v{G+4*m}, v{G+4*m}, v{G+4*m+1}\nv_add_f32 v{G+4*m+2}, v{G+4*m+2}, v{G+4*m+3}\nv_add_f32 v{G+4*m}, v{G+4*m}, v{G+4*m+2}")
        k(f"buffer_atomic_add_f32 v{G+4*m}, v{GO+m}, s[20:23], s44 offen")
    if stamps: stamp_end(k, kidx)
    k(f"{END}:\ns_endpgm")
    if pf and not hfirst:
        k(f"{HELP}:")
        if isinstance(pf[0], str): helper_k1(k, pf, pfaux, pfm0)
        else: helper_wave(k, "w1", pf, pfaux)
    return k, (name, (256, 1, 1), (320 if pf else 256, 1, 1), CS + 2048)

if __name__ == "__main__":
    k, l = gen_k1(kidx=0, stamps=True)
    emit_file("k1.s", [l], [k])
```

```python
from asmlib import *
from layout import *

def gen_k1(name="k1_kernel", kidx=0, stamps=False, aux_o="sc1", L=4, dbg="", nb=2, nw1=224, pfd=2, lw=0, call=True, cd=True,
           sdep=63, lwpos=8, fpos=4, w0=0):
    NS = 9; NB = 4; WS = 18432
    k = K(name, vgpr=240)
    END = k.label("end"); SPARE = k.label("spare"); COMP = k.label("comp")
    XB = NB * WS; CS = XB + NB * 16384
    k(f"""
    s_cmp_ge_u32 s2, 256
    s_cbranch_scc1 {END}
    s_load_dwordx4 s[4:7], s[0:1], 0           ; x, wqkv
    s_load_dwordx4 s[28:31], s[0:1], 72
    v_readfirstlane_b32 s3, v0
    v_and_b32 v1, 63, v0                       ; lane
    s_and_b32 s33, s2, 7                       ; die
    s_lshr_b32 s34, s2, 3
    s_lshr_b32 s3, s3, 6                       ; wave
    s_and_b32 s32, s33, 1
    s_cmp_lt_u32 s34, 8
    s_cbranch_scc1 {SPARE}
    s_sub_u32 s34, s34, 8                      ; j
    s_lshr_b32 s35, s34, 2
    s_and_b32 s36, s34, 3
    s_lshr_b32 s37, s33, 1
    s_lshl_b32 s37, s37, 2
    s_add_u32 s36, s36, s37
    s_cmp_lt_u32 s3, 4
    s_cbranch_scc1 {COMP}
    """)
    def selfpf(q, vd=8):
        LX = k.label("sx"); LN = k.label("sn")
        k(f"""
        s_mul_i32 s50, s{q}, 2850
        s_lshr_b32 s50, s50, 16                    ; stage
        s_mul_i32 s51, s50, 23
        s_sub_u32 s51, s{q}, s51                   ; r
        s_cmp_ge_u32 s51, 15
        s_cbranch_scc1 {LX}
        s_lshl_b32 s51, s51, 6
        s_movk_i32 s52, 4370
        v_add_u32 v40, s51, v1
        v_mul_u32_u24 v41, s52, v40
        s_movk_i32 s52, {3456 - 15 * 128}
        v_lshrrev_b32 v41, 16, v41                 ; row
        v_mul_u32_u24 v42, 15, v41
        v_mul_u32_u24 v41, s52, v41
        v_sub_u32 v42, v40, v42                    ; line in row
        v_mul_u32_u24 v42, 52, v42
        v_lshl_add_u32 v40, v40, 7, v41
        v_lshrrev_b32 v42, 8, v42                  ; section
        s_mul_i32 s50, s50, {64 * 3456}
        s_lshl_b32 s52, s32, 9
        v_lshl_add_u32 v40, v42, 9, v40
        s_add_u32 s50, s50, s52
        buffer_load_dword v{vd}, v40, s[16:19], s50 offen
        s_branch {LN}
        {LX}:
        s_lshr_b32 s52, s33, 1
        s_lshl_b32 s52, s52, 3
        s_add_u32 s51, s51, s52
        s_sub_u32 s51, s51, 15
        s_mul_i32 s51, s51, {64 * 1152}
        s_lshl_b32 s50, s50, 7
        s_add_u32 s50, s50, s51
        buffer_load_dword v{vd}, v43, s[12:15], s50 offen
        {LN}:
        """)
    VX = 2; VW = 10
    lwa, lwb = lw if isinstance(lw, tuple) else (lw, lw)
    lw = max(lwa, lwb)
    nsp = nw1 - 16 * lwa - 8 * lwb
    if lw: k(f"""
    s_load_dwordx2 s[10:11], s[0:1], 32
    s_mul_i32 s48, s34, {lwa}
    s_mul_i32 s49, s34, {lwb}
    s_add_u32 s49, s49, {(16 * (lwa - lwb)) & 0xffffffff}
    s_cmp_lt_u32 s35, 4
    s_cselect_b32 s48, s48, s49
    s_cselect_b32 s54, {lwa}, {lwb}
    s_add_u32 s48, s48, {nsp}
    """)
    k(f"""
    v_lshrrev_b32 v20, 4, v1                   ; g
    v_lshrrev_b32 v21, 3, v1
    s_movk_i32 s38, 1152
    v_mul_u32_u24 v21, s38, v21
    v_mul_u32_u24 v43, s38, v1
    v_and_b32 v22, 7, v1
    v_xor_b32 v22, v22, v20
    v_xor_b32 v23, 4, v22
    v_lshl_add_u32 v{VX}, v22, 4, v21
    v_lshl_add_u32 v{VX+1}, v23, 4, v21
    v_add_u32 v{VX+2}, {2*(8*1152-1024)}, v{VX}
    v_add_u32 v{VX+1}, {8*1152-1024}, v{VX+1}
    v_add_u32 v{VX+3}, {2*(8*1152-1024)}, v{VX+1}
    s_mul_i32 s40, s36, {128*1152}
    s_add_u32 s41, s40, {32*1152}
    s_add_u32 s42, s40, {64*1152}
    s_add_u32 s43, s40, {96*1152}
    s_lshl_b32 s38, s32, 2
    s_add_u32 s38, s38, s35
    s_mul_i32 s38, s38, 144
    s_add_u32 s38, s38, 1152
    s_lshl_b32 s39, s32, 1
    s_add_u32 s39, s39, s35
    s_sub_u32 s39, s39, 4
    s_mul_i32 s39, s39, 288
    s_cmp_lt_u32 s35, 4
    s_cselect_b32 s44, s38, s39
    s_cselect_b32 s45, {1152 - 144}, 0
    s_movk_i32 s46, 3641
    s_movk_i32 s47, 3456
    v_mov_b32 v24, s45
    s_lshl_b32 s38, s32, 5
    s_add_u32 s38, s38, s35
    s_lshl_b32 s53, s38, 2
    v_mov_b32 v34, s53
    s_waitcnt lgkmcnt(0)
    """)
    srd(k, 12, 4, 5, 2048 * 1152)
    srd(k, 16, 6, 7, 576 * 3456)
    lb = SB(k)
    for i in range(nb):
        if i: k("s_add_u32 s34, s34, 24")
        selfpf(34); lb.q["vmcnt"].append("pf")
    def waddr(p):
        return f"""
        v_add_u32 v25, {64*p}, v1
        v_mul_u32_u24 v26, s46, v25
        v_lshrrev_b32 v26, 16, v26
        v_mul_u32_u24 v27, 18, v26
        v_lshrrev_b32 v28, 1, v26
        v_sub_u32 v27, v25, v27                    ; chunk
        v_xor_b32 v28, v28, v26
        v_cmp_lt_u32 vcc, 8, v27
        v_and_b32 v28, 4, v28
        v_lshlrev_b32 v27, 4, v27
        v_mul_u32_u24 v28, 3, v28
        v_cndmask_b32 v29, 0, v24, vcc
        v_xor_b32 v26, v26, v28
        v_mad_u32_u24 v27, v26, s47, v27
        v_add3_u32 v{VW+p}, v27, v29, {-(p % 4) * 1024 if p % 4 else 0}
        """ if p % 4 == 0 else f"""
        v_add_u32 v25, {64*p}, v1
        v_mul_u32_u24 v26, s46, v25
        v_lshrrev_b32 v26, 16, v26
        v_mul_u32_u24 v27, 18, v26
        v_lshrrev_b32 v28, 1, v26
        v_sub_u32 v27, v25, v27
        v_xor_b32 v28, v28, v26
        v_cmp_lt_u32 vcc, 8, v27
        v_and_b32 v28, 4, v28
        v_lshlrev_b32 v27, 4, v27
        v_mul_u32_u24 v28, 3, v28
        v_cndmask_b32 v29, 0, v24, vcc
        v_xor_b32 v26, v26, v28
        v_mad_u32_u24 v27, v26, s47, v27
        v_add_u32 v27, v27, v29
        v_subrev_u32 v{VW+p}, {(p % 4) * 1024}, v27
        """
    def xp(n):
        out = []
        for w in range(4):
            for q in range(4):
                g = []
                if q == 0: g += [f"s_mov_b32 m0, {XB + (n % NB) * 16384 + w * 4096}", "s_nop 0"]
                g.append(("vm", f"buffer_load_dwordx4 v{VX+q}, s[12:15], s{40+w} offen offset:{q*1024} lds"))
                if q == 3: g.append(f"s_add_u32 s{40+w}, s{40+w}, 128")
                out.append(g)
        return out
    def wp(n):
        out = []
        for hk in range(2):
            for p in range(9):
                g = []
                if p % 4 == 0: g += [f"s_mov_b32 m0, {(n % NB) * WS + hk * 9216 + p * 1024}", "s_nop 0"]
                g.append(("vm", f"buffer_load_dwordx4 v{VW+p}, s[16:19], s44 offen offset:{(p%4)*1024} lds"))
                if p == 8: g.append(f"s_add_u32 s44, s44, {32*3456}")
                out.append(g)
        return out
    def emit(s_, g, tag):
        for x in g:
            if isinstance(x, tuple): s_.vm(x[1], tag)
            else: k(x)
    for i, g in enumerate(xp(0)):
        emit(lb, g, 0)
        if i < 9: k(waddr(i))
    for g in wp(0): emit(lb, g, 0)
    for n in range(NS):
        if n + 1 < NS and n == 0:
            for g in wp(1) + xp(1): emit(lb, g, 1)
        lb.needvm(n)
        k("s_barrier")
        if n == fpos: k("s_load_dword s39, s[28:29], s53")
        if n + 2 < NS:
            for g in wp(n + 2) + xp(n + 2): emit(lb, g, n + 2)
        if lw and n == lwpos:
            srd(k, 20, 10, 11, 2048 * 9216)
            k(f"""
            s_mov_b32 s98, {(1 << 32) // 9 + 1}
            s_movk_i32 s99, {9216 - 9 * 128}
            s_mul_i32 s49, s33, 1152
            s_lshl_b32 s48, s48, 6
            """)
            LE = k.label("lwe")
            assert lwa == lwb or lwpos == NS - 1
            for i in range(lw):
                if i >= min(lwa, lwb): k(f"s_cmp_le_u32 s54, {i}\ns_cbranch_scc1 {LE}")
                pf_addr_w1(k, 30, 32 + i % 2, 48, 49)
                lb.vm(f"buffer_load_dword v8, v{32 + i % 2}, s[20:23], s49 offen", "w1")
                k(f"s_add_u32 s48, s48, 64")
            k(f"{LE}:")
    LS = k.label("spin"); LG = k.label("go")
    k(f"""
    s_barrier
    s_cmp_ge_u32 s35, 4
    s_cbranch_scc1 {END}
    s_waitcnt lgkmcnt(0)
    s_mov_b32 s38, 0
    s_cmp_lg_u32 s39, 0
    s_cbranch_scc1 {LG}
    {LS}:
    global_load_dword v35, v34, s[28:29] sc1
    s_add_u32 s38, s38, 1
    s_waitcnt vmcnt(0)
    v_readfirstlane_b32 s39, v35
    s_cmp_ge_u32 s38, 0x40000
    s_cbranch_scc1 {LG}
    s_cmp_eq_u32 s39, 0
    s_cbranch_scc1 {LS}
    {LG}:
    s_barrier
    """)
    k("s_endpgm")
    k(f"{SPARE}:")
    if stamps: stamp_begin(k)
    k(f"""
    s_load_dwordx2 s[8:9], s[0:1], 16          ; wo
    s_load_dwordx2 s[10:11], s[0:1], 32        ; w1
    """)
    L1 = k.label("nc")
    k(f"s_cmp_lg_u32 s3, 4\ns_cbranch_scc1 {L1}")
    code_pf(k, k.name, "Lcode_end" if call else "k2_kernel", 16, 8, 44, n=8)
    k(f"""
    {L1}:
    s_movk_i32 s38, 1152
    v_mul_u32_u24 v43, s38, v1
    v_lshlrev_b32 v9, 4, v1
    s_mul_i32 s39, s34, 5
    s_add_u32 s39, s39, s3
    s_add_u32 s40, s39, {24 * nb}
    s_waitcnt lgkmcnt(0)
    """)
    srd(k, 12, 4, 5, 2048 * 1152)
    srd(k, 16, 6, 7, 576 * 3456)
    srd(k, 24, 30, 31, FLG_OFF + FLG_SZ - KVT_OFF, KVT_OFF)
    LZ = k.label("noz"); LC = k.label("noclr")
    k(f"""
    s_lshl_b32 s41, s34, 3
    s_add_u32 s41, s41, s3
    s_cmp_lg_u32 s41, 60
    s_cbranch_scc1 {LZ}
    s_mul_i32 s42, s33, 6080
    v_mov_b32 v12, 0
    v_mov_b32 v13, 0
    v_mov_b32 v14, 0
    v_mov_b32 v15, 0
    s_add_u32 s43, s42, 4096
    """)
    for q in range(4): k(f"buffer_store_dwordx4 v[12:15], v9, s[24:27], s42 offen offset:{q*1024} sc1")
    k(f"""
    buffer_store_dwordx4 v[12:15], v9, s[24:27], s43 offen sc1
    s_mov_b32 exec_hi, 0x0fffffff
    buffer_store_dwordx4 v[12:15], v9, s[24:27], s43 offen offset:1024 sc1
    s_mov_b32 exec_hi, -1
    s_lshr_b32 s38, s33, 2
    s_mul_i32 s38, s38, 28
    s_add_u32 s38, s38, s33
    s_lshl_b32 s38, s38, 2
    v_mov_b32 v16, s38
    v_mov_b32 v17, 1
    s_waitcnt vmcnt(0)
    global_store_dword v16, v17, s[28:29] sc1
    {LZ}:
    s_cmp_lg_u32 s3, 3
    s_cbranch_scc1 {LC}
    v_mov_b32 v12, -1
    v_mov_b32 v13, -1
    v_mov_b32 v14, -1
    v_mov_b32 v15, -1
    s_lshl_b32 s42, s2, 10
    s_add_u32 s42, s42, {XCH_OFF - KVT_OFF}
    s_lshl_b32 s43, s2, 9
    s_add_u32 s43, s43, {FLG_OFF - KVT_OFF}
    buffer_store_dwordx4 v[12:15], v9, s[24:27], s42 offen {aux_o}
    s_mov_b32 exec_hi, 0
    buffer_store_dwordx4 v[12:15], v9, s[24:27], s43 offen {aux_o}
    s_mov_b32 exec_hi, -1
    {LC}:
    """)
    LP = k.label("sp"); LQ = k.label("spd")
    k(f"s_cmp_ge_u32 s40, 207\ns_cbranch_scc1 {LQ}\n{LP}:")
    selfpf(40)
    k(f"""
    s_add_u32 s40, s40, 40
    s_waitcnt vmcnt({sdep})
    s_cmp_lt_u32 s40, 207
    s_cbranch_scc1 {LP}
    {LQ}:
    """)
    if stamps: stamp_mid(k, 0)
    LT = k.label("notask"); LT3 = k.label("left")
    T = 20; AC = 44
    srd(k, 20, 8, 9, 576 * 1152)
    k(f"""
    s_mul_i32 s45, s2, 3
    s_add_u32 s45, s45, s3
    s_cmp_lt_u32 s3, 3
    s_cselect_b32 s45, s45, 255
    s_cmp_ge_u32 s45, 180
    s_cbranch_scc1 {LT}
    s_mul_i32 s46, s45, 57
    s_lshr_b32 s46, s46, 9
    s_mul_i32 s47, s46, 9
    s_sub_u32 s47, s45, s47                    ; cq
    s_mul_i32 s48, s46, 52
    s_lshr_b32 s48, s48, 8                     ; w' = wt / 5
    s_mul_i32 s49, s48, 5
    s_sub_u32 s49, s46, s49                    ; t
    v_lshrrev_b32 v{T+4}, 3, v1                ; b = l>>3
    v_lshrrev_b32 v{T+5}, 1, v{T+4}
    v_mul_u32_u24 v{T+5}, 18, v{T+5}
    v_and_b32 v{T+6}, 1, v{T+4}
    v_add3_u32 v{T+5}, v{T+5}, v{T+6}, 16
    s_mov_b32 s54, {8*1152-1024}
    s_mov_b32 s55, {18*1152-2048}
    s_mov_b32 s56, {26*1152-3072}
    s_cmp_eq_u32 s49, 4
    s_cselect_b64 vcc, -1, 0
    s_cmov_b32 s54, {72*1152-1024}
    s_cselect_b32 s57, 0, s49
    v_cndmask_b32 v{T+4}, v{T+4}, v{T+5}, vcc
    s_movk_i32 s58, 1152
    v_mul_u32_u24 v{T+4}, s58, v{T+4}
    v_and_b32 v{T+5}, 7, v1
    v_lshl_add_u32 v{T+4}, v{T+5}, 4, v{T+4}
    s_mul_i32 s58, s48, 144
    s_mul_i32 s57, s57, 36
    s_add_u32 s58, s58, s57
    s_mul_i32 s58, s58, 1152
    s_lshl_b32 s57, s47, 7
    s_add_u32 s58, s58, s57
    s_add_u32 s54, s54, s58
    s_add_u32 s55, s55, s58
    s_add_u32 s56, s56, s58
    s_lshl_b32 s59, s3, 12
    s_mov_b32 m0, s59
    v_bfe_u32 v{T+2}, v1, 2, 4
    buffer_load_dwordx4 v{T+4}, s[20:23], s58 offen offset:0 lds
    buffer_load_dwordx4 v{T+4}, s[20:23], s54 offen offset:1024 lds
    buffer_load_dwordx4 v{T+4}, s[20:23], s55 offen offset:2048 lds
    buffer_load_dwordx4 v{T+4}, s[20:23], s56 offen offset:3072 lds
    v_and_b32 v{T+3}, 3, v1
    v_lshlrev_b32 v{T+3}, 3, v{T+3}
    v_lshl_add_u32 v{T+2}, v{T+2}, 7, v{T+3}
    v_add_u32 v{T+2}, s59, v{T+2}
    """)
    for cc in range(4):
        k(f"""
        s_lshl_b32 s38, s47, 2
        s_add_u32 s38, s38, {cc}                   ; CB
        s_mul_i32 s53, s38, 57
        s_lshr_b32 s53, s53, 9                     ; ct
        s_mul_i32 s54, s53, 9
        s_sub_u32 s38, s38, s54                    ; cb
        s_lshl_b32 s53, s53, 2
        s_add_u32 s53, s53, s48
        s_mul_i32 s53, s53, 41
        s_mul_i32 s54, s49, 9
        s_add_u32 s53, s53, s54
        s_add_u32 s54, s53, s38
        s_lshl_b32 s{64+cc}, s54, 10
        s_lshr_b32 s54, s38, 1
        s_add_u32 s54, s54, s53
        s_lshl_b32 s54, s54, 10
        s_and_b32 s38, s38, 1
        s_lshl_b32 s38, s38, 3
        s_add_u32 s54, s54, s38
        s_cmp_eq_u32 s49, 4
        s_cselect_b32 s{64+cc}, s54, s{64+cc}
        s_add_u32 s{64+cc}, s{64+cc}, {WOF_OFF - KVT_OFF}
        """)
    k("s_waitcnt vmcnt(0)")
    for cc in range(4):
        for u in range(2):
            k(f"ds_read_b64_tr_b16 {v(AC+4*cc+2*u,2)}, v{T+2} offset:{cc*32 + u*2048}")
    k(f"s_waitcnt lgkmcnt(0)\ns_cmp_eq_u32 s49, 4\ns_cbranch_scc1 {LT3}")
    for cc in range(4): k(f"buffer_store_dwordx4 {v(AC+4*cc,4)}, v9, s[24:27], s{64+cc} offen {aux_o}".rstrip())
    k(f"s_branch {LT}\n{LT3}:")
    for cc in range(4): k(f"buffer_store_dwordx2 {v(AC+4*cc,2)}, v9, s[24:27], s{64+cc} offen {aux_o}".rstrip())
    k(f"{LT}:")
    if stamps: stamp_mid(k, 1)
    if nsp:
        LW = k.label("w1"); LV = k.label("w1d")
        srd(k, 12, 10, 11, 2048 * 9216)
        k(f"""
        s_mov_b32 s98, {(1 << 32) // 9 + 1}
        s_movk_i32 s99, {9216 - 9 * 128}
        s_mul_i32 s42, s33, 1152
        {f"s_add_u32 s39, s39, {w0}" if w0 else ""}
        s_lshl_b32 s39, s39, 6
        {LW}:
        """)
        pf_addr_w1(k, 4, 6, 39, 42)
        k(f"""
        buffer_load_dword v8, v6, s[12:15], s42 offen
        s_add_u32 s39, s39, {40 * 64}
        s_waitcnt vmcnt({pfd - 1})
        s_cmp_lt_u32 s39, {nsp * 64}
        s_cbranch_scc1 {LW}
        """)
    if cd:
        L2 = k.label("nd")
        k(f"s_cmp_lg_u32 s3, 4\ns_cbranch_scc1 {L2}")
        code_pf(k, "k2_kernel", "k3_kernel", 16, 8, 44, n=8)
        k(f"{L2}:")
    if stamps: stamp_end(k, kidx)
    k("s_endpgm")
    k(f"{COMP}:")
    if stamps: stamp_begin(k)
    sb = SB(k)
    VA = 2; VB = 4; VCS = 6; VBP = 7; VF = 8; VEPS = 10; VP = 12; GA = 16; GO = 22; ONE = 28
    ACC = 32
    def acc(j, rb): return ACC + (j * 2 + rb) * 4
    AQ = 104; AS = 112; AC = 120; AF = 156
    def af(h, rb): return AF + (h * 2 + rb) * 4
    BF = 172; RB = 6
    def bf(t): return BF + 4 * (t % RB)
    T = 196
    k(f"""
    v_lshrrev_b32 v{T}, 4, v1                  ; g
    v_and_b32 v{T+1}, 15, v1                   ; i
    s_and_b32 s37, s3, 1                       ; parity
    v_lshrrev_b32 v{T+2}, 1, v{T+1}
    v_xor_b32 v{T+2}, v{T+2}, v{T}
    s_lshl_b32 s38, s37, 2
    v_xor_b32 v{T+2}, s38, v{T+2}
    v_lshlrev_b32 v{T+2}, 4, v{T+2}
    v_lshl_add_u32 v{T+2}, v{T+1}, 7, v{T+2}
    s_lshl_b32 s38, s3, 12
    s_add_u32 s38, s38, {XB}
    v_add_u32 v{VA}, s38, v{T+2}
    v_xor_b32 v{VA+1}, 64, v{VA}
    v_bfe_u32 v{T+2}, v1, 2, 3
    v_lshrrev_b32 v{T+3}, 5, v1
    v_lshl_add_u32 v{T+3}, v{T+3}, 4, v{T+2}
    s_movk_i32 s38, 288
    v_mul_u32_u24 v{T+3}, s38, v{T+3}
    v_and_b32 v{T+4}, 3, v1
    v_lshl_add_u32 v{T+3}, v{T+4}, 3, v{T+3}
    s_mul_i32 s38, s37, 9216
    s_sub_u32 s39, 9216, s38
    v_add_u32 v{VB}, s38, v{T+3}
    v_add_u32 v{VB+1}, s39, v{T+3}
    v_mov_b32 v{ONE}, 0x3f803f80
    v_mov_b32 v{ONE+1}, 0x3f803f80
    v_mov_b32 v{ONE+2}, 0x3f803f80
    v_mov_b32 v{ONE+3}, 0x3f803f80
    s_lshl_b32 s38, s3, 10
    s_add_u32 s38, s38, {CS}
    v_lshl_add_u32 v{VCS}, v{T+1}, 2, s38
    v_and_b32 v{T+2}, 48, v1
    v_lshl_add_u32 v{T+2}, v{T}, 2, v{T+2}
    v_lshlrev_b32 v{VBP}, 2, v{T+2}
    s_lshl_b32 s40, s32, 2
    s_add_u32 s40, s40, s35
    v_cmp_gt_u32 s[60:61], 8, v{T+1}
    v_mov_b32 v{T+5}, {fbits(1e-6)}
    s_lshl_b32 s41, s40, 2
    s_add_u32 s41, s41, s3
    v_cndmask_b32 v{VEPS}, 0, v{T+5}, s[60:61]
    s_mul_i32 s41, s41, 1520
    s_lshl_b32 s38, s36, 2
    s_add_u32 s38, s38, s3
    s_mul_i32 s38, s38, 576
    s_lshl_b32 s39, s32, 1
    s_add_u32 s39, s39, s35
    s_sub_u32 s39, s39, 4
    s_mul_i32 s39, s39, 144
    s_add_u32 s38, s38, s39
    s_lshl_b32 s42, s38, 6
    s_add_u32 s43, s42, 4096
    s_add_u32 s44, s42, 8192
    v_lshlrev_b32 v{T+2}, 6, v{T+1}
    v_lshl_add_u32 v{VP}, v{T}, 4, v{T+2}      ; pq: i*64 + g*16
    v_lshlrev_b32 v{T+2}, 4, v1
    s_mul_i32 s38, s3, 9216
    v_add_u32 v{VP+1}, s38, v{T+2}
    s_lshl_b32 s38, s3, 10
    v_add_u32 v{VP+2}, s38, v{T+2}             ;                    read
    s_lshl_b32 s45, s3, 13
    s_add_u32 s45, s45, {XB}
    s_movk_i32 s38, 144
    v_mul_u32_u24 v{T+2}, s38, v{T+1}
    v_lshl_add_u32 v{T+2}, v{T}, 4, v{T+2}
    v_add_u32 v{VP+3}, s45, v{T+2}
    s_mul_i32 s39, s3, 288
    s_add_u32 s46, s39, s45
    s_add_u32 s46, s46, {26 * 144}
    v_lshl_add_u32 v{VEPS+1}, v{T}, 4, s46     ; z row
    s_mul_i32 s39, s3, 296
    s_add_u32 s45, s45, s39
    s_add_u32 s45, s45, {8 * 144}
    s_movk_i32 s38, 3277
    s_movk_i32 s39, 380
    v_mov_b32 v{T+3}, 0x40000000
    """)
    for m in range(6):
        k(f"""
        v_add_u32 v{T+4}, {64*m}, v1               ; idx
        v_mul_u32_u24 v{T+5}, s38, v{T+4}
        v_cmp_gt_u32 s[54:55], s39, v{T+4}
        v_lshrrev_b32 v{T+5}, 16, v{T+5}           ; e
        v_mul_u32_u24 v{T+6}, 20, v{T+5}
        v_lshlrev_b32 v{T+7}, 2, v{T+4}
        v_sub_u32 v{T+6}, v{T+4}, v{T+6}           ; d
        v_cmp_gt_u32 vcc, 18, v{T+6}
        v_lshl_add_u32 v{T+5}, v{T+5}, 6, s45
        s_and_b64 vcc, vcc, s[54:55]
        v_add_u32 v{GA+m}, v{T+5}, v{T+7}
        v_cndmask_b32 v{GO+m}, v{T+3}, v{T+7}, vcc
        """)
    k("s_waitcnt lgkmcnt(0)")
    srd(k, 12, 30, 31, PQ_SZ, PQ_OFF)
    srd(k, 20, 30, 31, KVT_SZ, KVT_OFF)
    NI = NS * 18
    def rdB(t):
        n, r = divmod(t, 18); h, j = divmod(r, 9)
        return [(f"ds_read_b64_tr_b16 {v(bf(t)+2*u,2)}, v{VB+h} offset:{(n%NB)*WS + u*2304 + j*32}", ("B", t)) for u in range(2)]
    def rdA(hh):
        n, h = divmod(hh, 2)
        return [(f"ds_read_b128 {v(af(h,rb),4)}, v{VA+h} offset:{(n%NB)*16384 + rb*2048}", ("A", hh)) for rb in range(2)]
    k("s_barrier")
    if stamps: stamp_mid(k, 0)
    for x in rdA(0): sb.ds(*x)
    for t in range(L):
        for x in rdB(t): sb.ds(*x)
    for t in range(NI):
        n, r = divmod(t, 18); h, j = divmod(r, 9); hh = 2 * n + h
        m = []
        for rb in range(2):
            c = "0" if hh == 0 else v(acc(j, rb), 4)
            m.append(f"{MF} {v(acc(j,rb),4)}, {v(af(h,rb),4)}, {v(bf(t),4)}, {c}")
        if h == 0:
            m.append(f"{MF} {v(AC+4*j,4)}, {v(ONE,4)}, {v(bf(t),4)}, {'0' if n == 0 else v(AC+4*j,4)}")
        if j in (1, 2):
            rb = j - 1
            m.append(f"{MF} {v(AQ+4*rb,4)}, {v(af(h,rb),4)}, {v(af(h,rb),4)}, {'0' if hh == 0 else v(AQ+4*rb,4)}")
        if j in (3, 4):
            rb = j - 3
            m.append(f"{MF} {v(AS+4*rb,4)}, {v(af(h,rb),4)}, {v(ONE,4)}, {'0' if hh == 0 else v(AS+4*rb,4)}")
        sb.needds(("B", t), ("A", hh))
        k(m[0])
        if r == 18 - L and n + 1 < NS: k("s_barrier")
        rds = rdB(t + L) if t + L < NI else []
        if j == 9 - L and hh + 1 < 2 * NS: rds = rdA(hh + 1) + rds
        if n == NS - 1 and h == 1 and j >= 4:
            js = {4: (0,), 5: (1, 2), 6: (3, 4), 7: (5, 6), 8: (7, 8)}[j]
            rds += [(f"ds_write_b32 v{VCS}, v{AC+4*x} offset:{64*x}", "cs") for x in js]
        per = -(-len(rds) // len(m))
        for x in rds[:per]: sb.ds(*x)
        for i in range(1, len(m)):
            k(m[i])
            for x in rds[per * i: per * (i + 1)]: sb.ds(*x)
    if stamps: stamp_mid(k, 1)
    sb.drain("lgkmcnt")
    k("s_barrier")
    C = T; RR = T + 10; RM = T + 18; Q = T + 26; FL = T + 34; VT = T + 36; S = AS
    k(f"v_xor_b32 v{VCS}, 1024, v{VCS}")
    for x in range(8): sb.ds(f"ds_bpermute_b32 v{Q+x}, v{VBP}, v{AQ+x} offset:{4*(x&3)}", "q")
    for j in range(9): sb.ds(f"ds_read_b32 v{C+j}, v{VCS} offset:{64*j}", "c")
    k(f"""
    s_mov_b32 s38, {fbits(1/576)}
    s_mov_b32 s39, {fbits(1e-5)}
    s_mov_b32 s62, {fbits(1.4426950408889634)}
    s_mov_b32 s63, {fbits(1.4426950408889634)}
    s_mov_b32 s64, {fbits(1e-6)}
    s_mov_b32 s65, {fbits(1e-6)}
    v_mov_b32 v{VT}, {fbits(-1e-6 * 1.4426950408889634)}
    """)
    for x in range(8): k(f"v_mul_f32 v{S+x}, s38, v{S+x}")
    for x in range(8): k(f"v_fma_f32 v{RM+x}, -v{S+x}, v{S+x}, s39")
    sb.needds("q")
    for x in range(8): k(f"v_fma_f32 v{Q+x}, v{Q+x}, s38, v{RM+x}")
    for x in range(8): k(f"v_max_f32 v{Q+x}, s39, v{Q+x}")
    for x in range(8): k(f"v_rsq_f32 v{RR+x}, v{Q+x}")
    sb.needds("c")
    for j in range(9): k(f"v_add_f32 v{C+j}, v{C+j}, v{AC+4*j}")
    for x in range(8): k(f"v_mul_f32 v{RM+x}, v{RR+x}, v{S+x}")
    if stamps: stamp_mid(k, 2)
    E = AF
    def F(j): return AC + 4 * j
    def fin(j, mode):
        a0 = acc(j, 0)
        cp = v(C + (j & ~1), 2); cs = f"op_sel:[0,{j&1},0] op_sel_hi:[1,{j&1},1] neg_lo:[1,0,0] neg_hi:[1,0,0]"
        X = range(0, 8, 2)
        for x in X:
            if mode == "phi": k(f"v_pk_fma_f32 {v(a0+x,2)}, {v(a0+x,2)}, {v(RR+x,2)}, s[64:65]")
            elif mode == "mix": k(f"v_pk_fma_f32 {v(a0+x,2)}, {v(a0+x,2)}, {v(RR+x,2)}, {v(VEPS,2)} op_sel_hi:[1,1,0]")
            else: k(f"v_pk_mul_f32 {v(a0+x,2)}, {v(a0+x,2)}, {v(RR+x,2)}")
        for x in X: k(f"v_pk_fma_f32 {v(a0+x,2)}, {v(RM+x,2)}, {cp}, {v(a0+x,2)} {cs}")
        if mode != "lin":
            for x in X: k(f"v_pk_fma_f32 {v(E+x,2)}, {v(a0+x,2)}, s[62:63], {v(VT,2)} op_sel_hi:[1,1,0]")
            for x in range(8): k(f"v_exp_f32_e64 v{E+x}, v{E+x} clamp")
            if mode == "phi":
                for x in range(8): k(f"v_max_f32 v{a0+x}, s64, v{a0+x}")
                for x in X: k(f"v_pk_add_f32 {v(a0+x,2)}, {v(a0+x,2)}, {v(E+x,2)}")
            else:
                for x in range(8): k(f"v_max_f32 v{E+8+x}, s64, v{a0+x}")
                for x in X: k(f"v_pk_add_f32 {v(E+x,2)}, {v(E+8+x,2)}, {v(E+x,2)}")
                for x in range(8): k(f"v_cndmask_b32 v{a0+x}, v{a0+x}, v{E+x}, s[60:61]")
        for x in range(4): k(f"v_cvt_pk_bf16_f32 v{F(j)+x}, v{a0+2*x}, v{a0+2*x+1}")
    LA = k.label("typea")
    k(f"s_cmp_lt_u32 s35, 4\ns_cbranch_scc1 {LA}")
    for j in range(9):
        fin(j, "phi")
        k(f"buffer_store_dwordx4 {v(F(j),4)}, v{VP}, s[12:15], s{42 + j//4} offen offset:{(j%4)*1024} {aux_o}".rstrip())
    if stamps:
        stamp_mid(k, 3); stamp_end(k, kidx)
    k(f"s_endpgm\n{LA}:")
    for j in range(9):
        fin(j, "phi" if j < 4 else "mix" if j == 4 else "lin")
        sb.ds(f"ds_write_b128 v{VP+1}, {v(F(j),4)} offset:{j*1024}", "ex")
    sb.drain("lgkmcnt")
    k("s_barrier")
    if stamps: stamp_mid(k, 3)
    def R(w, x): return ACC + (w * 4 + x) * 4
    for w in range(4):
        for x in range(4):
            sb.ds(f"ds_read_b128 {v(R(w,x),4)}, v{VP+2} offset:{w*9216 + (0, 1024, 4096, 5120)[x]}", ("r", w))
    D = BF
    for w in range(4):
        sb.needds(("r", w))
        for kb in range(2):
            for vb in range(2):
                d = D + (kb * 2 + vb) * 4
                k(f"{MF} {v(d,4)}, {v(R(w,kb),4)}, {v(R(w,2+vb),4)}, {'0' if w == 0 else v(d,4)}")
        for kb in range(2):
            d = D + 16 + kb * 4
            k(f"{MF} {v(d,4)}, {v(R(w,kb),4)}, {v(ONE,4)}, {'0' if w == 0 else v(d,4)}")
    k("s_nop 3")
    for kb in range(2):
        for vb in range(2):
            k(f"ds_write_b128 v{VP+3}, {v(D+(kb*2+vb)*4,4)} offset:{vb*16*144 + kb*64}")
    k("s_mov_b32 exec_lo, 0x00010001\ns_mov_b32 exec_hi, 0x00010001")
    for kb in range(2): k(f"ds_write_b128 v{VEPS+1}, {v(D+16+kb*4,4)} offset:{kb*64}")
    k("s_mov_b64 exec, -1")
    for m in range(6): k(f"ds_read_b32 v{Q+m}, v{GA+m}")
    for m in range(6):
        k(f"s_waitcnt lgkmcnt({5 - m})")
        k(f"buffer_atomic_add_f32 v{Q+m}, v{GO+m}, s[20:23], s41 offen")
    if stamps:
        stamp_mid(k, 4); stamp_end(k, kidx)
    k(f"{END}:\ns_endpgm")
    return k, (name, (256, 1, 1), (320, 1, 1), CS + 4096)
```

```python
import os
WB = int(os.environ.get('WB', '0'), 0)
PQ_OFF  = WB + 0x000000; PQ_SZ  = 2048 * 1152
HL_OFF  = WB + 0x240000; HL_SZ  = 2048 * 1152
HR_OFF  = WB + 0x480000; HR_SZ  = 2048 * 1152
U_OFF   = WB + 0x6C0000; U_SZ   = 576 * 4608 * 2
KVT_OFF = WB + 0xC00000; KVT_SZ = 32 * 19 * 20 * 4
XCH_OFF = WB + 0xC10000; XCH_SZ = 64 * 4 * 256
WOF_OFF = WB + 0xC20000; WOF_SZ = 16 * 41 * 1024
FLG_OFF = WB + 0xD00000; FLG_SZ = 256 * 128
XQ_OFF  = WB + 0x1000000; XQ_SZ = 64 * 4 * 3 * 9216
```

```python
NAME = "sequential_preLN__linear_attn_block__mixer_token_mlp__prompt"
STAMP = 200 << 20

class K:
    def __init__(self, name, vgpr=256, agpr=0, sgpr=102):
        self.name = name; self.lines = []; self.vgpr = vgpr; self.agpr = agpr; self.sgpr = sgpr
        self.nlab = 0
        self.tag = name.replace("_kernel", "")[-10:]
    def __call__(self, s):
        if isinstance(s, (list, tuple)):
            for x in s: self(x)
            return
        for l in s.strip("\n").split("\n"):
            l = l.strip()
            if not l: continue
            self.lines.append(l if l.endswith(":") else "    " + l)
    def label(self, base="L"):
        self.nlab += 1
        return f"L{self.tag}_{base}{self.nlab}"
    def text(self):
        s = f".text\n.globl {self.name}\n.p2align 8\n.type {self.name},@function\n{self.name}:\n"
        s += "\n".join(self.lines) + "\n"
        return s
    def desc(self):
        acc = (self.vgpr + 3) // 4 * 4
        nfv = acc + self.agpr if self.agpr else self.vgpr
        s = f""".amdhsa_kernel {self.name}
  .amdhsa_next_free_vgpr {nfv}
  .amdhsa_next_free_sgpr {self.sgpr}
  .amdhsa_accum_offset {acc}
  .amdhsa_group_segment_fixed_size 0
  .amdhsa_kernarg_size 88
  .amdhsa_user_sgpr_count 2
  .amdhsa_user_sgpr_kernarg_segment_ptr 1
  .amdhsa_system_sgpr_workgroup_id_x 1
  .amdhsa_float_denorm_mode_32 3
.end_amdhsa_kernel
"""
        return s

def emit_file(path, launches, kernels, header=""):
    s = header
    for (n, g, b, l) in launches:
        s += f"; @launch kernel={n} grid=({g[0]},{g[1]},{g[2]}) block=({b[0]},{b[1]},{b[2]}) lds={l}\n"
    s += '.amdgcn_target "amdgcn-amd-amdhsa--gfx950"\n'
    for k in kernels: s += k.text()
    s += "Lcode_end:\n"
    s += '.section .rodata,"a"\n'
    for k in kernels: s += ".p2align 6\n" + k.desc()
    open(path, "w").write(s)

def v(a, n=1): return f"v{a}" if n == 1 else f"v[{a}:{a+n-1}]"
def a(x, n=1): return f"a{x}" if n == 1 else f"a[{x}:{x+n-1}]"
def s(x, n=1): return f"s{x}" if n == 1 else f"s[{x}:{x+n-1}]"

def weave(main, side, start=0, end=None):
    end = len(main) if end is None else end
    n = end - start
    out = []
    slots = [[] for _ in main]
    m = len(side)
    for i, it in enumerate(side):
        pos = start + (i * n) // m if m else start
        slots[pos].append(it)
    for ins, sl in zip(main, slots):
        out.append(ins)
        for it in sl:
            out.extend(it if isinstance(it, (list, tuple)) else [it])
    return out

def srd(k, r, lo, hi, size, add=0):
    if add:
        k(f"s_add_u32 s{r}, s{lo}, {add}\ns_addc_u32 s{r+1}, s{hi}, 0")
    else:
        k(f"s_mov_b32 s{r}, s{lo}\ns_mov_b32 s{r+1}, s{hi}")
    k(f"s_mov_b32 s{r+2}, {size}\ns_mov_b32 s{r+3}, 0x20000")

def stamp_begin(k):
    k("s_memrealtime s[90:91]\ns_memtime s[92:93]")
def stamp_mid(k, i):
    k(f"s_memtime s[{70+2*i}:{71+2*i}]")
def stamp_end(k, kidx):
    L = k.label("nost")
    k(f"""
    s_waitcnt vmcnt(0)
    s_memrealtime s[94:95]
    s_memtime s[96:97]
    s_load_dwordx2 s[84:85], s[0:1], 80
    s_waitcnt lgkmcnt(0)
    s_add_u32 s84, s84, {STAMP + kidx * 65536}
    s_addc_u32 s85, s85, 0
    s_lshl_b32 s86, s2, 6
    s_mov_b64 exec, -1
    v_mov_b32 v1, s86
    v_mov_b32 v4, s90
    v_mov_b32 v5, s91
    v_mov_b32 v6, s94
    v_mov_b32 v7, s95
    v_mov_b32 v8, s92
    v_mov_b32 v9, s93
    v_mov_b32 v10, s96
    v_mov_b32 v11, s97
    v_mov_b32 v12, s70
    v_mov_b32 v13, s72
    v_mov_b32 v14, s74
    v_mov_b32 v15, s76
    v_mov_b32 v16, s78
    v_mov_b32 v17, s80
    v_mov_b32 v18, s82
    v_mov_b32 v19, s92
    v_cmp_eq_u32 vcc, 0, v0
    s_and_saveexec_b64 s[88:89], vcc
    s_cbranch_execz {L}
    global_store_dwordx4 v1, v[4:7], s[84:85]
    global_store_dwordx4 v1, v[8:11], s[84:85] offset:16
    global_store_dwordx4 v1, v[12:15], s[84:85] offset:32
    global_store_dwordx4 v1, v[16:19], s[84:85] offset:48
    {L}:
    """)

class SB:
    def __init__(self, k):
        self.k = k
        self.q = {"lgkmcnt": [], "vmcnt": []}
        self.done = {"lgkmcnt": 0, "vmcnt": 0}
        self.mx = {"lgkmcnt": 15, "vmcnt": 63}
    def op(self, c, ins, tag=None):
        self.k(ins); self.q[c].append(tag)
    def ds(self, ins, tag=None): self.op("lgkmcnt", ins, tag)
    def vm(self, ins, tag=None): self.op("vmcnt", ins, tag)
    def need(self, c, pred):
        q = self.q[c]
        last = -1
        for i in range(len(q) - 1, -1, -1):
            if pred(q[i]): last = i; break
        if last < self.done[c]: return
        n = min(len(q) - 1 - last, self.mx[c])
        self.k(f"s_waitcnt {c}({n})")
        self.done[c] = len(q) - n
    def needds(self, *tags): self.need("lgkmcnt", lambda t: t in tags)
    def needvm(self, *tags): self.need("vmcnt", lambda t: t in tags)
    def drain(self, c):
        if self.done[c] < len(self.q[c]):
            self.k(f"s_waitcnt {c}(0)"); self.done[c] = len(self.q[c])

import struct
def fbits(x): return struct.unpack("<I", struct.pack("<f", x))[0]
MF = "v_mfma_f32_16x16x32_bf16"

def pf_addr_w1(k, vt, vout, slam, sx, rot=0, st=None):
    if rot:
        k(f"""
        s_add_u32 s{st}, s{slam}, {rot * 64}
        s_sub_u32 s{st+1}, s{st}, {288 * 64}
        s_min_u32 s{st}, s{st}, s{st+1}
        """)
        slam = st
    k(f"""
    v_add_u32 v{vt}, s{slam}, v1
    v_mul_hi_u32 v{vt+1}, v{vt}, s98
    v_mul_u32_u24 v{vt+1}, s99, v{vt+1}
    v_lshl_add_u32 v{vout}, v{vt}, 7, v{vt+1}
    """)
def helper_wave(k, what, plan, aux="", wgx="s_and_b32 s33, s2, 7", wgi="s_lshr_b32 s34, s2, 3", nwg=32, m0=0):
    off = {"w1": 32, "w2": 48}[what]
    k(f"""
    s_load_dwordx2 s[4:5], s[0:1], {off}
    v_and_b32 v1, 63, v0
    {wgx}
    {wgi}
    s_mov_b32 s98, {(1 << 32) // 9 + 1}
    s_movk_i32 s99, {9216 - 9 * 128}
    s_lshl_b32 s34, s34, 6
    s_mul_i32 s33, s33, {1152 if what == "w1" else 512}
    s_add_u32 s34, s34, {m0 * nwg * 64}
    v_lshrrev_b32 v2, 2, v1
    v_and_b32 v3, 3, v1
    v_lshlrev_b32 v3, 7, v3
    v_lshl_add_u32 v3, v2, 12, v3
    s_waitcnt lgkmcnt(0)
    """)
    srd(k, 12, 4, 5, 2048 * 9216)
    if what == "w2": k("s_lshl_b32 s34, s34, 10\ns_add_u32 s33, s33, s34")
    n = 0
    for i, c in enumerate(plan):
        for _ in range(c):
            if what == "w1":
                pf_addr_w1(k, 4, 6 + n % 2, 34, 33)
                k(f"buffer_load_dword v8, v{6 + n % 2}, s[12:15], s33 offen {aux}\ns_add_u32 s34, s34, {nwg*64}")
            else:
                k(f"buffer_load_dword v8, v3, s[12:15], s33 offen {aux}\ns_add_u32 s33, s33, {nwg * 65536}")
            n += 1
        if any(plan[i + 1:]): k("s_barrier")
    k("s_endpgm")

def helper_k1(k, plan, aux="", m0=0):
    k(f"""
    s_load_dwordx4 s[4:7], s[0:1], 0
    s_load_dwordx2 s[8:9], s[0:1], 32
    s_load_dwordx2 s[10:11], s[0:1], 80
    v_and_b32 v1, 63, v0
    """)
    plan = list(plan)
    while plan[0][:1] in ("C", "K"):
        if plan[0][0] == "C": code_pf(k, k.name, "Lcode_end", 16, 8, 44)
        else: code_pf(k, k.name, "k2_kernel", 16, 8, 44)
        plan[0] = plan[0][1:]
    k(f"""
    s_and_b32 s33, s2, 7
    s_lshr_b32 s34, s2, 3
    s_mov_b32 s98, {(1 << 32) // 9 + 1}
    s_movk_i32 s99, {9216 - 9 * 128}
    s_mul_i32 s35, s34, {54 * 128}
    v_lshlrev_b32 v2, 7, v1
    v_add_u32 v2, s35, v2
    s_lshl_b32 s36, s33, 8
    s_lshl_b32 s37, s34, 3
    s_add_u32 s36, s36, s37
    s_sub_u32 s36, s36, 54
    v_add_u32 v3, s36, v1
    s_movk_i32 s37, 1152
    v_mul_lo_u32 v3, v3, s37
    v_cmp_gt_u32 vcc, 54, v1
    v_mov_b32 v10, 128
    v_mov_b32 v11, {64 * 3456}
    v_cndmask_b32 v2, v3, v2, vcc
    v_cndmask_b32 v10, v10, v11, vcc           ; step
    s_lshl_b32 s34, s34, 6
    s_add_u32 s34, s34, {m0 * 2048}
    s_mul_i32 s33, s33, 1152
    s_waitcnt lgkmcnt(0)
    v_mov_b32 v12, s4
    v_mov_b32 v13, s5
    v_mov_b32 v14, s6
    v_mov_b32 v15, s7
    v_cndmask_b32 v12, v12, v14, vcc
    v_cndmask_b32 v13, v13, v15, vcc
    v_mov_b32 v3, 0
    v_mov_b32 v11, 0
    v_lshl_add_u64 v[12:13], v[2:3], 0, v[12:13]
    s_mov_b32 s40, -1
    s_mov_b32 s41, 0x3fffffff
    """)
    srd(k, 12, 8, 9, 2048 * 9216)
    nz = 0
    if any("z" in c for c in plan):
        from layout import XQ_OFF, XQ_SZ
        srd(k, 16, 10, 11, XQ_SZ, XQ_OFF)
        k(f"""
        s_mul_i32 s38, s2, {27 * 1024}
        v_lshlrev_b32 v20, 4, v1
        v_mov_b32 v24, -1
        v_mov_b32 v25, -1
        v_mov_b32 v26, -1
        v_mov_b32 v27, -1
        """)
    n = 0; ns = 0
    for i, c in enumerate(plan):
        for ch in c:
            if ch == "s":
                k(f"""
                s_mov_b64 exec, s[40:41]
                global_load_dword v8, v[12:13], off
                v_lshl_add_u64 v[12:13], v[10:11], 0, v[12:13]
                s_mov_b64 exec, -1
                """)
                ns += 1
            elif ch == "z":
                for q in range(3): k(f"buffer_store_dwordx4 v[24:27], v20, s[16:19], s38 offen offset:{q * 1024} sc1")
                k("s_add_u32 s38, s38, 3072"); nz += 1
            elif ch == "c": code_pf(k, k.name, "Lcode_end", 16, 8, 44)
            elif ch == "d": code_pf(k, "k2_kernel", "k3_kernel", 16, 8, 44)
            elif ch == "w":
                pf_addr_w1(k, 4, 6 + n % 2, 34, 33)
                k(f"buffer_load_dword v8, v{6 + n % 2}, s[12:15], s33 offen {aux}\ns_add_u32 s34, s34, {32*64}")
                n += 1
            else: k(f"s_waitcnt vmcnt({ch})")
        if any(plan[i + 1:]): k("s_barrier")
    assert ns <= 9 and n + m0 <= 9 and nz in (0, 9)
    k("s_endpgm")

def code_pf(k, first, last, vt, vd, st, vlane=1, emit=None, n=32, wave=None):
    H = k.label("pc")
    k(f"""
    s_getpc_b64 s[{st}:{st+1}]
    {H}:
    s_add_u32 s{st}, s{st}, {first}-{H}
    s_addc_u32 s{st+1}, s{st+1}, {"-1" if first == k.name else "0"}
    s_lshr_b32 s{st+2}, s2, 3
    """)
    if wave is not None: k(f"s_lshl_b32 s{st+2}, s{st+2}, 2\ns_add_u32 s{st+2}, s{st+2}, s{wave}")
    k(f"""
    s_movk_i32 s{st+3}, {n * (4 if wave is not None else 1)}
    v_mov_b32 v{vt+2}, s{st+2}
    v_mad_u32_u24 v{vt+2}, v{vlane}, s{st+3}, v{vt+2}
    v_lshlrev_b32 v{vt+2}, 7, v{vt+2}
    v_cmp_gt_u32 vcc, {last}-{first}, v{vt+2}
    v_mov_b32 v{vt+3}, 0
    v_mov_b32 v{vt}, s{st}
    v_mov_b32 v{vt+1}, s{st+1}
    v_lshl_add_u64 v[{vt}:{vt+1}], v[{vt+2}:{vt+3}], 0, v[{vt}:{vt+1}]
    s_and_saveexec_b64 s[{st+2}:{st+3}], vcc
    """)
    ins = f"global_load_dword v{vd}, v[{vt}:{vt+1}], off"
    if emit: emit(ins)
    else: k(ins)
    k(f"s_mov_b64 exec, s[{st+2}:{st+3}]")

SLOWRES = 3
def res3_w1(k, sp, sd, vo, st, vt):
    k(f"""
    s_and_b32 s{st}, s{sd}, 1
    s_mul_i32 s{st+1}, s{sd}, 9
    s_sub_u32 s{st+1}, s{st+1}, s{st}
    s_lshr_b32 s{st+2}, s{sp}, 7
    s_add_u32 s{st+2}, s{st+2}, s{st+1}
    s_sub_u32 s{st+2}, {SLOWRES}, s{st+2}
    s_and_b32 s{st+2}, s{st+2}, 7
    s_cmp_eq_u32 s{st}, 0
    s_cselect_b32 s{st}, 9, 0
    s_add_u32 s{st+3}, s{st+2}, 8
    s_cmp_lt_u32 s{st+2}, 2
    s_cselect_b32 s{st}, s{st+3}, s{st}
    s_add_u32 s{st}, s{st}, s{st+1}
    s_add_u32 s{st+2}, s{st+2}, s{st+1}
    s_sub_u32 s{st}, s{st}, s{st+2}
    s_lshl_b32 s{st}, s{st}, 7
    s_lshl_b32 s{st+2}, s{st+2}, 7
    s_movk_i32 s{st+3}, 9216
    v_lshrrev_b32 v{vt}, 1, v1
    v_and_b32 v{vt+1}, 1, v1
    v_mul_u32_u24 v{vt}, s{st+3}, v{vt}
    v_mul_lo_u32 v{vt+1}, v{vt+1}, s{st}
    v_add3_u32 v{vo}, v{vt}, v{vt+1}, s{st+2}
    """)

def w1x_setup(k, sd, so):
    k(f"""
    s_mov_b32 s98, {(1 << 32) // 10 + 1}
    s_movk_i32 s99, {9216 - 10 * 128}
    s_and_b32 s97, s{sd}, 1
    s_mul_i32 s{so}, s{sd}, 9
    s_sub_u32 s{so}, s{so}, s97
    s_lshl_b32 s{so}, s{so}, 7
    """)
def w2_setup(k, sd, so, vo, vt, lin=False):
    if lin:
        k(f"""
        v_lshlrev_b32 v{vo}, 7, v1
        s_lshr_b32 s97, s{sd}, 1
        s_mul_i32 s97, s97, {1152 * 4096}
        s_and_b32 s{so}, s{sd}, 1
        s_lshl_b32 s{so}, s{so}, 13
        s_add_u32 s{so}, s{so}, s97
        """)
        return
    k(f"""
    v_lshrrev_b32 v{vt}, 4, v1
    v_and_b32 v{vo}, 15, v1
    v_lshlrev_b32 v{vo}, 7, v{vo}
    v_lshl_add_u32 v{vo}, v{vt}, 12, v{vo}
    s_lshr_b32 s97, s{sd}, 1
    s_mul_i32 s97, s97, {1152 * 4096}
    s_and_b32 s{so}, s{sd}, 1
    s_lshl_b32 s{so}, s{so}, 11
    s_add_u32 s{so}, s{so}, s97
    """)
```

```python
from asmlib import *
from layout import *

def gen_k1(name="k1_kernel", kidx=0, stamps=False, aux_o="sc1", L=4, dbg="", nb=2, nw1=224, pfd=2, lw=0, call=True, cd=True,
           sdep=63, lwpos=8, fpos=4, w0=0, k2n=False, xca=False, rot=0, pw2=False):
    NS = 9; NB = 4; WS = 18432
    k = K(name, vgpr=240)
    END = k.label("end"); SPARE = k.label("spare"); COMP = k.label("comp")
    XB = NB * WS; CS = XB + NB * 16384
    k(f"""
    s_cmp_ge_u32 s2, 256
    s_cbranch_scc1 {END}
    s_load_dwordx4 s[4:7], s[0:1], 0           ; x, wqkv
    s_load_dwordx4 s[28:31], s[0:1], 72
    v_readfirstlane_b32 s3, v0
    v_and_b32 v1, 63, v0                       ; lane
    s_and_b32 s33, s2, 7                       ; die
    s_lshr_b32 s34, s2, 3
    s_lshr_b32 s3, s3, 6                       ; wave
    s_and_b32 s32, s33, 1
    s_cmp_lt_u32 s34, 8
    s_cbranch_scc1 {SPARE}
    s_sub_u32 s34, s34, 8                      ; j
    s_lshr_b32 s35, s34, 2
    s_and_b32 s36, s34, 3
    s_lshr_b32 s37, s33, 1
    s_lshl_b32 s37, s37, 2
    s_add_u32 s36, s36, s37
    s_cmp_lt_u32 s3, 4
    s_cbranch_scc1 {COMP}
    """)
    def selfpf(q, vd=8):
        LX = k.label("sx"); LN = k.label("sn")
        k(f"""
        s_mul_i32 s50, s{q}, 2850
        s_lshr_b32 s50, s50, 16                    ; stage
        s_mul_i32 s51, s50, 23
        s_sub_u32 s51, s{q}, s51                   ; r
        s_cmp_ge_u32 s51, 15
        s_cbranch_scc1 {LX}
        s_lshl_b32 s51, s51, 6
        s_movk_i32 s52, 4370
        v_add_u32 v40, s51, v1
        v_mul_u32_u24 v41, s52, v40
        s_movk_i32 s52, {3456 - 15 * 128}
        v_lshrrev_b32 v41, 16, v41                 ; row
        v_mul_u32_u24 v42, 15, v41
        v_mul_u32_u24 v41, s52, v41
        v_sub_u32 v42, v40, v42                    ; line in row
        v_mul_u32_u24 v42, 52, v42
        v_lshl_add_u32 v40, v40, 7, v41
        v_lshrrev_b32 v42, 8, v42                  ; section
        s_mul_i32 s50, s50, {64 * 3456}
        s_lshl_b32 s52, s32, 9
        v_lshl_add_u32 v40, v42, 9, v40
        s_add_u32 s50, s50, s52
        buffer_load_dword v{vd}, v40, s[16:19], s50 offen
        s_branch {LN}
        {LX}:
        s_lshr_b32 s52, s33, 1
        s_lshl_b32 s52, s52, 3
        s_add_u32 s51, s51, s52
        s_sub_u32 s51, s51, 15
        s_mul_i32 s51, s51, {64 * 1152}
        s_lshl_b32 s50, s50, 7
        s_add_u32 s50, s50, s51
        buffer_load_dword v{vd}, v43, s[12:15], s50 offen
        {LN}:
        """)
    VX = 2; VW = 10
    lwa, lwb = lw if isinstance(lw, tuple) else (lw, lw)
    lw = max(lwa, lwb)
    nsp = nw1 - 16 * lwa - 8 * lwb
    if lw: k(f"""
    s_load_dwordx2 s[10:11], s[0:1], {48 if pw2 else 32}
    s_mul_i32 s48, s34, {lwa}
    s_mul_i32 s49, s34, {lwb}
    s_add_u32 s49, s49, {(16 * (lwa - lwb)) & 0xffffffff}
    s_cmp_lt_u32 s35, 4
    s_cselect_b32 s48, s48, s49
    s_cselect_b32 s54, {lwa}, {lwb}
    s_add_u32 s48, s48, {nsp}
    """)
    k(f"""
    v_lshrrev_b32 v20, 4, v1                   ; g
    v_lshrrev_b32 v21, 3, v1
    s_movk_i32 s38, 1152
    v_mul_u32_u24 v21, s38, v21
    v_mul_u32_u24 v43, s38, v1
    v_and_b32 v22, 7, v1
    v_xor_b32 v22, v22, v20
    v_xor_b32 v23, 4, v22
    v_lshl_add_u32 v{VX}, v22, 4, v21
    v_lshl_add_u32 v{VX+1}, v23, 4, v21
    v_add_u32 v{VX+2}, {2*(8*1152-1024)}, v{VX}
    v_add_u32 v{VX+1}, {8*1152-1024}, v{VX+1}
    v_add_u32 v{VX+3}, {2*(8*1152-1024)}, v{VX+1}
    s_mul_i32 s40, s36, {128*1152}
    s_add_u32 s41, s40, {32*1152}
    s_add_u32 s42, s40, {64*1152}
    s_add_u32 s43, s40, {96*1152}
    s_lshl_b32 s38, s32, 2
    s_add_u32 s38, s38, s35
    s_mul_i32 s38, s38, 144
    s_add_u32 s38, s38, 1152
    s_lshl_b32 s39, s32, 1
    s_add_u32 s39, s39, s35
    s_sub_u32 s39, s39, 4
    s_mul_i32 s39, s39, 288
    s_cmp_lt_u32 s35, 4
    s_cselect_b32 s44, s38, s39
    s_cselect_b32 s45, {1152 - 144}, 0
    s_movk_i32 s46, 3641
    s_movk_i32 s47, 3456
    v_mov_b32 v24, s45
    s_lshl_b32 s38, s32, 5
    s_add_u32 s38, s38, s35
    s_lshl_b32 s53, s38, 2
    v_mov_b32 v34, s53
    s_waitcnt lgkmcnt(0)
    """)
    srd(k, 12, 4, 5, 2048 * 1152)
    srd(k, 16, 6, 7, 576 * 3456)
    lb = SB(k)
    for i in range(nb):
        if i: k("s_add_u32 s34, s34, 24")
        selfpf(34); lb.q["vmcnt"].append("pf")
    def waddr(p):
        return f"""
        v_add_u32 v25, {64*p}, v1
        v_mul_u32_u24 v26, s46, v25
        v_lshrrev_b32 v26, 16, v26
        v_mul_u32_u24 v27, 18, v26
        v_lshrrev_b32 v28, 1, v26
        v_sub_u32 v27, v25, v27                    ; chunk
        v_xor_b32 v28, v28, v26
        v_cmp_lt_u32 vcc, 8, v27
        v_and_b32 v28, 4, v28
        v_lshlrev_b32 v27, 4, v27
        v_mul_u32_u24 v28, 3, v28
        v_cndmask_b32 v29, 0, v24, vcc
        v_xor_b32 v26, v26, v28
        v_mad_u32_u24 v27, v26, s47, v27
        v_add3_u32 v{VW+p}, v27, v29, {-(p % 4) * 1024 if p % 4 else 0}
        """ if p % 4 == 0 else f"""
        v_add_u32 v25, {64*p}, v1
        v_mul_u32_u24 v26, s46, v25
        v_lshrrev_b32 v26, 16, v26
        v_mul_u32_u24 v27, 18, v26
        v_lshrrev_b32 v28, 1, v26
        v_sub_u32 v27, v25, v27
        v_xor_b32 v28, v28, v26
        v_cmp_lt_u32 vcc, 8, v27
        v_and_b32 v28, 4, v28
        v_lshlrev_b32 v27, 4, v27
        v_mul_u32_u24 v28, 3, v28
        v_cndmask_b32 v29, 0, v24, vcc
        v_xor_b32 v26, v26, v28
        v_mad_u32_u24 v27, v26, s47, v27
        v_add_u32 v27, v27, v29
        v_subrev_u32 v{VW+p}, {(p % 4) * 1024}, v27
        """
    def xp(n):
        out = []
        for w in range(4):
            for q in range(4):
                g = []
                if q == 0: g += [f"s_mov_b32 m0, {XB + (n % NB) * 16384 + w * 4096}", "s_nop 0"]
                g.append(("vm", f"buffer_load_dwordx4 v{VX+q}, s[12:15], s{40+w} offen offset:{q*1024} lds"))
                if q == 3: g.append(f"s_add_u32 s{40+w}, s{40+w}, 128")
                out.append(g)
        return out
    def wp(n):
        out = []
        for hk in range(2):
            for p in range(9):
                g = []
                if p % 4 == 0: g += [f"s_mov_b32 m0, {(n % NB) * WS + hk * 9216 + p * 1024}", "s_nop 0"]
                g.append(("vm", f"buffer_load_dwordx4 v{VW+p}, s[16:19], s44 offen offset:{(p%4)*1024} lds"))
                if p == 8: g.append(f"s_add_u32 s44, s44, {32*3456}")
                out.append(g)
        return out
    def emit(s_, g, tag):
        for x in g:
            if isinstance(x, tuple): s_.vm(x[1], tag)
            else: k(x)
    for i, g in enumerate(xp(0)):
        emit(lb, g, 0)
        if i < 9: k(waddr(i))
    for g in wp(0): emit(lb, g, 0)
    for n in range(NS):
        if n + 1 < NS and n == 0:
            for g in wp(1) + xp(1): emit(lb, g, 1)
        lb.needvm(n)
        k("s_barrier")
        if n == fpos: k("s_load_dword s39, s[28:29], s53")
        if n + 2 < NS:
            for g in wp(n + 2) + xp(n + 2): emit(lb, g, n + 2)
        if lw and n == lwpos:
            srd(k, 20, 10, 11, 2048 * 9216)
            if pw2:
                w2_setup(k, 33, 49, 32, 30, pw2 == 2)
                k("s_lshl_b32 s48, s48, 14\ns_add_u32 s48, s48, s49")
            else: k(f"""
            s_mov_b32 s98, {(1 << 32) // 9 + 1}
            s_movk_i32 s99, {9216 - 9 * 128}
            s_mul_i32 s49, s33, 1152
            s_lshl_b32 s48, s48, 6
            """)
            LE = k.label("lwe")
            assert lwa == lwb or lwpos == NS - 1
            for i in range(lw):
                if i >= min(lwa, lwb): k(f"s_cmp_le_u32 s54, {i}\ns_cbranch_scc1 {LE}")
                if pw2:
                    lb.vm(f"buffer_load_dword v8, v32, s[20:23], s48 offen", "w1")
                    k(f"s_add_u32 s48, s48, 16384")
                    continue
                pf_addr_w1(k, 30, 32 + i % 2, 48, 49, rot, 56)
                lb.vm(f"buffer_load_dword v8, v{32 + i % 2}, s[20:23], s49 offen", "w1")
                k(f"s_add_u32 s48, s48, 64")
            k(f"{LE}:")
    LS = k.label("spin"); LG = k.label("go")
    k(f"""
    s_barrier
    s_cmp_ge_u32 s35, 4
    s_cbranch_scc1 {END}
    s_waitcnt lgkmcnt(0)
    s_mov_b32 s38, 0
    s_cmp_lg_u32 s39, 0
    s_cbranch_scc1 {LG}
    {LS}:
    global_load_dword v35, v34, s[28:29] sc1
    s_add_u32 s38, s38, 1
    s_waitcnt vmcnt(0)
    v_readfirstlane_b32 s39, v35
    s_cmp_ge_u32 s38, 0x40000
    s_cbranch_scc1 {LG}
    s_cmp_eq_u32 s39, 0
    s_cbranch_scc1 {LS}
    {LG}:
    s_barrier
    """)
    k("s_endpgm")
    k(f"{SPARE}:")
    if stamps: stamp_begin(k)
    k(f"""
    s_load_dwordx2 s[8:9], s[0:1], 16          ; wo
    s_load_dwordx2 s[10:11], s[0:1], {48 if pw2 else 32}        ; w1 or w2
    """)
    L1 = k.label("nc")
    k(f"s_cmp_lg_u32 s3, 4\ns_cbranch_scc1 {L1}")
    code_pf(k, k.name, "Lcode_end" if call else "k2_kernel", 16, 8, 44, n=8)
    k(f"""
    {L1}:
    s_movk_i32 s38, 1152
    v_mul_u32_u24 v43, s38, v1
    v_lshlrev_b32 v9, 4, v1
    s_mul_i32 s39, s34, 5
    s_add_u32 s39, s39, s3
    s_add_u32 s40, s39, {24 * nb}
    s_waitcnt lgkmcnt(0)
    """)
    srd(k, 12, 4, 5, 2048 * 1152)
    srd(k, 16, 6, 7, 576 * 3456)
    srd(k, 24, 30, 31, (XCA_OFF + XCA_SZ if xca else FLG_OFF + FLG_SZ) - KVT_OFF, KVT_OFF)
    LZ = k.label("noz"); LC = k.label("noclr")
    k(f"""
    s_lshl_b32 s41, s34, 3
    s_add_u32 s41, s41, s3
    s_cmp_lg_u32 s41, 60
    s_cbranch_scc1 {LZ}
    s_mul_i32 s42, s33, 6080
    v_mov_b32 v12, 0
    v_mov_b32 v13, 0
    v_mov_b32 v14, 0
    v_mov_b32 v15, 0
    s_add_u32 s43, s42, 4096
    """)
    for q in range(4): k(f"buffer_store_dwordx4 v[12:15], v9, s[24:27], s42 offen offset:{q*1024} sc1")
    k(f"""
    buffer_store_dwordx4 v[12:15], v9, s[24:27], s43 offen sc1
    s_mov_b32 exec_hi, 0x0fffffff
    buffer_store_dwordx4 v[12:15], v9, s[24:27], s43 offen offset:1024 sc1
    s_mov_b32 exec_hi, -1
    s_lshr_b32 s38, s33, 2
    s_mul_i32 s38, s38, 28
    s_add_u32 s38, s38, s33
    s_lshl_b32 s38, s38, 2
    v_mov_b32 v16, s38
    v_mov_b32 v17, 1
    s_waitcnt vmcnt(0)
    global_store_dword v16, v17, s[28:29] sc1
    {LZ}:
    s_cmp_lg_u32 s3, 3
    s_cbranch_scc1 {LC}
    v_mov_b32 v12, -1
    v_mov_b32 v13, -1
    v_mov_b32 v14, -1
    v_mov_b32 v15, -1
    s_mul_i32 s42, s2, {3072 if k2n else 1024}
    s_add_u32 s42, s42, {XCH_OFF - KVT_OFF}
    s_lshl_b32 s43, s2, 9
    s_add_u32 s43, s43, {FLG_OFF - KVT_OFF}
    buffer_store_dwordx4 v[12:15], v9, s[24:27], s42 offen {aux_o}
    {f"buffer_store_dwordx4 v[12:15], v9, s[24:27], s42 offen offset:1024 {aux_o}" if k2n else ""}
    {f"buffer_store_dwordx4 v[12:15], v9, s[24:27], s42 offen offset:2048 {aux_o}" if k2n else ""}
    {f"s_add_u32 s42, s42, {XCA_OFF - XCH_OFF}" if xca else ""}
    {f"buffer_store_dwordx4 v[12:15], v9, s[24:27], s42 offen {aux_o}" if xca else ""}
    {f"buffer_store_dwordx4 v[12:15], v9, s[24:27], s42 offen offset:1024 {aux_o}" if xca else ""}
    {f"buffer_store_dwordx4 v[12:15], v9, s[24:27], s42 offen offset:2048 {aux_o}" if xca else ""}
    s_mov_b32 exec_hi, 0
    buffer_store_dwordx4 v[12:15], v9, s[24:27], s43 offen {aux_o}
    s_mov_b32 exec_hi, -1
    {LC}:
    """)
    LP = k.label("sp"); LQ = k.label("spd")
    k(f"s_cmp_ge_u32 s40, 207\ns_cbranch_scc1 {LQ}\n{LP}:")
    selfpf(40)
    k(f"""
    s_add_u32 s40, s40, 40
    s_waitcnt vmcnt({sdep})
    s_cmp_lt_u32 s40, 207
    s_cbranch_scc1 {LP}
    {LQ}:
    """)
    if stamps: stamp_mid(k, 0)
    LT = k.label("notask"); LT3 = k.label("left")
    T = 20; AC = 44
    srd(k, 20, 8, 9, 576 * 1152)
    k(f"""
    s_mul_i32 s45, s2, 3
    s_add_u32 s45, s45, s3
    s_cmp_lt_u32 s3, 3
    s_cselect_b32 s45, s45, 255
    s_cmp_ge_u32 s45, 180
    s_cbranch_scc1 {LT}
    s_mul_i32 s46, s45, 57
    s_lshr_b32 s46, s46, 9
    s_mul_i32 s47, s46, 9
    s_sub_u32 s47, s45, s47                    ; cq
    s_mul_i32 s48, s46, 52
    s_lshr_b32 s48, s48, 8                     ; w' = wt / 5
    s_mul_i32 s49, s48, 5
    s_sub_u32 s49, s46, s49                    ; t
    v_lshrrev_b32 v{T+4}, 3, v1                ; b = l>>3
    v_lshrrev_b32 v{T+5}, 1, v{T+4}
    v_mul_u32_u24 v{T+5}, 18, v{T+5}
    v_and_b32 v{T+6}, 1, v{T+4}
    v_add3_u32 v{T+5}, v{T+5}, v{T+6}, 16
    s_mov_b32 s54, {8*1152-1024}
    s_mov_b32 s55, {18*1152-2048}
    s_mov_b32 s56, {26*1152-3072}
    s_cmp_eq_u32 s49, 4
    s_cselect_b64 vcc, -1, 0
    s_cmov_b32 s54, {72*1152-1024}
    s_cselect_b32 s57, 0, s49
    v_cndmask_b32 v{T+4}, v{T+4}, v{T+5}, vcc
    s_movk_i32 s58, 1152
    v_mul_u32_u24 v{T+4}, s58, v{T+4}
    v_and_b32 v{T+5}, 7, v1
    v_lshl_add_u32 v{T+4}, v{T+5}, 4, v{T+4}
    s_mul_i32 s58, s48, 144
    s_mul_i32 s57, s57, 36
    s_add_u32 s58, s58, s57
    s_mul_i32 s58, s58, 1152
    s_lshl_b32 s57, s47, 7
    s_add_u32 s58, s58, s57
    s_add_u32 s54, s54, s58
    s_add_u32 s55, s55, s58
    s_add_u32 s56, s56, s58
    s_lshl_b32 s59, s3, 12
    s_mov_b32 m0, s59
    v_bfe_u32 v{T+2}, v1, 2, 4
    buffer_load_dwordx4 v{T+4}, s[20:23], s58 offen offset:0 lds
    buffer_load_dwordx4 v{T+4}, s[20:23], s54 offen offset:1024 lds
    buffer_load_dwordx4 v{T+4}, s[20:23], s55 offen offset:2048 lds
    buffer_load_dwordx4 v{T+4}, s[20:23], s56 offen offset:3072 lds
    v_and_b32 v{T+3}, 3, v1
    v_lshlrev_b32 v{T+3}, 3, v{T+3}
    v_lshl_add_u32 v{T+2}, v{T+2}, 7, v{T+3}
    v_add_u32 v{T+2}, s59, v{T+2}
    """)
    if k2n:
        k(f"""
        s_lshl_b32 s53, s48, 2
        s_add_u32 s53, s53, s49
        s_mul_i32 s53, s53, 3072                   ; k-step 4 w' + t
        s_lshr_b32 s54, s48, 1
        s_add_u32 s54, s54, 16
        s_mul_i32 s54, s54, 3072
        s_and_b32 s38, s48, 1
        s_lshl_b32 s38, s38, 3
        s_add_u32 s54, s54, s38
        s_cmp_eq_u32 s49, 4
        s_cselect_b32 s53, s54, s53
        s_add_u32 s53, s53, {WOF_OFF - KVT_OFF}
        """)
        for cc in range(4):
            k(f"""
            s_lshl_b32 s38, s47, 2
            s_add_u32 s38, s38, {cc}                   ; CB
            s_mul_i32 s54, s38, 43
            s_lshr_b32 s54, s54, 7                     ; CB / 3
            s_mul_i32 s54, s54, 51
            s_add_u32 s38, s38, s54
            s_lshl_b32 s38, s38, 10
            s_add_u32 s{64+cc}, s38, s53
            """)
    for cc in range(0 if k2n else 4):
        k(f"""
        s_lshl_b32 s38, s47, 2
        s_add_u32 s38, s38, {cc}                   ; CB
        s_mul_i32 s53, s38, 57
        s_lshr_b32 s53, s53, 9                     ; ct
        s_mul_i32 s54, s53, 9
        s_sub_u32 s38, s38, s54                    ; cb
        s_lshl_b32 s53, s53, 2
        s_add_u32 s53, s53, s48
        s_mul_i32 s53, s53, 41
        s_mul_i32 s54, s49, 9
        s_add_u32 s53, s53, s54
        s_add_u32 s54, s53, s38
        s_lshl_b32 s{64+cc}, s54, 10
        s_lshr_b32 s54, s38, 1
        s_add_u32 s54, s54, s53
        s_lshl_b32 s54, s54, 10
        s_and_b32 s38, s38, 1
        s_lshl_b32 s38, s38, 3
        s_add_u32 s54, s54, s38
        s_cmp_eq_u32 s49, 4
        s_cselect_b32 s{64+cc}, s54, s{64+cc}
        s_add_u32 s{64+cc}, s{64+cc}, {WOF_OFF - KVT_OFF}
        """)
    k("s_waitcnt vmcnt(0)")
    for cc in range(4):
        for u in range(2):
            k(f"ds_read_b64_tr_b16 {v(AC+4*cc+2*u,2)}, v{T+2} offset:{cc*32 + u*2048}")
    k(f"s_waitcnt lgkmcnt(0)\ns_cmp_eq_u32 s49, 4\ns_cbranch_scc1 {LT3}")
    for cc in range(4): k(f"buffer_store_dwordx4 {v(AC+4*cc,4)}, v9, s[24:27], s{64+cc} offen {aux_o}".rstrip())
    k(f"s_branch {LT}\n{LT3}:")
    for cc in range(4): k(f"buffer_store_dwordx2 {v(AC+4*cc,2)}, v9, s[24:27], s{64+cc} offen {aux_o}".rstrip())
    k(f"{LT}:")
    if stamps: stamp_mid(k, 1)
    if nsp and pw2:
        LW = k.label("w2")
        srd(k, 12, 10, 11, 2048 * 9216)
        w2_setup(k, 33, 42, 6, 4, pw2 == 2)
        k(f"""
        s_lshl_b32 s38, s39, 14
        s_add_u32 s42, s42, s38
        {LW}:
        buffer_load_dword v8, v6, s[12:15], s42 offen
        s_add_u32 s39, s39, 40
        s_add_u32 s42, s42, {40 * 16384}
        s_waitcnt vmcnt({pfd - 1})
        s_cmp_lt_u32 s39, {nsp}
        s_cbranch_scc1 {LW}
        """)
    elif nsp:
        LW = k.label("w1"); LV = k.label("w1d")
        srd(k, 12, 10, 11, 2048 * 9216)
        k(f"""
        s_mov_b32 s98, {(1 << 32) // 9 + 1}
        s_movk_i32 s99, {9216 - 9 * 128}
        s_mul_i32 s42, s33, 1152
        {f"s_add_u32 s39, s39, {w0}" if w0 else ""}
        s_lshl_b32 s39, s39, 6
        {LW}:
        """)
        pf_addr_w1(k, 4, 6, 39, 42, rot, 56)
        k(f"""
        buffer_load_dword v8, v6, s[12:15], s42 offen
        s_add_u32 s39, s39, {40 * 64}
        s_waitcnt vmcnt({pfd - 1})
        s_cmp_lt_u32 s39, {nsp * 64}
        s_cbranch_scc1 {LW}
        """)
    if cd:
        L2 = k.label("nd")
        k(f"s_cmp_lg_u32 s3, 4\ns_cbranch_scc1 {L2}")
        code_pf(k, "k2_kernel", "k3_kernel", 16, 8, 44, n=8)
        k(f"{L2}:")
    if stamps: stamp_end(k, kidx)
    k("s_endpgm")
    k(f"{COMP}:")
    if stamps: stamp_begin(k)
    sb = SB(k)
    VA = 2; VB = 4; VCS = 6; VBP = 7; VF = 8; VEPS = 10; VP = 12; GA = 16; GO = 22; ONE = 28
    ACC = 32
    def acc(j, rb): return ACC + (j * 2 + rb) * 4
    AQ = 104; AS = 112; AC = 120; AF = 156
    def af(h, rb): return AF + (h * 2 + rb) * 4
    BF = 172; RB = 6
    def bf(t): return BF + 4 * (t % RB)
    T = 196
    k(f"""
    v_lshrrev_b32 v{T}, 4, v1                  ; g
    v_and_b32 v{T+1}, 15, v1                   ; i
    s_and_b32 s37, s3, 1                       ; parity
    v_lshrrev_b32 v{T+2}, 1, v{T+1}
    v_xor_b32 v{T+2}, v{T+2}, v{T}
    s_lshl_b32 s38, s37, 2
    v_xor_b32 v{T+2}, s38, v{T+2}
    v_lshlrev_b32 v{T+2}, 4, v{T+2}
    v_lshl_add_u32 v{T+2}, v{T+1}, 7, v{T+2}
    s_lshl_b32 s38, s3, 12
    s_add_u32 s38, s38, {XB}
    v_add_u32 v{VA}, s38, v{T+2}
    v_xor_b32 v{VA+1}, 64, v{VA}
    v_bfe_u32 v{T+2}, v1, 2, 3
    v_lshrrev_b32 v{T+3}, 5, v1
    v_lshl_add_u32 v{T+3}, v{T+3}, 4, v{T+2}
    s_movk_i32 s38, 288
    v_mul_u32_u24 v{T+3}, s38, v{T+3}
    v_and_b32 v{T+4}, 3, v1
    v_lshl_add_u32 v{T+3}, v{T+4}, 3, v{T+3}
    s_mul_i32 s38, s37, 9216
    s_sub_u32 s39, 9216, s38
    v_add_u32 v{VB}, s38, v{T+3}
    v_add_u32 v{VB+1}, s39, v{T+3}
    v_mov_b32 v{ONE}, 0x3f803f80
    v_mov_b32 v{ONE+1}, 0x3f803f80
    v_mov_b32 v{ONE+2}, 0x3f803f80
    v_mov_b32 v{ONE+3}, 0x3f803f80
    s_lshl_b32 s38, s3, 10
    s_add_u32 s38, s38, {CS}
    v_lshl_add_u32 v{VCS}, v{T+1}, 2, s38
    v_and_b32 v{T+2}, 48, v1
    v_lshl_add_u32 v{T+2}, v{T}, 2, v{T+2}
    v_lshlrev_b32 v{VBP}, 2, v{T+2}
    s_lshl_b32 s40, s32, 2
    s_add_u32 s40, s40, s35
    v_cmp_gt_u32 s[60:61], 8, v{T+1}
    v_mov_b32 v{T+5}, {fbits(1e-6)}
    s_lshl_b32 s41, s40, 2
    s_add_u32 s41, s41, s3
    v_cndmask_b32 v{VEPS}, 0, v{T+5}, s[60:61]
    s_mul_i32 s41, s41, 1520
    s_lshl_b32 s38, s36, 2
    s_add_u32 s38, s38, s3
    s_mul_i32 s38, s38, 576
    s_lshl_b32 s39, s32, 1
    s_add_u32 s39, s39, s35
    s_sub_u32 s39, s39, 4
    s_mul_i32 s39, s39, 144
    s_add_u32 s38, s38, s39
    s_lshl_b32 s42, s38, 6
    s_add_u32 s43, s42, 4096
    s_add_u32 s44, s42, 8192
    v_lshlrev_b32 v{T+2}, 6, v{T+1}
    v_lshl_add_u32 v{VP}, v{T}, 4, v{T+2}      ; pq: i*64 + g*16
    v_lshlrev_b32 v{T+2}, 4, v1
    s_mul_i32 s38, s3, 9216
    v_add_u32 v{VP+1}, s38, v{T+2}
    s_lshl_b32 s38, s3, 10
    v_add_u32 v{VP+2}, s38, v{T+2}             ;                    read
    s_lshl_b32 s45, s3, 13
    s_add_u32 s45, s45, {XB}
    s_movk_i32 s38, 144
    v_mul_u32_u24 v{T+2}, s38, v{T+1}
    v_lshl_add_u32 v{T+2}, v{T}, 4, v{T+2}
    v_add_u32 v{VP+3}, s45, v{T+2}
    s_mul_i32 s39, s3, 288
    s_add_u32 s46, s39, s45
    s_add_u32 s46, s46, {26 * 144}
    v_lshl_add_u32 v{VEPS+1}, v{T}, 4, s46     ; z row
    s_mul_i32 s39, s3, 296
    s_add_u32 s45, s45, s39
    s_add_u32 s45, s45, {8 * 144}
    s_movk_i32 s38, 3277
    s_movk_i32 s39, 380
    v_mov_b32 v{T+3}, 0x40000000
    """)
    for m in range(6):
        k(f"""
        v_add_u32 v{T+4}, {64*m}, v1               ; idx
        v_mul_u32_u24 v{T+5}, s38, v{T+4}
        v_cmp_gt_u32 s[54:55], s39, v{T+4}
        v_lshrrev_b32 v{T+5}, 16, v{T+5}           ; e
        v_mul_u32_u24 v{T+6}, 20, v{T+5}
        v_lshlrev_b32 v{T+7}, 2, v{T+4}
        v_sub_u32 v{T+6}, v{T+4}, v{T+6}           ; d
        v_cmp_gt_u32 vcc, 18, v{T+6}
        v_lshl_add_u32 v{T+5}, v{T+5}, 6, s45
        s_and_b64 vcc, vcc, s[54:55]
        v_add_u32 v{GA+m}, v{T+5}, v{T+7}
        v_cndmask_b32 v{GO+m}, v{T+3}, v{T+7}, vcc
        """)
    k("s_waitcnt lgkmcnt(0)")
    srd(k, 12, 30, 31, PQ_SZ, PQ_OFF)
    srd(k, 20, 30, 31, KVT_SZ, KVT_OFF)
    NI = NS * 18
    def rdB(t):
        n, r = divmod(t, 18); h, j = divmod(r, 9)
        return [(f"ds_read_b64_tr_b16 {v(bf(t)+2*u,2)}, v{VB+h} offset:{(n%NB)*WS + u*2304 + j*32}", ("B", t)) for u in range(2)]
    def rdA(hh):
        n, h = divmod(hh, 2)
        return [(f"ds_read_b128 {v(af(h,rb),4)}, v{VA+h} offset:{(n%NB)*16384 + rb*2048}", ("A", hh)) for rb in range(2)]
    k("s_barrier")
    if stamps: stamp_mid(k, 0)
    for x in rdA(0): sb.ds(*x)
    for t in range(L):
        for x in rdB(t): sb.ds(*x)
    for t in range(NI):
        n, r = divmod(t, 18); h, j = divmod(r, 9); hh = 2 * n + h
        m = []
        for rb in range(2):
            c = "0" if hh == 0 else v(acc(j, rb), 4)
            m.append(f"{MF} {v(acc(j,rb),4)}, {v(af(h,rb),4)}, {v(bf(t),4)}, {c}")
        if h == 0:
            m.append(f"{MF} {v(AC+4*j,4)}, {v(ONE,4)}, {v(bf(t),4)}, {'0' if n == 0 else v(AC+4*j,4)}")
        if j in (1, 2):
            rb = j - 1
            m.append(f"{MF} {v(AQ+4*rb,4)}, {v(af(h,rb),4)}, {v(af(h,rb),4)}, {'0' if hh == 0 else v(AQ+4*rb,4)}")
        if j in (3, 4):
            rb = j - 3
            m.append(f"{MF} {v(AS+4*rb,4)}, {v(af(h,rb),4)}, {v(ONE,4)}, {'0' if hh == 0 else v(AS+4*rb,4)}")
        sb.needds(("B", t), ("A", hh))
        k(m[0])
        if r == 18 - L and n + 1 < NS: k("s_barrier")
        rds = rdB(t + L) if t + L < NI else []
        if j == 9 - L and hh + 1 < 2 * NS: rds = rdA(hh + 1) + rds
        if n == NS - 1 and h == 1 and j >= 4:
            js = {4: (0,), 5: (1, 2), 6: (3, 4), 7: (5, 6), 8: (7, 8)}[j]
            rds += [(f"ds_write_b32 v{VCS}, v{AC+4*x} offset:{64*x}", "cs") for x in js]
        per = -(-len(rds) // len(m))
        for x in rds[:per]: sb.ds(*x)
        for i in range(1, len(m)):
            k(m[i])
            for x in rds[per * i: per * (i + 1)]: sb.ds(*x)
    if stamps: stamp_mid(k, 1)
    sb.drain("lgkmcnt")
    k("s_barrier")
    C = T; RR = T + 10; RM = T + 18; Q = T + 26; FL = T + 34; VT = T + 36; S = AS
    k(f"v_xor_b32 v{VCS}, 1024, v{VCS}")
    for x in range(8): sb.ds(f"ds_bpermute_b32 v{Q+x}, v{VBP}, v{AQ+x} offset:{4*(x&3)}", "q")
    for j in range(9): sb.ds(f"ds_read_b32 v{C+j}, v{VCS} offset:{64*j}", "c")
    k(f"""
    s_mov_b32 s38, {fbits(1/576)}
    s_mov_b32 s39, {fbits(1e-5)}
    s_mov_b32 s62, {fbits(1.4426950408889634)}
    s_mov_b32 s63, {fbits(1.4426950408889634)}
    s_mov_b32 s64, {fbits(1e-6)}
    s_mov_b32 s65, {fbits(1e-6)}
    v_mov_b32 v{VT}, {fbits(-1e-6 * 1.4426950408889634)}
    """)
    for x in range(8): k(f"v_mul_f32 v{S+x}, s38, v{S+x}")
    for x in range(8): k(f"v_fma_f32 v{RM+x}, -v{S+x}, v{S+x}, s39")
    sb.needds("q")
    for x in range(8): k(f"v_fma_f32 v{Q+x}, v{Q+x}, s38, v{RM+x}")
    for x in range(8): k(f"v_max_f32 v{Q+x}, s39, v{Q+x}")
    for x in range(8): k(f"v_rsq_f32 v{RR+x}, v{Q+x}")
    sb.needds("c")
    for j in range(9): k(f"v_add_f32 v{C+j}, v{C+j}, v{AC+4*j}")
    for x in range(8): k(f"v_mul_f32 v{RM+x}, v{RR+x}, v{S+x}")
    if stamps: stamp_mid(k, 2)
    E = AF
    def F(j): return AC + 4 * j
    def fin(j, mode):
        a0 = acc(j, 0)
        cp = v(C + (j & ~1), 2); cs = f"op_sel:[0,{j&1},0] op_sel_hi:[1,{j&1},1] neg_lo:[1,0,0] neg_hi:[1,0,0]"
        X = range(0, 8, 2)
        for x in X:
            if mode == "phi": k(f"v_pk_fma_f32 {v(a0+x,2)}, {v(a0+x,2)}, {v(RR+x,2)}, s[64:65]")
            elif mode == "mix": k(f"v_pk_fma_f32 {v(a0+x,2)}, {v(a0+x,2)}, {v(RR+x,2)}, {v(VEPS,2)} op_sel_hi:[1,1,0]")
            else: k(f"v_pk_mul_f32 {v(a0+x,2)}, {v(a0+x,2)}, {v(RR+x,2)}")
        for x in X: k(f"v_pk_fma_f32 {v(a0+x,2)}, {v(RM+x,2)}, {cp}, {v(a0+x,2)} {cs}")
        if mode != "lin":
            for x in X: k(f"v_pk_fma_f32 {v(E+x,2)}, {v(a0+x,2)}, s[62:63], {v(VT,2)} op_sel_hi:[1,1,0]")
            for x in range(8): k(f"v_exp_f32_e64 v{E+x}, v{E+x} clamp")
            if mode == "phi":
                for x in range(8): k(f"v_max_f32 v{a0+x}, s64, v{a0+x}")
                for x in X: k(f"v_pk_add_f32 {v(a0+x,2)}, {v(a0+x,2)}, {v(E+x,2)}")
            else:
                for x in range(8): k(f"v_max_f32 v{E+8+x}, s64, v{a0+x}")
                for x in X: k(f"v_pk_add_f32 {v(E+x,2)}, {v(E+8+x,2)}, {v(E+x,2)}")
                for x in range(8): k(f"v_cndmask_b32 v{a0+x}, v{a0+x}, v{E+x}, s[60:61]")
        for x in range(4): k(f"v_cvt_pk_bf16_f32 v{F(j)+x}, v{a0+2*x}, v{a0+2*x+1}")
    LA = k.label("typea")
    k(f"s_cmp_lt_u32 s35, 4\ns_cbranch_scc1 {LA}")
    for j in range(9):
        fin(j, "phi")
        k(f"buffer_store_dwordx4 {v(F(j),4)}, v{VP}, s[12:15], s{42 + j//4} offen offset:{(j%4)*1024} {aux_o}".rstrip())
    if stamps:
        stamp_mid(k, 3); stamp_end(k, kidx)
    k(f"s_endpgm\n{LA}:")
    for j in range(9):
        fin(j, "phi" if j < 4 else "mix" if j == 4 else "lin")
        sb.ds(f"ds_write_b128 v{VP+1}, {v(F(j),4)} offset:{j*1024}", "ex")
    sb.drain("lgkmcnt")
    k("s_barrier")
    if stamps: stamp_mid(k, 3)
    def R(w, x): return ACC + (w * 4 + x) * 4
    for w in range(4):
        for x in range(4):
            sb.ds(f"ds_read_b128 {v(R(w,x),4)}, v{VP+2} offset:{w*9216 + (0, 1024, 4096, 5120)[x]}", ("r", w))
    D = BF
    for w in range(4):
        sb.needds(("r", w))
        for kb in range(2):
            for vb in range(2):
                d = D + (kb * 2 + vb) * 4
                k(f"{MF} {v(d,4)}, {v(R(w,kb),4)}, {v(R(w,2+vb),4)}, {'0' if w == 0 else v(d,4)}")
        for kb in range(2):
            d = D + 16 + kb * 4
            k(f"{MF} {v(d,4)}, {v(R(w,kb),4)}, {v(ONE,4)}, {'0' if w == 0 else v(d,4)}")
    k("s_nop 3")
    for kb in range(2):
        for vb in range(2):
            k(f"ds_write_b128 v{VP+3}, {v(D+(kb*2+vb)*4,4)} offset:{vb*16*144 + kb*64}")
    k("s_mov_b32 exec_lo, 0x00010001\ns_mov_b32 exec_hi, 0x00010001")
    for kb in range(2): k(f"ds_write_b128 v{VEPS+1}, {v(D+16+kb*4,4)} offset:{kb*64}")
    k("s_mov_b64 exec, -1")
    for m in range(6): k(f"ds_read_b32 v{Q+m}, v{GA+m}")
    for m in range(6):
        k(f"s_waitcnt lgkmcnt({5 - m})")
        k(f"buffer_atomic_add_f32 v{Q+m}, v{GO+m}, s[20:23], s41 offen")
    if stamps:
        stamp_mid(k, 4); stamp_end(k, kidx)
    k(f"{END}:\ns_endpgm")
    return k, (name, (256, 1, 1), (320, 1, 1), CS + 4096)
```

```python
from asmlib import *
from layout import *
MF16 = "v_mfma_f32_16x16x16_bf16"

def gen_k2(name="k2_kernel", kidx=1, stamps=False, aux_o="", dbg="", pf=None, pfpos=3, wpace=1, cpf=False, clr=None):
    k = K(name, vgpr=248, agpr=164)
    sb = SB(k)
    END = k.label("end")
    VL = 2
    VWT = 3
    VKW = 7
    VA0 = 8; VA1 = 9; VB0 = 10; VB1 = 11
    VXD = 12
    VRW = 15
    VRR = 16
    VXR = 19; VST = 20; VPL = 21
    T = 22
    ACC = 32
    def acc(cb, rb): return ACC + (cb * 2 + rb) * 4
    FR = 104
    def fr(t, u, x): return FR + ((t & 1) * 2 + u) * 16 + x * 4
    DD = 168
    def dd(u, rb, b): return DD + ((u * 2 + rb) * 2 + b) * 4
    OF = 200
    def of(t, rb): return OF + ((t & 1) * 2 + rb) * 4
    LF = 216
    RAW = 168
    X = 220
    def wf(t, cb): return (t * 9 + cb) * 4
    def wl(cb): return 144 + (cb >> 1) * 4 + (cb & 1) * 2
    KVI = 0; PQI = 6144; XI = 65536; ST = XI + 9216
    k(f"s_cmp_ge_u32 s2, 256\ns_cbranch_scc1 {END}")
    if stamps: stamp_begin(k)
    k(f"""
    s_load_dwordx2 s[4:5], s[0:1], 0           ; x
    s_load_dwordx2 s[10:11], s[0:1], 80        ; ws
    {"s_load_dwordx2 s[60:61], s[0:1], 32" if pf else ""}
    v_lshrrev_b32 v{T}, 6, v0
    v_and_b32 v1, 63, v0                       ; lane
    s_and_b32 s33, s2, 7
    v_readfirstlane_b32 s3, v{T}               ; wave
    s_lshl_b32 s33, s33, 3
    s_lshr_b32 s34, s2, 5
    s_add_u32 s33, s33, s34                    ; rt32
    s_bfe_u32 s34, s2, 0x20003                 ; ct
    v_lshlrev_b32 v{VL}, 4, v1
    s_mul_i32 s35, s3, 12160
    s_mul_i32 s36, s33, 4
    s_add_u32 s36, s36, s3
    s_mul_i32 s36, s36, 9216
    s_lshl_b32 s37, s3, 14
    v_add_u32 v{VWT}, 4096, v{VL}
    v_add_u32 v{VWT+1}, 8192, v{VL}
    s_waitcnt lgkmcnt(0)
    """)
    srd(k, 12, 10, 11, WOF_OFF + WOF_SZ - KVT_OFF, KVT_OFF)
    srd(k, 16, 10, 11, PQ_SZ, PQ_OFF)
    for i in range(12):
        base = VL if i < 4 else VWT + i // 4 - 1
        sb.vm(f"buffer_load_dwordx4 {v(RAW+4*i,4)}, v{base}, s[12:15], s35 offen offset:{(i%4)*1024}", ("kv", i))
    for i in range(9):
        base = VL if i < 4 else VWT + i // 4 - 1
        if i % 4 == 0: k(f"s_add_u32 m0, s37, {PQI + i*1024}\ns_nop 0")
        sb.vm(f"buffer_load_dwordx4 v{base}, s[16:19], s36 offen offset:{(i%4)*1024} lds", "pq")
    srd(k, 20, 4, 5, 2048 * 1152)
    k(f"""
    s_mov_b32 s38, {(1 << 32) // 18 + 1}
    s_movk_i32 s39, {1152 - 288}
    s_mul_i32 s40, s33, {32*1152}
    s_mul_i32 s41, s34, 288
    s_add_u32 s40, s40, s41                    ; x soffset
    """)
    for n in range(3):
        k(f"""
        v_add_u32 v{T}, {256*n}, v0
        v_mul_hi_u32 v{T+1}, v{T}, s38
        v_mul_u32_u24 v{T+1}, s39, v{T+1}
        v_lshl_add_u32 v{VXD+n}, v{T}, 4, v{T+1}
        """)
    LX = k.label("x3")
    k(f"""
    s_cmp_lg_u32 s3, 0
    s_cbranch_scc1 {LX}
    s_mov_b32 m0, {XI + 8192}
    s_nop 0
    buffer_load_dwordx4 v{VXD+2}, s[20:23], s40 offen lds
    {LX}:
    s_lshl_b32 s41, s3, 10
    """)
    for n in range(2):
        k(f"s_add_u32 m0, s41, {XI + 4096*n}\ns_nop 0")
        sb.vm(f"buffer_load_dwordx4 v{VXD+n}, s[20:23], s40 offen lds", "x")
    k(f"""
    s_lshl_b32 s41, s34, 2
    s_add_u32 s41, s41, s3
    s_mul_i32 s41, s41, {41*1024}
    s_add_u32 s41, s41, {WOF_OFF - KVT_OFF}
    """)
    for p in range(4):
        k(f"""
        s_add_u32 s42, s3, {p}
        s_and_b32 s42, s42, 3
        s_lshl_b32 s43, s42, 11
        s_add_u32 s{44+p}, s41, s43
        s_lshl_b32 s43, s42, 10
        s_add_u32 s{50+p}, s41, s43
        """)
    k(f"s_add_u32 s48, s41, 8192\ns_add_u32 s54, s41, 4096")
    for t in range(1, 5): k(f"v_add_u32 v{VWT+t-1}, {9216*t}, v{VL}")
    wq = []
    for t in range(4):
        for cb in range(9):
            wq.append((f"buffer_load_dwordx4 {a(wf(t,cb),4)}, v{VL if t == 0 else VWT+t-1}, s[12:15], s{44 + cb//2} offen offset:{(cb&1)*1024}", ("w", t)))
    for p in range(5):
        wq.append((f"buffer_load_dwordx4 {a(144+4*p,4)}, v{VWT+3}, s[12:15], s{50+p} offen", ("w", 4)))
    def wload(n=1):
        for _ in range(n):
            if wq: sb.vm(*wq.pop(0))
    wload(4)
    k(f"""
    v_lshrrev_b32 v{T}, 4, v1                  ; g
    v_and_b32 v{T+1}, 15, v1                   ; i
    v_lshl_add_u32 v{VKW}, v1, 3, s37
    v_lshl_add_u32 v{T+2}, v{T}, 3, s37
    v_mad_u32_u24 v{VA0}, v{T+1}, 40, v{T+2}
    v_and_b32 v{T+3}, 3, v1                    ; c
    v_min_u32 v{T+4}, 2, v{T+3}
    v_mad_u32_u24 v{T+4}, v{T+4}, 40, v{T+2}
    v_add_u32 v{VA1}, 640, v{T+4}
    v_bfe_u32 v{T+4}, v1, 2, 4                 ; 4g + r
    v_lshl_add_u32 v{T+5}, v{T+3}, 4, s37
    v_add_u32 v{T+5}, {PQI}, v{T+5}
    v_lshl_add_u32 v{VB0}, v{T+4}, 6, v{T+5}
    v_cmp_gt_u32 vcc, 16, v1
    v_and_b32 v{T+6}, 1, v{T+4}
    v_or_b32 v{T+6}, 16, v{T+6}
    v_cndmask_b32 v{T+6}, v{T+4}, v{T+6}, vcc
    v_lshl_add_u32 v{VB1}, v{T+6}, 6, v{T+5}
    v_add_u32 v{VRW}, s37, v{VL}
    s_movk_i32 s42, 288
    v_mul_u32_u24 v{T+4}, s42, v{T+4}
    v_lshl_add_u32 v{T+4}, v{T+3}, 3, v{T+4}
    s_lshl_b32 s42, s3, 6
    s_add_u32 s42, s42, {XI}
    v_add_u32 v{VXR}, s42, v{T+4}
    """)
    for j in range(1, 4):
        k(f"""
        s_sub_u32 s42, s3, {j}
        s_and_b32 s42, s42, 3
        s_lshl_b32 s42, s42, 14
        s_add_u32 s42, s42, {(j-1)*4096}
        v_add_u32 v{VRR+j-1}, s42, v{VL}
        """)
    k(f"""
    v_bfe_u32 v{T+2}, v1, 3, 1                 ; stat
    v_bfe_u32 v{T+4}, v1, 2, 1                 ; rb
    v_lshlrev_b32 v{T+5}, 4, v{T}
    v_lshl_add_u32 v{T+5}, v{T+4}, 6, v{T+5}
    v_lshl_add_u32 v{T+5}, v{T+2}, 7, v{T+5}
    s_lshl_b32 s42, s3, 8
    s_add_u32 s42, s42, {ST}
    v_add_u32 v{VST}, s42, v{T+5}
    v_lshlrev_b32 v{T+5}, 4, v{T}
    v_lshl_add_u32 v{T+5}, v{T+2}, 6, v{T+5}
    v_lshl_add_u32 v{T+5}, v{T+4}, 7, v{T+5}
    v_lshl_add_u32 v{VPL}, v{T+3}, 8, v{T+5}
    """)
    for t in range(2):
        for u in range(2):
            for x in (0, 1):
                k(f"v_mov_b32 v{fr(t,u,x)+2}, 0\nv_mov_b32 v{fr(t,u,x)+3}, 0")
    for i in range(12):
        sb.needvm(("kv", i))
        if i == 0 and stamps: stamp_mid(k, 0)
        k(f"v_cvt_pk_bf16_f32 v{RAW+4*i}, v{RAW+4*i}, v{RAW+4*i+1}\nv_cvt_pk_bf16_f32 v{RAW+4*i+1}, v{RAW+4*i+2}, v{RAW+4*i+3}")
        sb.ds(f"ds_write_b64 v{VKW}, {v(RAW+4*i,2)} offset:{KVI + 512*i}", "kvw")
        wload(wpace)
    def reads(t):
        out = []
        for u in range(2):
            hl = 2 * t + u
            g = [(f"ds_read_b64 {v(fr(t,u,0),2)}, v{VA0} offset:{KVI + hl*760}", ("f", t, u)),
                 (f"ds_read_b64 {v(fr(t,u,1),2)}, v{VA1} offset:{KVI + hl*760}", ("f", t, u)),
                 "s_mov_b64 exec, 0xffff",
                 (f"ds_read_b64 {v(fr(t,u,0)+2,2)}, v{VA0} offset:{KVI + hl*760 + 32}", ("f", t, u)),
                 (f"ds_read_b64 {v(fr(t,u,1)+2,2)}, v{VA1} offset:{KVI + hl*760 + 32}", ("f", t, u)),
                 "s_mov_b64 exec, -1"]
            out.append(g)
            for rb in range(2):
                out.append([(f"ds_read_b64_tr_b16 {v(fr(t,u,2+rb),2)}, v{VB0} offset:{hl*1152 + 8*rb}", ("f", t, u)),
                            (f"ds_read_b64_tr_b16 {v(fr(t,u,2+rb)+2,2)}, v{VB1} offset:{hl*1152 + 8*rb}", ("f", t, u))])
        return out
    def emit(g):
        for x in g:
            if isinstance(x, tuple): sb.ds(*x)
            else: k(x)
    def omfma(t):
        for u in range(2):
            sb.needds(("f", t, u))
            for rb in range(2):
                for b in (1, 0):
                    k(f"{MF} {v(dd(u,rb,b),4)}, {v(fr(t,u,b),4)}, {v(fr(t,u,2+rb),4)}, 0")
    def ovalu(t):
        out = []
        P = [(u, rb) for u in range(2) for rb in range(2)]
        for (u, rb) in P: out.append(f"v_add_f32 v{dd(u,rb,1)+2}, s55, v{dd(u,rb,1)+2}")
        for (u, rb) in P: out.append(f"v_rcp_f32 v{dd(u,rb,1)+2}, v{dd(u,rb,1)+2}")
        for (u, rb) in P:
            for x in range(4): out.append(f"v_mul_f32 v{dd(u,rb,0)+x}, v{dd(u,rb,0)+x}, v{dd(u,rb,1)+2}")
            for x in range(2): out.append(f"v_mul_f32 v{dd(u,rb,1)+x}, v{dd(u,rb,1)+x}, v{dd(u,rb,1)+2}")
        for (u, rb) in P: out.append(f"v_cvt_pk_bf16_f32 v{dd(u,rb,1)}, v{dd(u,rb,1)}, v{dd(u,rb,1)+1}")
        for (u, rb) in P:
            for x in range(2): out.append(f"v_cvt_pk_bf16_f32 v{of(t,rb)+2*u+x}, v{dd(u,rb,0)+2*x}, v{dd(u,rb,0)+2*x+1}")
        for (u, rb) in P: out.append(f"v_mov_b32_dpp v{LF+2*rb+u}, v{dd(u,rb,1)} quad_perm:[0,1,2,3] row_mask:{1<<t} bank_mask:0xf")
        return out
    def gemm(t):
        out = []
        for cb in range(9):
            for rb in range(2):
                out.append(f"{MF} {v(acc(cb,rb),4)}, {v(of(t,rb),4)}, {a(wf(t,cb),4)}, {'0' if t == 0 else v(acc(cb,rb),4)}")
        return out
    k(f"s_mov_b32 s55, {fbits(1e-6)}")
    def prefetch():
        m0, n = pf
        LN = k.label("nopf")
        k(f"""
        s_mov_b32 s62, {2048 * 9216}
        s_mov_b32 s63, 0x20000
        s_mov_b32 s58, {(1 << 32) // 9 + 1}
        s_movk_i32 s59, {9216 - 9 * 128}
        s_lshr_b32 s56, s2, 3
        s_lshl_b32 s56, s56, 6
        s_add_u32 s57, s3, {m0}
        s_lshl_b32 s57, s57, 11
        s_add_u32 s56, s56, s57
        s_and_b32 s57, s2, 7
        s_mul_i32 s57, s57, 1152
        """)
        for r in range(0, n, 4):
            k(f"""
            s_cmp_ge_u32 s3, {n - r}
            s_cselect_b32 s64, 0x40000000, 0
            v_add_u32 v{T}, s56, v1
            v_mul_hi_u32 v{T+1}, v{T}, s58
            v_mul_u32_u24 v{T+1}, s59, v{T+1}
            v_lshl_add_u32 v{T}, v{T}, 7, v{T+1}
            v_or_b32 v{T}, s64, v{T}
            s_add_u32 s56, s56, 8192
            """)
            sb.vm(f"buffer_load_dword v{T+9}, v{T}, s[60:63], s57 offen", "pf")
    sb.needvm("pq")
    if stamps: stamp_mid(k, 1)
    for g in reads(0): emit(g)
    wload(3)
    for t in range(5):
        if t < 4:
            omfma(t)
            if t + 1 < 4:
                for g in reads(t + 1): emit(g); wload(1)
            else:
                wload(99)
            val = ovalu(t)
        else: val = []
        if t > 0:
            sb.needvm(("w", t - 1))
            gm = gemm(t - 1)
            body = weave(gm, val, 2 if val else 0, 18)
            k(body)
        else:
            k("s_nop 4"); k(val)
        if clr is not None and t == clr:
            wload(99)
            srd(k, 24, 10, 11, XQ_SZ, XQ_OFF)
            k(f"""
            s_mul_i32 s28, s2, {27 * 1024}
            s_mul_i32 s29, s3, {7 * 1024}
            s_add_u32 s28, s28, s29
            s_cmp_eq_u32 s3, 3
            s_cselect_b32 s29, 0x40000000, 0
            v_or_b32 v{T+1}, s29, v{VL}
            """)
            for x in range(4): k(f"v_mov_b32 v{T+2+x}, -1")
            for q in range(7):
                if q == 4: k("s_add_u32 s28, s28, 4096")
                sb.vm(f"buffer_store_dwordx4 {v(T+2,4)}, v{VL if q < 6 else T+1}, s[24:27], s28 offen offset:{(q % 4) * 1024} sc1", "clr")
            k("s_nop 1")
        if pf and t == pfpos:
            wload(99)
            if cpf: code_pf(k, "k3_kernel", "k4_kernel", T + 2, T + 9, 64, emit=lambda x: sb.vm(x, "pf"), wave=3)
            prefetch()
    if stamps: stamp_mid(k, 2)
    sb.needvm(("w", 4))
    order = [2, 3, 4, 5, 6, 7, 8, 0, 1]
    gm = [f"{MF16} {v(acc(cb,rb),4)}, {v(LF+2*rb,2)}, {a(wl(cb),2)}, {v(acc(cb,rb),4)}" for cb in order for rb in range(2)]
    wr = [f"ds_write_b128 v{VRW}, {v(acc(cb,rb),4)} offset:{((cb-2)*2+rb)*1024}" for cb in range(2, 9) for rb in range(2)]
    for i, m in enumerate(gm):
        k(m)
        if i >= 8: sb.ds(wr[i - 8], "rw")
    for w in wr[10:]: sb.ds(w, "rw")
    sb.drain("lgkmcnt")
    k("s_barrier")
    if stamps: stamp_mid(k, 3)
    G = FR
    for c in range(2):
        for u in range(2): sb.ds(f"ds_read_b64_tr_b16 {v(X+4*c+2*u,2)}, v{VXR} offset:{c*32 + u*4608}", ("x", c))
        for j in range(3):
            for rb in range(2): sb.ds(f"ds_read_b128 {v(G + ((c*3+j)*2+rb)*4,4)}, v{VRR+j} offset:{(c*2+rb)*1024}", ("g", c))
    S = DD; Q = DD + 8
    def finish(cb, gb, xr, first):
        a0 = acc(cb, 0)
        for x in range(0, 8, 2): k(f"v_pk_add_f32 {v(gb+x,2)}, {v(gb+x,2)}, {v(gb+8+x,2)}")
        for x in range(0, 8, 2): k(f"v_pk_add_f32 {v(a0+x,2)}, {v(a0+x,2)}, {v(gb+16+x,2)}")
        for x in range(4): k(f"v_lshlrev_b32 v{gb+8+2*x}, 16, v{xr+x}\nv_and_b32 v{gb+9+2*x}, 0xffff0000, v{xr+x}")
        for x in range(0, 8, 2): k(f"v_pk_add_f32 {v(a0+x,2)}, {v(a0+x,2)}, {v(gb+x,2)}")
        for x in range(0, 8, 2): k(f"v_pk_add_f32 {v(a0+x,2)}, {v(a0+x,2)}, {v(gb+8+x,2)}")
        for x in range(0, 8, 2):
            if first == 0: k(f"v_pk_mul_f32 {v(Q+x,2)}, {v(a0+x,2)}, {v(a0+x,2)}")
            else: k(f"v_pk_fma_f32 {v(Q+x,2)}, {v(a0+x,2)}, {v(a0+x,2)}, {v(Q+x,2)}")
        for x in range(0, 8, 2):
            if first == 1: k(f"v_pk_add_f32 {v(S+x,2)}, {v(a0+x,2)}, {v(acc(0,0)+x,2)}")
            elif first == 2: k(f"v_pk_add_f32 {v(S+x,2)}, {v(a0+x,2)}, {v(S+x,2)}")
    for c in range(2):
        sb.needds(("g", c))
        finish(c, G + c * 24, X + 4 * c, c)
    L8 = k.label("no8")
    k(f"s_cmp_lg_u32 s3, 0\ns_cbranch_scc1 {L8}")
    for u in range(2): k(f"ds_read_b64_tr_b16 {v(X+8+2*u,2)}, v{VXR} offset:{256 + u*4608}")
    for j in range(3):
        for rb in range(2): k(f"ds_read_b128 {v(G + (j*2+rb)*4,4)}, v{VL} offset:{(j+1)*16384 + (12+rb)*1024}")
    k("s_waitcnt lgkmcnt(0)")
    finish(8, G, X + 8, 2)
    k(f"{L8}:\ns_nop 1")
    R = DD + 16; TT = DD + 24
    for x in range(8):
        k(f"v_add_f32_dpp v{R+x}, v{S+x}, v{S+x} row_ror:8 row_mask:0xf bank_mask:0x3")
    for x in range(8):
        k(f"v_add_f32_dpp v{R+x}, v{Q+x}, v{Q+x} row_ror:8 row_mask:0xf bank_mask:0xc")
    for x in range(4):
        k(f"v_add_f32_dpp v{TT+x}, v{R+x}, v{R+x} row_half_mirror row_mask:0xf bank_mask:0x5")
    for x in range(4):
        k(f"v_add_f32_dpp v{TT+x}, v{R+4+x}, v{R+4+x} row_half_mirror row_mask:0xf bank_mask:0xa")
    for pm in ("[1,0,3,2]", "[2,3,0,1]"):
        for x in range(4): k(f"v_add_f32_dpp v{TT+x}, v{TT+x}, v{TT+x} quad_perm:{pm} row_mask:0xf bank_mask:0xf")
    k(f"ds_write_b128 v{VST}, {v(TT,4)}\ns_waitcnt lgkmcnt(0)\ns_barrier")
    LP = k.label("nopub")
    k(f"""
    s_lshl_b32 s42, s33, 10
    s_add_u32 s42, s42, {XCH_OFF - KVT_OFF}
    s_lshl_b32 s43, s34, 8
    s_add_u32 s43, s43, s42
    s_cmp_lg_u32 s3, 1
    s_cbranch_scc1 {LP}
    s_mov_b64 exec, 0xffff
    v_add_u32 v{T}, {ST}, v{VL}
    """)
    for w in range(4): k(f"ds_read_b128 {v(G+4*w,4)}, v{T} offset:{256*w}")
    k("s_waitcnt lgkmcnt(0)")
    for x in (0, 2): k(f"v_pk_add_f32 {v(G+x,2)}, {v(G+x,2)}, {v(G+4+x,2)}\nv_pk_add_f32 {v(G+8+x,2)}, {v(G+8+x,2)}, {v(G+12+x,2)}")
    for x in (0, 2): k(f"v_pk_add_f32 {v(G+x,2)}, {v(G+x,2)}, {v(G+8+x,2)}")
    k(f"""
    buffer_store_dwordx4 {v(G,4)}, v{VL}, s[12:15], s43 offen sc1
    s_mov_b64 exec, -1
    {LP}:
    """)
    if stamps: stamp_mid(k, 4)
    srd(k, 16, 10, 11, HL_SZ + HR_SZ, min(HL_OFF, HR_OFF))
    k(f"""
    s_mul_i32 s44, s33, 36
    s_mul_i32 s45, s34, 9
    s_add_u32 s44, s44, s45
    s_lshl_b32 s44, s44, 10
    s_add_u32 s46, s44, 8192                   ; block 8
    s_lshl_b32 s45, s3, 11
    s_add_u32 s44, s44, s45
    s_add_u32 s45, s44, {HL_SZ if HR_OFF > HL_OFF else 0}
    s_add_u32 s47, s46, {HL_SZ if HR_OFF > HL_OFF else 0}
    {"" if HR_OFF > HL_OFF else f"s_add_u32 s44, s44, {HL_SZ}"}
    {"" if HR_OFF > HL_OFF else f"s_add_u32 s46, s46, {HL_SZ}"}
    buffer_load_dwordx4 {v(TT,4)}, v{VPL}, s[12:15], s42 offen sc1
    """)
    def cvst(cb, o, so, off):
        for x in range(4): k(f"v_cvt_pk_bf16_f32 v{o+x}, v{acc(cb,0)+2*x}, v{acc(cb,0)+2*x+1}")
        k(f"buffer_store_dwordx4 {v(o,4)}, v{VL}, s[16:19], s{so} offen offset:{off} {aux_o}".rstrip())
    H = G + 16
    cvst(0, H, 45, 0); cvst(1, H + 4, 45, 1024)
    L9 = k.label("no8b"); LS = k.label("spin"); LG = k.label("go")
    k(f"s_cmp_lg_u32 s3, 0\ns_cbranch_scc1 {L9}")
    cvst(8, H + 8, 47, 0)
    k(f"""
    {L9}:
    s_mov_b32 s48, 0
    s_waitcnt vmcnt(2)
    {LS}:
    v_max3_u32 v{T}, v{TT}, v{TT+1}, v{TT+2}
    v_max_u32 v{T}, v{T}, v{TT+3}
    v_cmp_eq_u32 vcc, -1, v{T}
    s_add_u32 s48, s48, 1
    s_cmp_eq_u64 vcc, 0
    s_cbranch_scc1 {LG}
    s_cmp_ge_u32 s48, 0x40000
    s_cbranch_scc1 {LG}
    buffer_load_dwordx4 {v(TT,4)}, v{VPL}, s[12:15], s42 offen sc1
    s_waitcnt vmcnt(0)
    s_branch {LS}
    {LG}:
    """)
    if stamps: stamp_mid(k, 5)
    for pm in ("[1,0,3,2]", "[2,3,0,1]"):
        for x in range(4): k(f"v_add_f32_dpp v{TT+x}, v{TT+x}, v{TT+x} quad_perm:{pm} row_mask:0xf bank_mask:0xf")
    k(f"s_mov_b32 s48, {fbits(1/576)}\ns_mov_b32 s49, {fbits(1e-5)}")
    for x in range(4): k(f"v_mul_f32 v{TT+x}, s48, v{TT+x}")
    k("s_nop 0")
    for x in range(4): k(f"v_mov_b32_dpp v{R+x}, v{TT+x} row_ror:12 row_mask:0xf bank_mask:0xf")
    for x in range(4): k(f"v_fma_f32 v{R+x}, -v{TT+x}, v{TT+x}, v{R+x}")
    for x in range(4): k(f"v_max_f32 v{R+x}, 0, v{R+x}")
    for x in range(4): k(f"v_add_f32 v{R+4+x}, s49, v{R+x}")
    for x in range(4): k(f"v_rsq_f32 v{R+4+x}, v{R+4+x}")
    for x in range(4): k(f"v_mul_f32 v{R+x}, v{R+x}, v{R+4+x}")
    for x in range(4): k(f"v_fma_f32 v{R+x}, v{R+x}, v{R+4+x}, s49")
    for x in range(4): k(f"v_rsq_f32 v{R+x}, v{R+x}")
    for x in range(4): k(f"v_mul_f32 v{R+x}, v{R+x}, v{R+4+x}")
    for x in range(4): k(f"v_mul_f32 v{R+4+x}, v{TT+x}, v{R+x}")
    for rb in range(2):
        for x in range(4): k(f"v_mov_b32_dpp v{S+4*rb+x}, v{R+x} row_newbcast:{8*rb} row_mask:0xf bank_mask:0xf")
        for x in range(4): k(f"v_mov_b32_dpp v{Q+4*rb+x}, v{R+4+x} row_newbcast:{8*rb} row_mask:0xf bank_mask:0xf")
    def norm(cb):
        for x in range(8): k(f"v_fma_f32 v{acc(cb,0)+x}, v{acc(cb,0)+x}, v{S+x}, -v{Q+x}")
    H2 = G + 32
    norm(0); cvst(0, H2, 44, 0); norm(1); cvst(1, H2 + 4, 44, 1024)
    LE = k.label("no8c")
    k(f"s_cmp_lg_u32 s3, 0\ns_cbranch_scc1 {LE}")
    norm(8); cvst(8, H2 + 8, 46, 0)
    k(f"{LE}:")
    if stamps: stamp_end(k, kidx)
    k(f"{END}:\ns_endpgm")
    return k, (name, (256, 1, 1), (256, 1, 1), ST + 1024)

if __name__ == "__main__":
    k, l = gen_k2(kidx=0, stamps=True)
    emit_file("k2.s", [l], [k])
```

```python
from asmlib import *
from layout import *

def gen_k2(name="k2_kernel", kidx=1, stamps=False, aux_o="sc1", dbg="", w1a=192, n2=96, pfd=2, cpf=True, pre=0, ot=6, gt=2, LA=3, cpos=0, xl=0, wpf=0, wwait=0, tp=0, tpp=0, rot=0, w2f=0, r3=0, head=None, w20=0):
    k = K(name, vgpr=200, agpr=216)
    sb = SB(k)
    END = k.label("end"); SPARE = k.label("spare")
    VL = 2
    VW4 = 3
    VKW = 7
    VA0 = 8; VA1 = 9; VB0 = 10; VB1 = 11
    VXD = 12
    VOW = 15; VOL = 16; VOR = 17
    VXR = 19; VST = 20; VPL = 21
    T = 22
    ACC = 32
    def acc(c, rb): return ACC + (c * 2 + rb) * 4
    FR = 56
    def fr(t, u, x): return FR + ((t & 1) * 2 + u) * 16 + x * 4
    DD = 120
    def dd(u, rb, b): return DD + ((u * 2 + rb) * 2 + b) * 4
    OF = 152
    def of(t, rb): return OF + ((t & 1) * 2 + rb) * 4
    LF = 168
    RAW = 120
    X = 172
    def af(ks, rb): return FR + ((ks % 4) * 2 + rb) * 4
    def wf(ks, c): return (ks * 3 + c) * 4
    KVI = 0; PQI = 6144; XI = 65536; OI = XI + 12288
    k(f"""
    s_cmp_ge_u32 s2, 256
    s_cbranch_scc1 {END}
    s_load_dwordx2 s[10:11], s[0:1], 80        ; ws
    s_load_dwordx2 s[4:5], s[0:1], 0           ; x
    v_readfirstlane_b32 s3, v0
    v_and_b32 v1, 63, v0                       ; lane
    s_and_b32 s33, s2, 7
    s_lshr_b32 s34, s2, 3
    s_lshr_b32 s3, s3, 6                       ; wave
    s_cmp_ge_u32 s34, 24
    s_cbranch_scc1 {SPARE}
    """)
    if stamps: stamp_begin(k)
    if tp: k(f"""
    s_load_dwordx2 s[6:7], s[0:1], 48          ; w2
    s_lshl_b32 s56, s34, 2
    s_add_u32 s56, s56, s3
    s_add_u32 s56, s56, {n2}
    s_lshl_b32 s56, s56, 14
    s_lshr_b32 s57, s33, 1
    s_mul_i32 s57, s57, {1152 * 4096}
    s_add_u32 s56, s56, s57
    s_and_b32 s57, s33, 1
    s_lshl_b32 s57, s57, 11
    s_add_u32 s56, s56, s57
    """)
    k(f"""
    s_mul_i32 s35, s34, 43
    s_lshr_b32 s35, s35, 7
    s_mul_i32 s36, s35, 3
    s_sub_u32 s34, s34, s36                    ; ct
    s_lshl_b32 s33, s33, 3
    s_add_u32 s33, s33, s35                    ; rt32
    v_lshlrev_b32 v{VL}, 4, v1
    s_mul_i32 s35, s3, 12160
    s_mul_i32 s36, s33, 4
    s_add_u32 s36, s36, s3
    s_mul_i32 s36, s36, 9216
    s_lshl_b32 s37, s3, 14
    v_add_u32 v{VW4}, 4096, v{VL}
    v_add_u32 v{VW4+1}, 8192, v{VL}
    s_mov_b32 s14, {(XCA_OFF + XCA_SZ if xl else WOF_OFF + WOF2_SZ) - KVT_OFF}
    s_mov_b32 s15, 0x20000
    s_waitcnt lgkmcnt(0)
    s_add_u32 s12, s10, {KVT_OFF}
    s_addc_u32 s13, s11, 0
    """)
    for i in range(12):
        base = VL if i < 4 else VW4 + i // 4 - 1
        sb.vm(f"buffer_load_dwordx4 {v(RAW+4*i,4)}, v{base}, s[12:15], s35 offen offset:{(i%4)*1024}", ("kv", i))
    srd(k, 16, 10, 11, PQ_SZ, PQ_OFF)
    srd(k, 20, 4, 5, 2048 * 1152)
    k(f"""
    s_movk_i32 s38, 2731
    s_movk_i32 s39, {1152 - 384}
    s_mul_i32 s40, s33, {32*1152}
    s_mul_i32 s41, s34, 384
    s_add_u32 s40, s40, s41                    ; x soffset
    s_mul_i32 s41, s3, 192
    s_mul_i32 s42, s3, 3072
    s_add_u32 s42, s42, {XI}
    s_lshl_b32 s43, s34, 2
    s_add_u32 s43, s43, s3
    s_mul_i32 s43, s43, {54*1024}
    s_add_u32 s43, s43, {WOF_OFF - KVT_OFF}
    """)
    for n in range(3):
        k(f"""
        v_add3_u32 v{T}, s41, v1, {64*n if n < 2 else 64}
        {f"v_add_u32 v{T}, 64, v{T}" if n == 2 else ""}
        v_mul_u32_u24 v{T+1}, s38, v{T}
        v_lshrrev_b32 v{T+1}, 16, v{T+1}
        v_mul_u32_u24 v{T+1}, s39, v{T+1}
        v_lshl_add_u32 v{VXD+n}, v{T}, 4, v{T+1}
        {f"v_subrev_u32 v{VXD+n}, {1024*n}, v{VXD+n}" if n else ""}
        """)
    q = []
    for i in range(9):
        base = VL if i < 4 else VW4 + i // 4 - 1
        q.append(([f"s_add_u32 m0, s37, {PQI + i*1024}", "s_nop 0"] if i % 4 == 0 else [],
                  f"buffer_load_dwordx4 v{base}, s[16:19], s36 offen offset:{(i%4)*1024} lds", [], ("pq", i)))
    for n in range(3):
        q.append((["s_mov_b32 m0, s42", "s_nop 0"] if n == 0 else [], f"buffer_load_dwordx4 v{VXD+n}, s[20:23], s40 offen offset:{n*1024} lds", [], "x"))
    for ks in range(18):
        for c in range(3):
            q.append(([], f"buffer_load_dwordx4 {a(wf(ks,c),4)}, v{VL}, s[12:15], s43 offen offset:{c*1024}", ["s_add_u32 s43, s43, 3072"] if c == 2 else [], ("w", ks)))
    def wload(n=1):
        for _ in range(n):
            if q:
                p_, i_, o_, t_ = q.pop(0)
                k(p_); sb.vm(i_, t_); k(o_)
    def upto(tag):
        while any(x[3] == tag for x in q): wload()
    wload(pre)
    k(f"""
    v_lshrrev_b32 v{T}, 4, v1                  ; g
    v_and_b32 v{T+1}, 15, v1                   ; i
    v_lshl_add_u32 v{VKW}, v1, 3, s37
    v_lshl_add_u32 v{T+2}, v{T}, 3, s37
    v_mad_u32_u24 v{VA0}, v{T+1}, 40, v{T+2}
    v_and_b32 v{T+3}, 3, v1                    ; c
    v_min_u32 v{T+4}, 2, v{T+3}
    v_mad_u32_u24 v{T+4}, v{T+4}, 40, v{T+2}
    v_add_u32 v{VA1}, 640, v{T+4}
    v_bfe_u32 v{T+4}, v1, 2, 4                 ; 4g + r
    v_lshl_add_u32 v{T+5}, v{T+3}, 4, s37
    v_add_u32 v{T+5}, {PQI}, v{T+5}
    v_lshl_add_u32 v{VB0}, v{T+4}, 6, v{T+5}
    v_cmp_gt_u32 vcc, 16, v1
    v_and_b32 v{T+6}, 1, v{T+4}
    v_or_b32 v{T+6}, 16, v{T+6}
    v_cndmask_b32 v{T+6}, v{T+4}, v{T+6}, vcc
    v_lshl_add_u32 v{VB1}, v{T+6}, 6, v{T+5}
    s_movk_i32 s44, 384
    v_mul_u32_u24 v{T+4}, s44, v{T+4}
    v_lshl_add_u32 v{T+4}, v{T+3}, 3, v{T+4}
    s_mul_i32 s44, s3, 96
    s_add_u32 s44, s44, {XI}
    v_add_u32 v{VXR}, s44, v{T+4}
    v_add_u32 v{VOR}, {OI}, v{VL}
    s_lshl_b32 s44, s3, 13
    v_add_u32 v{VOW}, s44, v{VOR}
    s_lshr_b32 s44, s3, 1
    s_lshl_b32 s44, s44, 11
    s_and_b32 s45, s3, 1
    s_lshl_b32 s45, s45, 3
    s_add_u32 s44, s44, s45
    s_add_u32 s44, s44, {32*1024}
    v_add_u32 v{VOL}, s44, v{VOR}
    v_bfe_u32 v{T+2}, v1, 3, 1                 ; stat
    v_bfe_u32 v{T+4}, v1, 2, 1                 ; rb
    v_lshlrev_b32 v{T+5}, 4, v{T}
    v_lshl_add_u32 v{T+5}, v{T+4}, 6, v{T+5}
    v_lshl_add_u32 v{VST}, v{T+2}, 7, v{T+5}
    v_lshlrev_b32 v{T+5}, 4, v{T}
    v_lshl_add_u32 v{T+5}, v{T+2}, 6, v{T+5}
    v_lshl_add_u32 v{T+5}, v{T+4}, 7, v{T+5}
    v_lshl_add_u32 v{VPL}, v{T+3}, 8, v{T+5}
    s_mul_i32 s46, s33, 3072
    s_add_u32 s46, s46, {XCH_OFF - KVT_OFF}
    s_lshl_b32 s47, s34, 2
    s_add_u32 s47, s47, s3
    s_lshl_b32 s48, s47, 8
    s_add_u32 s48, s48, s46
    s_add_u32 s52, s48, {XCA_OFF - XCH_OFF}
    s_add_u32 s53, s46, {XCA_OFF - XCH_OFF}
    s_mul_i32 s47, s47, 3
    s_mul_i32 s49, s33, 36
    s_add_u32 s47, s47, s49
    s_lshl_b32 s47, s47, 10
    s_add_u32 s49, s47, {HR_OFF - min(HL_OFF, HR_OFF)}
    s_add_u32 s47, s47, {HL_OFF - min(HL_OFF, HR_OFF)}
    s_mov_b32 s55, {fbits(1e-6)}
    """)
    srd(k, 24, 10, 11, HL_SZ + HR_SZ, min(HL_OFF, HR_OFF))
    VTP = 18
    if tp:
        srd(k, 28, 6, 7, 4608 * 4096)
        k(f"v_lshlrev_b32 v{VTP}, 7, v{T+1}\nv_lshl_add_u32 v{VTP}, v{T}, 12, v{VTP}")
    def tail():
        for i in range(tp):
            k(f"buffer_load_dword v5, v{VTP}, s[28:31], s56 offen")
            if i + 1 < tp: k(f"s_add_u32 s56, s56, {96 * 16384}")
    for t in range(2):
        for u in range(2):
            for x in (0, 1):
                k(f"v_mov_b32 v{fr(t,u,x)+2}, 0\nv_mov_b32 v{fr(t,u,x)+3}, 0")
    for i in range(12):
        sb.needvm(("kv", i))
        if i == 0 and stamps: stamp_mid(k, 0)
        k(f"v_cvt_pk_bf16_f32 v{RAW+4*i}, v{RAW+4*i}, v{RAW+4*i+1}\nv_cvt_pk_bf16_f32 v{RAW+4*i+1}, v{RAW+4*i+2}, v{RAW+4*i+3}")
        sb.ds(f"ds_write_b64 v{VKW}, {v(RAW+4*i,2)} offset:{KVI + 512*i}", "kvw")
        wload(1)
    def reads(t):
        out = []
        for u in range(2):
            hl = 2 * t + u
            g = [(f"ds_read_b64 {v(fr(t,u,0),2)}, v{VA0} offset:{KVI + hl*760}", ("f", t, u)),
                 (f"ds_read_b64 {v(fr(t,u,1),2)}, v{VA1} offset:{KVI + hl*760}", ("f", t, u)),
                 "s_mov_b64 exec, 0xffff",
                 (f"ds_read_b64 {v(fr(t,u,0)+2,2)}, v{VA0} offset:{KVI + hl*760 + 32}", ("f", t, u)),
                 (f"ds_read_b64 {v(fr(t,u,1)+2,2)}, v{VA1} offset:{KVI + hl*760 + 32}", ("f", t, u)),
                 "s_mov_b64 exec, -1"]
            out.append(g)
            for rb in range(2):
                out.append([(f"ds_read_b64_tr_b16 {v(fr(t,u,2+rb),2)}, v{VB0} offset:{hl*1152 + 8*rb}", ("f", t, u)),
                            (f"ds_read_b64_tr_b16 {v(fr(t,u,2+rb)+2,2)}, v{VB1} offset:{hl*1152 + 8*rb}", ("f", t, u))])
        return out
    def emit(g):
        for x in g:
            if isinstance(x, tuple): sb.ds(*x)
            else: k(x)
    def omfma(t):
        for u in range(2):
            sb.needds(("f", t, u))
            for rb in range(2):
                for b in (1, 0):
                    k(f"{MF} {v(dd(u,rb,b),4)}, {v(fr(t,u,b),4)}, {v(fr(t,u,2+rb),4)}, 0")
    def ovalu(t):
        out = []
        P = [(u, rb) for u in range(2) for rb in range(2)]
        for (u, rb) in P: out.append(f"v_add_f32 v{dd(u,rb,1)+2}, s55, v{dd(u,rb,1)+2}")
        for (u, rb) in P: out.append(f"v_rcp_f32 v{dd(u,rb,1)+2}, v{dd(u,rb,1)+2}")
        for (u, rb) in P:
            for x in (0, 2): out.append(f"v_pk_mul_f32 {v(dd(u,rb,0)+x,2)}, {v(dd(u,rb,0)+x,2)}, {v(dd(u,rb,1)+2,2)} op_sel_hi:[1,0]")
            out.append(f"v_pk_mul_f32 {v(dd(u,rb,1),2)}, {v(dd(u,rb,1),2)}, {v(dd(u,rb,1)+2,2)} op_sel_hi:[1,0]")
        for (u, rb) in P: out.append(f"v_cvt_pk_bf16_f32 v{dd(u,rb,1)}, v{dd(u,rb,1)}, v{dd(u,rb,1)+1}")
        for (u, rb) in P:
            for x in range(2): out.append(f"v_cvt_pk_bf16_f32 v{of(t,rb)+2*u+x}, v{dd(u,rb,0)+2*x}, v{dd(u,rb,0)+2*x+1}")
        for (u, rb) in P: out.append(f"v_mov_b32_dpp v{LF+2*rb+u}, v{dd(u,rb,1)} quad_perm:[0,1,2,3] row_mask:{1<<t} bank_mask:0xf")
        return out
    def pqneed(t): return min(8, ((2 * t + 2) * 1152 - 1) // 1024)
    def pqwait(t):
        upto(("pq", pqneed(t))); sb.needvm(("pq", pqneed(t)))
    wload(2)
    pqwait(0)
    if stamps: stamp_mid(k, 1)
    for g in reads(0): emit(g)
    wload(2)
    for t in range(4):
        omfma(t)
        n_ = ot
        if t + 1 < 4:
            pqwait(t + 1)
            for i, g in enumerate(reads(t + 1)):
                emit(g)
                if i % 2 and n_: wload(1); n_ -= 1
        else:
            k("s_nop 4")
        val = ovalu(t)
        per = len(val) // (n_ + 1) + 1
        for i, x in enumerate(val):
            k(x)
            if i % per == per - 1 and n_: wload(1); n_ -= 1
        for rb in range(2): sb.ds(f"ds_write_b128 v{VOW}, {v(of(t,rb),4)} offset:{(t*2+rb)*1024}", "ow")
    for rb in range(2): sb.ds(f"ds_write_b64 v{VOL}, {v(LF+2*rb,2)} offset:{rb*1024}", "ow")
    upto("x"); sb.needvm("x")
    sb.drain("lgkmcnt")
    k("s_barrier")
    if stamps: stamp_mid(k, 2)
    def rdA(ks): return [(f"ds_read_b128 {v(af(ks,rb),4)}, v{VOR} offset:{(ks*2+rb)*1024}", ("A", ks)) for rb in range(2)]
    for ks in range(LA):
        for x in rdA(ks): sb.ds(*x)
    xr = [(f"ds_read_b64_tr_b16 {v(X+4*c+2*u,2)}, v{VXR} offset:{c*32 + u*6144}", "xr") for c in range(3) for u in range(2)]
    XF = DD
    xv = []
    for c in range(3):
        for x in range(4): xv += [f"v_lshlrev_b32 v{XF+8*c+2*x}, 16, v{X+4*c+x}", f"v_and_b32 v{XF+8*c+2*x+1}, 0xffff0000, v{X+4*c+x}"]
    for ks in range(18):
        upto(("w", ks))
        sb.needvm(("w", ks)); sb.needds(("A", ks))
        m = [f"{MF} {v(acc(c,rb),4)}, {v(af(ks,rb),4)}, {a(wf(ks,c),4)}, {'0' if ks == 0 else v(acc(c,rb),4)}" for c in range(3) for rb in range(2)]
        rd = rdA(ks + LA) if ks + LA < 18 else []
        for i, x in enumerate(m):
            k(x)
            if i < len(rd): sb.ds(*rd[i])
            elif i in (2, 4) and (i // 2 <= gt): wload(1)
            elif i == 5 and gt >= 3: wload(gt - 2)
            elif i == 3 and xr and ks >= 2: sb.ds(*xr.pop(0))
            if ks >= 10 and i in (3, 5) and xv:
                if ks == 10 and i == 3: sb.needds("xr")
                k(xv[:2]); xv = xv[2:]
    assert not q and not xr and not xv
    if stamps: stamp_mid(k, 3)
    S = FR; Q = FR + 8; R = FR + 16; TT = FR + 24
    k("s_nop 3")
    for c in range(3):
        a0 = acc(c, 0)
        for x in range(0, 8, 2): k(f"v_pk_add_f32 {v(a0+x,2)}, {v(a0+x,2)}, {v(XF+8*c+x,2)}")
    for c in range(3):
        a0 = acc(c, 0)
        for x in range(0, 8, 2):
            if c == 0: k(f"v_pk_mul_f32 {v(Q+x,2)}, {v(a0+x,2)}, {v(a0+x,2)}")
            else: k(f"v_pk_fma_f32 {v(Q+x,2)}, {v(a0+x,2)}, {v(a0+x,2)}, {v(Q+x,2)}")
        for x in range(0, 8, 2):
            if c == 1: k(f"v_pk_add_f32 {v(S+x,2)}, {v(a0+x,2)}, {v(acc(0,0)+x,2)}")
            elif c == 2: k(f"v_pk_add_f32 {v(S+x,2)}, {v(a0+x,2)}, {v(S+x,2)}")
    for x in range(8):
        k(f"v_add_f32_dpp v{R+x}, v{Q+x}, v{Q+x} row_ror:8 row_mask:0xf bank_mask:0xc")
    for x in range(8):
        k(f"v_add_f32_dpp v{R+x}, v{S+x}, v{S+x} row_ror:8 row_mask:0xf bank_mask:0x3")
    for x in range(4):
        k(f"v_add_f32_dpp v{TT+x}, v{R+x}, v{R+x} row_half_mirror row_mask:0xf bank_mask:0x5")
    for x in range(4):
        k(f"v_add_f32_dpp v{TT+x}, v{R+4+x}, v{R+4+x} row_half_mirror row_mask:0xf bank_mask:0xa")
    for pm in ("[1,0,3,2]", "[2,3,0,1]"):
        for x in range(4): k(f"v_add_f32_dpp v{TT+x}, v{TT+x}, v{TT+x} quad_perm:{pm} row_mask:0xf bank_mask:0xf")
    def ststore(so, aux):
        k(f"""
        s_mov_b32 exec_lo, 0x11111111
        s_mov_b32 exec_hi, 0x11111111
        buffer_store_dwordx4 {v(TT,4)}, v{VST}, s[12:15], s{so} offen {aux}
        s_mov_b64 exec, -1
        """)
    PL = FR + 32
    def poll(so=46):
        for c in range(3): k(f"buffer_load_dwordx4 {v(PL+4*c,4)}, v{VPL}, s[12:15], s{so} offen offset:{c*1024} sc1")
    def cvst(c, o, so, cv=True, st=True):
        for x in range(4 if cv else 0): k(f"v_cvt_pk_bf16_f32 v{o+x}, v{acc(c,0)+2*x}, v{acc(c,0)+2*x+1}")
        if st: k(f"buffer_store_dwordx4 {v(o,4)}, v{VL}, s[24:27], s{so} offen offset:{c*1024} {aux_o}".rstrip())
    def test():
        k(f"""
        v_max3_u32 v{T}, v{PL}, v{PL+1}, v{PL+2}
        v_max3_u32 v{T+1}, v{PL+3}, v{PL+4}, v{PL+5}
        v_max3_u32 v{T+2}, v{PL+6}, v{PL+7}, v{PL+8}
        v_max3_u32 v{T+3}, v{PL+9}, v{PL+10}, v{PL+11}
        v_max3_u32 v{T}, v{T}, v{T+1}, v{T+2}
        v_max_u32 v{T}, v{T}, v{T+3}
        v_cmp_eq_u32 vcc, -1, v{T}
        """)
    H = DD + 24
    LS = k.label("spin"); LG = k.label("go")
    if xl:
        LA_ = k.label("near"); LB_ = k.label("far")
        ststore(52, "")
        if stamps: stamp_mid(k, 4)
        poll(53)
        for c in range(3): cvst(c, H + 4 * c, 49, st=False)
        k(f"s_mov_b32 s50, 0\n{LA_}:\ns_waitcnt vmcnt(0)")
        test()
        k(f"""
        s_add_u32 s50, s50, 1
        s_cmp_eq_u64 vcc, 0
        s_cbranch_scc1 {LB_}
        s_cmp_ge_u32 s50, {xl}
        s_cbranch_scc1 {LB_}
        """)
        poll(53)
        k(f"s_branch {LA_}\n{LB_}:")
        ststore(48, "sc1")
        for c in range(3): cvst(c, H + 4 * c, 49, cv=False)
        k(f"s_cmp_eq_u64 vcc, 0\ns_cbranch_scc1 {LG}\ns_mov_b32 s50, 0\n{LS}:")
        poll()
        k("s_waitcnt vmcnt(0)")
        test()
        k(f"""
        s_add_u32 s50, s50, 1
        s_cmp_eq_u64 vcc, 0
        s_cbranch_scc1 {LG}
        s_cmp_lt_u32 s50, 0x40000
        s_cbranch_scc1 {LS}
        {LG}:
        """)
        if stamps: stamp_mid(k, 5)
    else:
        ststore(48, "sc1")
        if stamps: stamp_mid(k, 4)
        if "pfirst" in dbg:
            poll()
            for c in range(3): cvst(c, H + 4 * c, 49)
            k("s_mov_b32 s50, 0\ns_waitcnt vmcnt(3)")
        elif "hrlast" in dbg:
            poll()
            for c in range(3): cvst(c, H + 4 * c, 49, st=False)
            k("s_mov_b32 s50, 0\ns_waitcnt vmcnt(0)")
        else:
            for c in range(3): cvst(c, H + 4 * c, 49)
            poll()
            k("s_mov_b32 s50, 0\ns_waitcnt vmcnt(0)")
        k(f"{LS}:")
        test()
        k(f"""
        s_add_u32 s50, s50, 1
        s_cmp_eq_u64 vcc, 0
        s_cbranch_scc1 {LG}
        s_cmp_ge_u32 s50, 0x40000
        s_cbranch_scc1 {LG}
        """)
        poll()
        k(f"""
        s_waitcnt vmcnt(0)
        s_branch {LS}
        {LG}:
        """)
        if stamps: stamp_mid(k, 5)
        if "hrlast" in dbg:
            for c in range(3): cvst(c, H + 4 * c, 49, cv=False)
    if tpp == 0: tail()
    for x in (0, 2): k(f"v_pk_add_f32 {v(TT+x,2)}, {v(PL+x,2)}, {v(PL+4+x,2)}")
    for x in (0, 2): k(f"v_pk_add_f32 {v(TT+x,2)}, {v(TT+x,2)}, {v(PL+8+x,2)}")
    k(f"s_mov_b32 s50, {fbits(1/576)}\ns_mov_b32 s51, {fbits(1e-5)}")
    for pm in ("[1,0,3,2]", "[2,3,0,1]"):
        for x in range(4): k(f"v_add_f32_dpp v{TT+x}, v{TT+x}, v{TT+x} quad_perm:{pm} row_mask:0xf bank_mask:0xf")
    for x in range(4): k(f"v_mul_f32 v{TT+x}, s50, v{TT+x}")
    for x in range(4): k(f"v_mov_b32_dpp v{R+x}, v{TT+x} row_ror:12 row_mask:0xf bank_mask:0xf")
    for x in range(4): k(f"v_fma_f32 v{R+x}, -v{TT+x}, v{TT+x}, v{R+x}")
    for x in range(4): k(f"v_max_f32 v{R+x}, 0, v{R+x}")
    for x in range(4): k(f"v_add_f32 v{R+4+x}, s51, v{R+x}")
    for x in range(4): k(f"v_rsq_f32 v{R+4+x}, v{R+4+x}")
    for x in range(4): k(f"v_mul_f32 v{R+x}, v{R+x}, v{R+4+x}")
    for x in range(4): k(f"v_fma_f32 v{R+x}, v{R+x}, v{R+4+x}, s51")
    for x in range(4): k(f"v_rsq_f32 v{R+x}, v{R+x}")
    for x in range(4): k(f"v_mul_f32 v{R+x}, v{R+x}, v{R+4+x}")
    for x in range(4): k(f"v_mul_f32 v{R+4+x}, v{TT+x}, v{R+x}")
    for rb in range(2):
        for x in range(4): k(f"v_mov_b32_dpp v{S+4*rb+x}, v{R+x} row_newbcast:{8*rb} row_mask:0xf bank_mask:0xf")
        for x in range(4): k(f"v_mov_b32_dpp v{Q+4*rb+x}, v{R+4+x} row_newbcast:{8*rb} row_mask:0xf bank_mask:0xf")
    H2 = X
    for c in range(3):
        for x in range(0, 8, 2): k(f"v_pk_fma_f32 {v(acc(c,0)+x,2)}, {v(acc(c,0)+x,2)}, {v(S+x,2)}, {v(Q+x,2)} neg_lo:[0,0,1] neg_hi:[0,0,1]")
        cvst(c, H2 + 4 * c, 47)
    if tpp == 1: tail()
    if stamps: stamp_end(k, kidx)
    k(f"{END}:\ns_endpgm")
    k(f"{SPARE}:")
    if stamps: stamp_begin(k)
    k(f"""
    s_load_dwordx2 s[8:9], s[0:1], 32          ; w1
    s_load_dwordx2 s[6:7], s[0:1], 48          ; w2
    s_sub_u32 s34, s34, 24
    s_lshl_b32 s39, s34, 2
    s_add_u32 s39, s39, s3
    """)
    def cp():
        H_ = k.label("pc")
        k(f"""
        s_getpc_b64 s[44:45]
        {H_}:
        s_add_u32 s44, s44, k3_kernel-{H_}
        s_addc_u32 s45, s45, 0
        v_lshl_add_u32 v18, v1, 5, s34
        v_lshl_add_u32 v18, s3, 3, v18
        v_lshlrev_b32 v18, 7, v18
        v_cmp_gt_u32 vcc, k4_kernel-k3_kernel, v18
        v_mov_b32 v19, 0
        v_mov_b32 v16, s44
        v_mov_b32 v17, s45
        v_lshl_add_u64 v[16:17], v[18:19], 0, v[16:17]
        s_and_saveexec_b64 s[46:47], vcc
        global_load_dword v8, v[16:17], off
        s_mov_b64 exec, s[46:47]
        """)
    if wpf:
        k(f"""
        s_mov_b32 s22, {XCA_OFF + XCA_SZ - KVT_OFF}
        s_mov_b32 s23, 0x20000
        s_lshl_b32 s40, s39, 6
        s_movk_i32 s41, 3641
        s_movk_i32 s43, 2731
        s_mov_b32 s48, 52224
        s_mov_b32 s49, 33792
        s_movk_i32 s50, 288
        s_mov_b32 s51, {WOF_OFF - KVT_OFF}
        s_mul_i32 s52, s33, {8 * 3072}
        s_add_u32 s52, s52, {XCA_OFF - KVT_OFF - 5184 * 128}
        """)
        for j in range(3):
            k(f"""
            v_add_u32 v20, s40, v1
            {f"v_add_u32 v20, {2048 * j}, v20" if j else ""}
            v_mul_u32_u24 v21, s41, v20
            v_lshrrev_b32 v21, 20, v21                 ; k-step
            v_mul_u32_u24 v22, s50, v21
            v_mul_u32_u24 v21, s49, v21
            v_sub_u32 v22, v20, v22
            v_lshlrev_b32 v20, 7, v20
            v_mul_u32_u24 v22, s43, v22
            v_sub_u32 v21, v20, v21
            v_lshrrev_b32 v22, 16, v22                 ; block
            v_mad_u32_u24 v{24+j}, v22, s48, v21
            """)
        LX = k.label("wx"); LY = k.label("wy")
        k("""
        s_waitcnt lgkmcnt(0)
        s_add_u32 s20, s10, %d
        s_addc_u32 s21, s11, 0
        buffer_load_dword v8, v24, s[20:23], s51 offen
        buffer_load_dword v8, v25, s[20:23], s51 offen
        """ % KVT_OFF)
        k(f"""
        s_cmp_ge_u32 s39, 17
        s_cbranch_scc1 {LX}
        buffer_load_dword v8, v26, s[20:23], s51 offen
        s_branch {LY}
        {LX}:
        s_cmp_ge_u32 s39, {20 if xl else 17}
        s_cbranch_scc1 {LY}
        buffer_load_dword v8, v20, s[20:23], s52 offen
        {LY}:
        """)
    if cpf and cpos == 0: cp()
    if wwait: k("s_waitcnt vmcnt(0)")
    k(f"""
    s_mov_b32 s98, {(1 << 32) // 9 + 1}
    s_movk_i32 s99, {9216 - 9 * 128}
    s_mul_i32 s42, s33, 1152
    v_lshrrev_b32 v2, 4, v1
    v_and_b32 v3, 15, v1
    v_lshlrev_b32 v3, 7, v3
    v_lshl_add_u32 v3, v2, 12, v3
    s_waitcnt lgkmcnt(0)
    """)
    srd(k, 12, 8, 9, 2048 * 9216)
    srd(k, 16, 6, 7, 4608 * 4096)
    LW = k.label("w1"); LV = k.label("w1d"); L2 = k.label("w2"); L3 = k.label("w2d")
    def pw1(lo, hi):
        k(f"""
        s_cmp_ge_u32 s39, {hi}
        s_cbranch_scc1 {LV}
        {LW}:
        s_lshl_b32 s40, s39, 6
        {f"s_add_u32 s40, s40, {((w1a - lo) * 64) & 0xffffffff}" if lo != w1a else ""}
        """)
        pf_addr_w1(k, 4, 6, 40, 42, rot, 56)
        k(f"""
        buffer_load_dword v8, v6, s[12:15], s42 offen
        s_add_u32 s39, s39, 32
        s_waitcnt vmcnt({pfd - 1})
        s_cmp_lt_u32 s39, {hi}
        s_cbranch_scc1 {LW}
        {LV}:
        """)
    def pw2():
        k(f"""
        s_lshr_b32 s35, s33, 1
        s_mul_i32 s35, s35, {1152 * 4096}
        s_and_b32 s36, s33, 1
        s_lshl_b32 s36, s36, 11
        s_add_u32 s36, s36, s35
        s_lshl_b32 s35, s39, 14
        s_add_u32 s36, s36, s35
        {f"s_add_u32 s36, s36, {w20 * 16384}" if w20 else ""}
        s_cmp_ge_u32 s39, {n2}
        s_cbranch_scc1 {L3}
        {L2}:
        buffer_load_dword v8, v3, s[16:19], s36 offen
        s_add_u32 s36, s36, {32 * 16384}
        s_add_u32 s39, s39, 32
        s_waitcnt vmcnt({pfd - 1})
        s_cmp_lt_u32 s39, {n2}
        s_cbranch_scc1 {L2}
        {L3}:
        """)
    if head is not None:
        w1x_setup(k, 33, 42); w1a = 0
        if w2f: pw2(); w1a = 0; pw1(n2, n2 + head)
        else: pw1(0, head); k(f"s_sub_u32 s39, s39, {head}"); pw2()
    elif w2f:
        pw2(); pw1(n2, n2 + 288 - w1a)
    else:
        pw1(0, 288 - w1a); k(f"s_sub_u32 s39, s39, {288 - w1a}"); pw2()
    if r3:
        LR = k.label("nor3")
        k(f"""
        s_lshl_b32 s39, s34, 2
        s_add_u32 s39, s39, s3
        s_cmp_ge_u32 s39, {r3}
        s_cbranch_scc1 {LR}
        """)
        res3_w1(k, 8, 33, 10, 44, 4)
        k(f"""
        s_mul_i32 s40, s39, {32 * 9216}
        buffer_load_dword v8, v10, s[12:15], s40 offen
        {LR}:
        """)
    if cpf and cpos == 1: cp()
    if stamps: stamp_end(k, kidx)
    k("s_endpgm")
    return k, (name, (256, 1, 1), (256, 1, 1), OI + 36864)
```

```python
from asmlib import *
from layout import *
from k4 import weave_at, MF
import struct
def fbits(x): return struct.unpack("<I", struct.pack("<f", x))[0]

def gen_k3(name="k3_kernel", kidx=2, stamps=False, aux_w="", aux_h="", aux_o="", npf=0, pfaux='', pfd=2, pfn=288, pfw=4, D=6, D0=3, L=4, dbg='', jit=None, cpf=None, pf0=0, stop=None, r3=None, r3w2=0, mix=0, head=None, pfd1=2):
    NS = 32; NB = 8
    k = K(name, vgpr=184, agpr=96)
    END = k.label("end")
    ACC = 56
    def acc(fb, db): return ACC + (fb * 3 + db) * 4
    BF = 152
    def bf(fb): return BF + fb * 4
    VH = 2
    VW = 4
    VT = 8
    BI = 16
    VU = 32
    VX = 38
    T0 = 40
    def abuf(n, db): return (n % NB) * 12 + db * 4
    nwg = 216 + npf
    HELP = k.label("help")
    k(f"s_cmp_ge_u32 s2, 216\ns_cbranch_scc1 {HELP if npf else END}")
    if stamps: stamp_begin(k)
    k(f"""
    s_load_dwordx4 s[4:7], s[0:1], 32          ; w1, b1
    s_load_dwordx2 s[10:11], s[0:1], 80        ; ws
    v_lshrrev_b32 v40, 6, v0
    v_and_b32 v1, 63, v0                       ; lane
    s_and_b32 s33, s2, 7
    v_readfirstlane_b32 s3, v40                ; wave
    s_mul_i32 s33, s33, 27
    s_lshr_b32 s34, s2, 3
    s_add_u32 s33, s33, s34                    ; tau
    s_mul_i32 s34, s33, 171
    s_lshr_b32 s34, s34, 10
    s_mul_i32 s35, s34, 6
    s_sub_u32 s35, s33, s35                    ; dt
    s_lshr_b32 s36, s3, 1                      ; kh
    s_and_b32 s37, s3, 1                       ; mh
    v_lshlrev_b32 v{VH}, 4, v1
    v_lshrrev_b32 v40, 4, v1                   ; g = l>>4
    v_and_b32 v41, 15, v1                      ; i
    s_lshl_b32 s38, s37, 4
    v_add_u32 v42, s38, v40
    s_movk_i32 s39, 9216
    v_mul_u32_u24 v42, s39, v42
    v_lshlrev_b32 v43, 1, v40
    v_xor_b32 v43, v43, v41
    v_xor_b32 v44, 8, v43
    v_lshl_add_u32 v{VW}, v43, 4, v42
    v_lshl_add_u32 v{VW+1}, v44, 4, v42
    v_add_u32 v{VW+2}, {2*(4*9216-1024)}, v{VW}
    v_add_u32 v{VW+1}, {4*9216-1024}, v{VW+1}
    v_add_u32 v{VW+3}, {2*(4*9216-1024)}, v{VW+1}
    s_mul_i32 s40, s36, 36
    s_mul_i32 s41, s35, 6
    s_add_u32 s40, s40, s41
    s_mul_i32 s41, s37, 3
    s_add_u32 s40, s40, s41
    s_lshl_b32 s40, s40, 10
    s_mul_i32 s41, s36, {32*9216}
    s_lshl_b32 s42, s34, 8
    s_add_u32 s41, s41, s42                    ; s41 = w1 soffset
    s_lshl_b32 s42, s36, 16
    s_lshl_b32 s43, s37, 12
    s_add_u32 s43, s43, s42
    s_waitcnt lgkmcnt(0)
    """)
    srd(k, 12, 4, 5, 2048 * 9216)
    srd(k, 16, 10, 11, HL_SZ, HL_OFF)
    def dma(n):
        out = []
        for q in range(4):
            g = []
            if q == 0: g += [f"s_add_u32 m0, s43, {(n % NB) * 8192}", "s_nop 0"]
            g.append(f"buffer_load_dwordx4 v{VW+q}, s[12:15], s41 offen offset:{q*1024} {aux_w} lds")
            if q == 3 and 'wwrap' in dbg and n % 4 == 3: g.append(f"s_sub_u32 s41, s41, {3*64*9216}")
            elif q == 3 and 'same' not in dbg: g.append(f"s_add_u32 s41, s41, {64*9216}")
            out.append(g)
        return out
    def hld(n):
        out = []
        for db in range(3):
            g = [f"buffer_load_dwordx4 {a(abuf(n,db),4)}, v{VH}, s[16:19], s40 offen offset:{db*1024} {aux_h}".rstrip()]
            if db == 2 and 'hwrap' in dbg and n % 4 == 3: g.append(f"s_sub_u32 s40, s40, {3*72*1024}")
            elif db == 2 and 'same' not in dbg: g.append(f"s_add_u32 s40, s40, {72*1024}")
            out.append(g)
        return out
    def both(n):
        d, h = dma(n), hld(n)
        return [d[0], h[0], d[1], h[1], d[2], h[2], d[3]] if mix else d + h
    for g in both(0): k(g)
    srd(k, 20, 6, 7, 9216)
    srd(k, 24, 10, 11, U_SZ, U_OFF)
    k(f"""
    s_lshl_b32 s44, s34, 8
    s_lshl_b32 s45, s36, 7
    s_add_u32 s44, s44, s45
    v_lshlrev_b32 v42, 3, v40
    """)
    for j in range(4):
        k(f"buffer_load_dwordx2 {v(T0+8+2*j,2)}, v42, s[20:23], s44 offen offset:{32*j}")
    for n in range(1, D0):
        for g in both(n): k(g)
    k(f"""
    v_bfe_u32 v42, v1, 2, 4                    ; row
    v_and_b32 v43, 7, v42
    v_and_b32 v44, 3, v1
    v_lshlrev_b32 v44, 3, v44
    v_lshl_add_u32 v44, v42, 8, v44
    v_add_u32 v44, s42, v44
    s_xor_b32 s45, s36, 1
    s_lshl_b32 s45, s45, 2
    v_xor_b32 v43, s45, v43
    """)
    for fb in range(8):
        k(f"v_xor_b32 v45, {fb}, v43\nv_lshl_add_u32 v{VT+fb}, v45, 5, v44")
    k(f"""
    s_lshl_b32 s48, s34, 1
    s_add_u32 s48, s48, s36
    s_mul_i32 s48, s48, 72
    s_mul_i32 s45, s35, 6
    s_add_u32 s48, s48, s45
    s_mul_i32 s45, s37, 3
    s_add_u32 s48, s48, s45
    s_lshl_b32 s48, s48, 10
    s_add_u32 s49, s48, 36864
    """)
    k(f"""
    s_mul_i32 s45, s37, 12288
    s_add_u32 s46, s45, s42
    s_xor_b32 s47, s46, 0x10000
    v_add_u32 v{VX}, s46, v{VH}
    v_add_u32 v{VX+1}, s47, v{VH}
    """)
    def reads(t):
        n, fb = divmod(t, 8)
        return [f"ds_read_b64_tr_b16 {v(bf(fb)+2*u,2)}, v{VT+fb} offset:{(n%NB)*8192 + u*4096}" for u in range(2)]
    def mfmas(t):
        n, fb = divmod(t, 8)
        out = []
        for db in range(3):
            c = v(acc(fb, db), 4)
            if n == 0: c = "0" if fb < 4 else v(BI + 4 * (fb - 4), 4)
            out.append(f"{MF} {v(acc(fb,db),4)}, {v(bf(fb),4)}, {a(abuf(n,db),4)}, {c}")
        return out
    k(f"s_waitcnt vmcnt({7*(D0-1)})")
    for j in range(4):
        for r in range(2):
            k(f"v_lshlrev_b32 v{BI+4*j+2*r}, 16, v{T0+8+2*j+r}\nv_and_b32 v{BI+4*j+2*r+1}, 0xffff0000, v{T0+8+2*j+r}")
    k("s_barrier")
    if stamps: stamp_mid(k, 0)
    for t in range(L): k(reads(t))
    issued = [n for n in range(D0) for _ in range(7)]
    nxt = D0
    pend = []
    for t in range(NS * 8):
        n, fb = divmod(t, 8)
        if stop is not None and t == stop * 8: k("s_waitcnt vmcnt(0) lgkmcnt(0)\ns_endpgm")
        pre = []
        left = min(L, NS * 8 - t)
        pre.append(f"s_waitcnt lgkmcnt({2*(left-1)})")
        side = []
        if fb == 8 - L and n + 1 < NS:
            cnt = sum(1 for x in issued if x > n + 1)
            assert all(st > n + 1 for st, _ in pend) and cnt < 64
            bar = [f"s_waitcnt vmcnt({cnt})"] + ([] if 'nobar' in dbg else ["s_barrier"])
            todo = 2 if nxt - n < D else 1
            for _ in range(todo):
                if nxt < NS and nxt - NB <= n - 1 and 'noload' not in dbg:
                    pend += [(nxt, g) for g in both(nxt)]
                    nxt += 1
            per = -(-len(pend) // 8)
        else:
            bar = []
        m = mfmas(t)
        r = reads(t + L) if t + L < NS * 8 else []
        ld = []
        if pend:
            ld, pend = pend[:per], pend[per:]
            issued += [st for st, _ in ld]
        ld = [g for _, g in ld]
        if n == NS - 1 and fb >= 4:
            ld = [[f"ds_write_b128 v{VX}, {v(acc(fb-4,db),4)} offset:{((fb-4)*3+db)*1024}"] for db in range(3)]
            pre = [f"s_waitcnt lgkmcnt({2*(left-1) + 3*(fb-4)})"]
        if cpf and n == NS - 1 and fb < 4:
            if fb == 0:
                kk = K(name); kk.nlab = 900
                code_pf(kk, "k4_kernel", "Lcode_end", T0 + 2, T0 + 6, 56, n=27, wave=3)
                cl_ = kk.lines
                cg = [cl_[:5], cl_[5:7], cl_[7:9], cl_[9:10], cl_[10:11], cl_[11:12], cl_[12:13], cl_[13:14], cl_[14:15], cl_[15:16], cl_[16:]]
            ld = cg[3 * fb: 3 * fb + 3]
        k(pre)
        k(m[0]); k(bar); k(r[:1]);
        for g in ld[:1]: k(g)
        k(m[1]); k(r[1:])
        for g in ld[1:2]: k(g)
        k(m[2])
        for g in ld[2:]: k(g)
    if stamps: stamp_mid(k, 1)
    k("s_waitcnt lgkmcnt(0)\ns_barrier")
    for fb in range(4):
        for db in range(3):
            k(f"ds_read_b128 {v(acc(fb,db),4)}, v{VX+1} offset:{(fb*3+db)*1024}")
    c1 = -2.0 * 0.7978845608028654 * 1.4426950408889634
    k(f"""
    s_mov_b32 s50, {fbits(c1)}
    s_mov_b32 s51, {fbits(c1)}
    s_mov_b32 s52, {fbits(c1 * 0.044715)}
    s_mov_b32 s53, {fbits(c1 * 0.044715)}
    s_mov_b32 s54, 1.0
    s_mov_b32 s55, 1.0
    v_mov_b32 v{T0}, s50
    v_mov_b32 v{T0+1}, s50
    """)
    if stamps: stamp_mid(k, 2)
    order = [(m_, db) for m_ in range(2) for db in range(3)]
    for (m_, db) in order:
        k(f"s_waitcnt lgkmcnt({11 - ((2*m_+1)*3+db)})")
        xs = []
        for fb in (2 * m_, 2 * m_ + 1):
            for h in (0, 2):
                xs.append((acc(fb + 4, db) + h, acc(fb, db) + h))
        for (x, t) in xs: k(f"v_pk_add_f32 {v(x,2)}, {v(x,2)}, {v(t,2)}")
        for (x, t) in xs: k(f"v_pk_mul_f32 {v(t,2)}, {v(x,2)}, {v(x,2)}")
        for (x, t) in xs: k(f"v_pk_fma_f32 {v(t,2)}, {v(t,2)}, s[52:53], {v(T0,2)}")
        for (x, t) in xs: k(f"v_pk_mul_f32 {v(t,2)}, {v(t,2)}, {v(x,2)}")
        for (x, t) in xs: k(f"v_exp_f32 v{t}, v{t}\nv_exp_f32 v{t+1}, v{t+1}")
        for (x, t) in xs: k(f"v_pk_add_f32 {v(t,2)}, {v(t,2)}, s[54:55]")
        for (x, t) in xs: k(f"v_rcp_f32 v{t}, v{t}\nv_rcp_f32 v{t+1}, v{t+1}")
        for (x, t) in xs: k(f"v_pk_mul_f32 {v(x,2)}, {v(x,2)}, {v(t,2)}")
        o = acc(2 * m_, db)
        for i, (x, t) in enumerate(xs): k(f"v_cvt_pk_bf16_f32 v{o+i}, v{x}, v{x+1}")
        k(f"buffer_store_dwordx4 {v(o,4)}, v{VH}, s[24:27], s{48+m_} offen offset:{db*1024} {aux_o}".rstrip())
    if stamps: stamp_end(k, kidx)
    k(f"{END}:\ns_endpgm")
    if npf:
        LP = k.label("pf")
        k(f"""
        {HELP}:
        s_cmp_ge_u32 s2, 256
        s_cbranch_scc1 {END}
        """)
        if stamps: stamp_begin(k)
        if jit is not None:
            LJ = k.label("jit"); LH = k.label("jh"); LN = k.label("jn")
            k(f"""
            s_load_dwordx2 s[4:5], s[0:1], 32
            s_load_dwordx2 s[10:11], s[0:1], 80
            v_lshrrev_b32 v2, 6, v0
            v_and_b32 v1, 63, v0
            s_and_b32 s33, s2, 7
            v_readfirstlane_b32 s3, v2
            s_sub_u32 s34, s2, 216
            s_lshr_b32 s34, s34, 3
            s_lshl_b32 s34, s34, 2
            s_add_u32 s34, s34, s3                     ; 0..19
            s_add_u32 s34, s34, {18 * jit}
            s_mul_i32 s33, s33, 1152
            s_mov_b32 s40, {(1 << 32) // 9 + 1}
            s_movk_i32 s41, {9216 - 9 * 128}
            v_lshlrev_b32 v3, 7, v1
            s_waitcnt lgkmcnt(0)
            """)
            srd(k, 12, 4, 5, 2048 * 9216)
            srd(k, 16, 10, 11, HL_SZ, HL_OFF)
            k(f"""
            {LJ}:
            s_mul_i32 s35, s34, 3641
            s_lshr_b32 s35, s35, 16                    ; stage = q / 18
            s_mul_i32 s36, s35, 18
            s_sub_u32 s36, s34, s36                    ; r
            s_mul_i32 s35, s35, 9
            s_add_u32 s35, s35, s36                    ; 9 stage + r
            s_cmp_ge_u32 s36, 9
            s_cbranch_scc1 {LH}
            s_lshl_b32 s35, s35, 6
            v_add_u32 v4, s35, v1
            v_mul_hi_u32 v5, v4, s40
            v_mul_u32_u24 v5, s41, v5
            v_lshl_add_u32 v4, v4, 7, v5
            buffer_load_dword v8, v4, s[12:15], s33 offen
            s_branch {LN}
            {LH}:
            s_sub_u32 s35, s35, 9
            s_lshl_b32 s35, s35, 13
            buffer_load_dword v8, v3, s[16:19], s35 offen
            {LN}:
            s_add_u32 s34, s34, 20
            s_waitcnt vmcnt({pfd - 1})
            s_cmp_lt_u32 s34, 576
            s_cbranch_scc1 {LJ}
            """)
        k(f"""
        s_load_dwordx2 s[4:5], s[0:1], 48
        {"s_load_dwordx2 s[6:7], s[0:1], 32" if r3 or head is not None else ""}
        v_lshrrev_b32 v2, 6, v0
        v_and_b32 v1, 63, v0
        s_and_b32 s33, s2, 7
        v_readfirstlane_b32 s3, v2
        s_sub_u32 s34, s2, 216
        s_lshr_b32 s34, s34, 3
        s_mul_i32 s34, s34, {pfw}
        s_add_u32 s34, s34, s3                     ; 0..19
        s_cmp_ge_u32 s3, {pfw}
        s_cbranch_scc1 {END}
        s_mov_b32 s38, s34
        s_mov_b32 s39, s33
        {f"s_add_u32 s34, s34, {pf0}" if pf0 else ""}
        v_lshrrev_b32 v2, 4, v1
        v_and_b32 v3, 15, v1
        v_lshlrev_b32 v3, 7, v3
        v_lshl_add_u32 v3, v2, 12, v3
        s_lshr_b32 s35, s33, 1
        s_mul_i32 s35, s35, {1152 * 4096}
        s_and_b32 s33, s33, 1
        s_lshl_b32 s33, s33, 11
        s_add_u32 s33, s33, s35
        s_lshl_b32 s37, s38, 18
        s_add_u32 s37, s37, s33
        s_lshl_b32 s35, s34, 14
        s_add_u32 s33, s33, s35
        s_waitcnt lgkmcnt(0)
        """)
        srd(k, 12, 4, 5, 4608 * 4096)
        if r3:
            srd(k, 16, 6, 7, 2048 * 9216)
            res3_w1(k, 6, 39, 10, 44, 4)
            k(f"""
            s_mul_i32 s40, s38, {64 * 9216}
            s_add_u32 s40, s40, {768 * 9216}
            s_add_u32 s41, s40, {32 * 9216}
            s_mul_i32 s42, s38, {r3[0]}
            s_lshr_b32 s42, s42, 3
            s_add_u32 s42, s42, {r3[1]}
            """)
        if head is not None:
            LH = k.label("w1")
            srd(k, 16, 6, 7, 2048 * 9216)
            w1x_setup(k, 39, 42)
            k(f"s_add_u32 s40, s38, {head}\ns_lshl_b32 s40, s40, 6\n{LH}:")
            pf_addr_w1(k, 4, 6, 40, 42)
            k(f"""
            buffer_load_dword v8, v6, s[16:19], s42 offen
            s_add_u32 s40, s40, {5 * pfw * 64}
            s_waitcnt vmcnt({pfd1 - 1})
            s_cmp_lt_u32 s40, {320 * 64}
            s_cbranch_scc1 {LH}
            s_lshr_b32 s40, s40, 6
            s_sub_u32 s40, s40, 320
            s_sub_u32 s40, s40, s38
            s_add_u32 s34, s34, s40
            s_lshl_b32 s40, s40, 14
            s_add_u32 s33, s33, s40
            """)
            if pf0 >= pfn: k("s_branch " + (LE_ := k.label("nopf")))
        k(f"{LP}:")
        if r3:
            LS = k.label("nor3")
            k(f"""
            s_cmp_lg_u32 s42, 0
            s_cbranch_scc1 {LS}
            buffer_load_dword v8, v10, s[16:19], s40 offen
            buffer_load_dword v8, v10, s[16:19], s41 offen
            {LS}:
            s_sub_u32 s42, s42, 1
            """)
        k(f"""
        buffer_load_dword v8, v3, s[12:15], s33 offen {pfaux}
        s_add_u32 s33, s33, {5 * pfw * 16384}
        s_add_u32 s34, s34, {5 * pfw}
        s_waitcnt vmcnt({pfd - 1})
        s_cmp_lt_u32 s34, {pfn}
        s_cbranch_scc1 {LP}
        """)
        if head is not None and pf0 >= pfn: k(f"{LE_}:")
        if r3w2:
            LT = k.label("nor3w")
            k(f"""
            s_cmp_ge_u32 s38, {r3w2}
            s_cbranch_scc1 {LT}
            s_lshr_b32 s35, s4, 7
            s_sub_u32 s35, {SLOWRES}, s35
            s_and_b32 s35, s35, 7
            s_lshl_b32 s35, s35, 7
            v_lshrrev_b32 v4, 1, v1
            v_and_b32 v5, 1, v1
            v_lshlrev_b32 v5, 10, v5
            v_lshl_add_u32 v4, v4, 12, v5
            s_add_u32 s37, s37, s35
            s_add_u32 s36, s37, {32 * 4096}
            buffer_load_dword v8, v4, s[12:15], s37 offen
            buffer_load_dword v8, v4, s[12:15], s36 offen
            {LT}:
            """)
        if stamps: stamp_end(k, kidx)
        k("s_endpgm")
    return k, (name, (nwg, 1, 1), (256, 1, 1), 131072)

if __name__ == "__main__":
    k, l = gen_k3(kidx=0, stamps=True)
    emit_file("k3.s", [l], [k])
```

```python
import os
WB = int(os.environ.get('WB', '0'), 0)
PQ_OFF  = WB + 0x000000; PQ_SZ  = 2048 * 1152
HL_OFF  = WB + 0x240000; HL_SZ  = 2048 * 1152
HR_OFF  = WB + 0x480000; HR_SZ  = 2048 * 1152
U_OFF   = WB + 0x6C0000; U_SZ   = 576 * 4608 * 2
KVT_OFF = WB + 0xC00000; KVT_SZ = 32 * 19 * 20 * 4
XCH_OFF = WB + 0xC10000; XCH_SZ = 64 * 4 * 256
XCH2_SZ = 64 * 3072
WOF_OFF = WB + 0xC40000; WOF_SZ = 16 * 41 * 1024; WOF2_SZ = 12 * 54 * 1024
FLG_OFF = WB + 0xD00000; FLG_SZ = 256 * 128
XQ_OFF  = WB + 0x1000000; XQ_SZ = 64 * 4 * 3 * 9216
XCA_OFF = WB + 0xD10000; XCA_SZ = 64 * 3072
if os.environ.get('XO'):
    HR_OFF = WB; HL_OFF = WB + 0x240000; PQ_OFF = WB + 0x480000; XQ_OFF = HL_OFF
    U_OFF += 0x240000; KVT_OFF += 0x300000; XCH_OFF += 0x300000; WOF_OFF += 0x300000; FLG_OFF += 0x300000; XCA_OFF += 0x300000
    assert XQ_OFF + XQ_SZ <= U_OFF - 2048 + 2048 and U_OFF + U_SZ <= KVT_OFF
```

```python
import sys
from asmlib import *
from k1 import gen_k1 as gen_k1o
from k1n import gen_k1 as gen_k1n
def gen_k1(new=False, **kw): return (gen_k1n if new else gen_k1o)(**kw)
from k2 import gen_k2 as gen_k2o
from k2n import gen_k2 as gen_k2n
def gen_k2(new=False, **kw): return (gen_k2n if new else gen_k2o)(**kw)
from k3 import gen_k3
from k4e import gen_k4
from hazchk import check
import smemchk
def header():
    L = open("cdna_kernels/" + NAME + ".s.ref").read().split("\n")
    out = []
    for l in L:
        if l.startswith("; @launch"): break
        out.append(l)
    return "\n".join(out) + "\n"
def build(path, stamps=False, k1={}, k2={}, k3={}, k4={}, extra=()):
    ks = [gen_k1(kidx=0, stamps=stamps, **k1), gen_k2(kidx=1, stamps=stamps, **k2),
          gen_k3(kidx=2, stamps=stamps, **{**dict(D=4), **k3}), gen_k4(kidx=3, stamps=stamps, **k4)]
    ks += list(extra)
    emit_file(path, [l for _, l in ks], [k for k, _ in ks], header())
    check(path)
    b = smemchk.check(path)
    assert not b, b
if __name__ == "__main__":
    build("full.s"); build("full_st.s", stamps=True)
    import shutil; shutil.copy("full.s", "cdna_kernels/" + NAME + ".s")
```

```python
from mkfinal import *
from mkship import BEST, S3
import sys, copy
def var(**kw):
    d = copy.deepcopy(BEST)
    for k_, v_ in kw.items(): d[k_] = {**d.get(k_, {}), **v_} if isinstance(v_, dict) else v_
    return d
R = ["","","","","www","","dwww","w"]
def n1(k2={}, k3={}, k4={}, **kw):
    d = var(k2=k2, k3=k3, k4=k4); d["k1"] = dict(new=True, **kw); return d
def n2(k1={}, k3={}, k4={}, **kw):
    nw1 = k1.get("nw1", 192); n2_ = kw.get("n2", 96)
    d = var(k1={**k1, "k2n": True, "xca": bool(kw.get("xl")), "rot": kw.get("rot", 0)}, k3={"pf0": n2_ + 96 * kw.get("tp", 0), **k3}, k4=k4); d["k2"] = dict(new=True, w1a=nw1, **kw); return d
X = dict(wpf=1, xl=16)
Y = dict(n2=0, rot=168, **X)
def sw(head=96, nw=192, lw=(3,3), n2_=0, k1={}, k3={}, k4={}, **kw):
    d = n2(k1={**dict(nw1=nw, lw=lw, pw2=1), **k1}, k3=k3, k4=k4, n2=n2_, head=head, w20=nw, **{**X, **kw})
    d["k3"].update(head=head, pf0=nw + n2_); return d
L = dict(pw2=2)
V = {
 "a": sw(head=96, n2_=32, w2f=1),
 "b": sw(head=96, n2_=32, w2f=1, k1=L),
 "c": sw(head=128, k1=L),
 "d": sw(head=112, k1=L),
 "e": sw(head=128, nw=176, lw=(3,3), k1=L),
 "f": sw(head=128, nw=192, lw=(2,2), k1=L),
}
if __name__ == "__main__":
  st = len(sys.argv) > 1 and sys.argv[1] == "st"
  for n, kw in V.items(): build(f"v{n}.s", stamps=st, **kw)
```

```python
import re, sys
def regs(tok):
    m = re.fullmatch(r"s\[(\d+):(\d+)\]", tok)
    if m: return set(range(int(m.group(1)), int(m.group(2)) + 1))
    m = re.fullmatch(r"s(\d+)", tok)
    if m: return {int(m.group(1))}
    return set()
def check(path):
    L = [l.split(";")[0].strip() for l in open(path)]
    L = [l for l in L if l and not l.startswith(".")]
    lab = {l[:-1]: i for i, l in enumerate(L) if l.endswith(":")}
    state = {}; work = [(i, frozenset()) for n, i in lab.items() if n.endswith("_kernel")]
    bad = set()
    while work:
        i, st = work.pop()
        st = set(st)
        while i < len(L):
            l = L[i]
            if l.endswith(":"):
                old = state.get(i)
                if old is not None and st <= old: break
                st |= (old or set()); state[i] = set(st); i += 1; continue
            op = l.split()[0]; toks = re.findall(r"s\[\d+:\d+\]|s\d+", l[len(op):])
            used = set().union(*[regs(t) for t in toks]) if toks else set()
            if op == "s_waitcnt":
                m = re.search(r"lgkmcnt\((\d+)\)", l)
                if m and int(m.group(1)) == 0: st = set()
            elif used & st: bad.add((i, l))
            if op.startswith("s_load") or op.startswith("s_buffer_load") or op in ("s_memtime", "s_memrealtime"):
                if op not in ("s_memtime", "s_memrealtime"): st |= regs(toks[0])
            if op == "s_endpgm": break
            if op == "s_branch":
                i = lab[l.split()[1]]; continue
            if op.startswith("s_cbranch"): work.append((lab[l.split()[1]], frozenset(st)))
            i += 1
    return sorted(bad)
if __name__ == "__main__":
    for p in sys.argv[1:]:
        b = check(p); print(p, len(b))
        for x in b[:20]: print("   ", x)
```
